```python
import torch

def _softmax(x, axis=-1):
    return torch.softmax(x, dim=axis)
def _gelu(x):
    return torch.nn.functional.gelu(x, approximate="tanh")
def _silu(x):
    return torch.nn.functional.silu(x)
def _sigmoid(x):
    return torch.sigmoid(x)
def _layernorm(x, axis=-1, eps=1e-5):
    m = x.mean(dim=axis, keepdim=True)
    v = x.var(dim=axis, keepdim=True, unbiased=False)
    return (x - m) / torch.sqrt(v + eps)
def _scatter_add(tgt, idx, src, axis=0):
    return tgt.clone().index_add_(axis, idx, src)
def _segment_sum(src, seg, n):
    out = torch.zeros((n,) + src.shape[1:], dtype=src.dtype)
    return out.index_add_(0, seg, src)
def _pad(x, pw):
    flat = tuple(v for pair in reversed(pw) for v in pair)
    return torch.nn.functional.pad(x, flat)

kernel_name = 'standalone__cheap_equivariant_egnn__graph'

def setup_inputs():

    _w = (lambda a: (lambda t: t.to(torch.bfloat16) if t.is_floating_point() else t)(torch.as_tensor(a)))
    N, deg, D, De = 10000, 16, 128, max(16, 1)
    E = N * deg
    return {
        "h": _w((lambda *s: torch.randn(*s, dtype=torch.bfloat16) * 0.2)(N, D)),
        "pos": _w((lambda *s: torch.randn(*s, dtype=torch.bfloat16) * 0.8)(N, 3)),
        "e_attr": _w((lambda *s: torch.randn(*s, dtype=torch.bfloat16) * 0.8)(E, De)),
        "src": _w((lambda lo, hi, *s: torch.randint(lo, hi, s))(0, N, E).to(torch.int64)),
        "dst": _w((lambda lo, hi, *s: torch.randint(lo, hi, s))(0, N, E).to(torch.int64)),
        "w_e": _w(0.1 * (lambda *s: torch.randn(*s, dtype=torch.bfloat16) * 0.8)(2 * D + 1 + De, D)),
        "w_x": _w(0.1 * (lambda *s: torch.randn(*s, dtype=torch.bfloat16) * 0.2)(D, 1)),
        "w_h": _w(0.1 * (lambda *s: torch.randn(*s, dtype=torch.bfloat16) * 0.2)(2 * D, D)),
    }

def reference(h, pos, e_attr, src, dst, w_e, w_x, w_h):
    N, D = h.shape[0], h.shape[1]
    diff = pos[dst] - pos[src]
    dist2 = torch.sum(diff * diff, axis=-1, keepdims=True)
    e_in = torch.concatenate([h[dst], h[src], dist2, e_attr], axis=-1)
    m_ij = _silu(e_in @ w_e)
    coord_scale = m_ij @ w_x
    pos_new = pos + _segment_sum(diff * coord_scale, dst, N)
    m_i = _segment_sum(m_ij, dst, N)
    h_new = h + _silu(torch.concatenate([h, m_i], axis=-1) @ w_h)
    return h_new, pos_new
```

```python
import re

TRANS = ("v_exp_f32", "v_log_f32", "v_rcp_f32", "v_rsq_f32", "v_sqrt_f32", "v_sin_f32", "v_cos_f32",
         "v_rcp_iflag_f32", "v_exp_f16", "v_rcp_f16")

def parse_reg(tok):
    t = tok.strip()
    t = t.lstrip("-")
    m = re.match(r"^abs\((.*)\)$", t)
    if m: t = m.group(1)
    t = t.strip("|")
    if t == "vcc": return {("s", 106), ("s", 107)}
    if t == "vcc_lo": return {("s", 106)}
    if t == "vcc_hi": return {("s", 107)}
    if t == "exec": return {("s", 126), ("s", 127)}
    if t == "exec_lo": return {("s", 126)}
    if t == "exec_hi": return {("s", 127)}
    if t == "m0": return {("s", 124)}
    m = re.match(r"^([vsa])(\d+)$", t)
    if m: return {(m.group(1), int(m.group(2)))}
    m = re.match(r"^([vsa])\[(\d+):(\d+)\]$", t)
    if m: return {(m.group(1), i) for i in range(int(m.group(2)), int(m.group(3)) + 1)}
    return set()

def split_ops(rest):
    ops, depth, cur = [], 0, ""
    for ch in rest:
        if ch == "[": depth += 1
        if ch == "]": depth -= 1
        if ch == "," and depth == 0:
            ops.append(cur.strip()); cur = ""
        else:
            cur += ch
    if cur.strip(): ops.append(cur.strip())
    return ops

class Ins:
    __slots__ = ("text", "op", "kind", "wr", "rd", "srcc", "passes", "dpp", "ws", "lds_dma", "widestore", "sdata")
    def __init__(self, text):
        self.text = text
        t = text.split(";")[0].strip()
        parts = t.split(None, 1)
        self.op = parts[0]
        rest = parts[1] if len(parts) > 1 else ""
        op = self.op
        self.wr, self.rd, self.srcc = set(), set(), set()
        self.passes = 0
        self.dpp = ("row_" in rest) or ("quad_perm" in rest) or ("wave_" in rest) or ("_dpp" in op)
        self.ws = 1
        self.lds_dma = False
        self.widestore = False
        self.sdata = set()
        ops = split_ops(rest)
        mods = ""
        if ops:
            last = ops[-1].split()
            if len(last) > 1:
                ops[-1] = last[0]; mods = " ".join(last[1:])
        R = [parse_reg(o) for o in ops]
        if op == "s_nop":
            self.kind = "nop"; self.ws = int(ops[0], 0) + 1
        elif op.startswith("v_mfma"):
            self.kind = "mfma"
            self.wr = R[0]; self.rd = R[1] | R[2] | R[3]; self.srcc = R[3]
            self.passes = 8 if "32x32x16" in op else 4
        elif op.startswith("v_cmp"):
            self.kind = "valu"; self.wr = R[0]
            for r in R[1:]: self.rd |= r
        elif op in ("v_readfirstlane_b32", "v_readlane_b32"):
            self.kind = "valu"; self.wr = R[0]
            for r in R[1:]: self.rd |= r
        elif op.startswith("v_permlane"):
            self.kind = "valu"; self.wr = R[0] | R[1]; self.rd = R[0] | R[1]
        elif op.startswith("v_"):
            self.kind = "valu"; self.wr = set(R[0])
            k = 1
            if op.startswith(("v_add_co", "v_sub_co", "v_addc_co", "v_subb_co", "v_mad_u64", "v_div_scale")):
                self.wr |= R[1]; k = 2
            for r in R[k:]: self.rd |= r
            if op.startswith(("v_fmac", "v_pk_fmac", "v_mac", "v_writelane", "v_dot2c")) or "d16" in op or op.startswith(("v_fma_mix",)):
                self.rd |= R[0]
            if op.startswith("v_cndmask") and len(ops) == 3: self.rd |= parse_reg("vcc")
            if self.dpp: self.rd |= R[0]
        elif op.startswith("ds_"):
            self.kind = "ds"
            if op.startswith(("ds_read", "ds_bpermute", "ds_permute", "ds_swizzle")) or "_rtn" in op:
                self.wr = R[0]
                for r in R[1:]: self.rd |= r
            else:
                for r in R: self.rd |= r
        elif op.startswith(("buffer_", "global_")):
            self.kind = "vmem"
            allm = mods + " " + rest
            self.lds_dma = bool(re.search(r"\blds\b", allm)) or "load_lds" in op
            if "load" in op and not self.lds_dma:
                self.wr = R[0]
                for r in R[1:]: self.rd |= r
                if "d16" in op: self.rd |= R[0]
            elif "atomic" in op and ("sc0" in allm):
                self.wr = R[0]
                for r in R: self.rd |= r
            else:
                for r in R: self.rd |= r
                if "store" in op and ("x4" in op or "x3" in op):
                    self.widestore = True
                    self.sdata = R[0] if op.startswith("buffer_") else R[1]
            if self.lds_dma: self.rd |= parse_reg("m0")
        elif op.startswith("s_"):
            self.kind = "salu"
            if op.startswith(("s_cmp", "s_cbranch", "s_branch", "s_waitcnt", "s_barrier", "s_endpgm", "s_setprio", "s_sleep", "s_bitcmp")):
                for r in R: self.rd |= r
            else:
                self.wr = R[0] if R else set()
                for r in R[1:]: self.rd |= r
                if "saveexec" in op: self.wr |= parse_reg("exec")
        else:
            raise ValueError("unknown op " + text)

class Asm:
    def __init__(self):
        self.out = []
        self.hist = []
        self.nnop = 0
    def raw(self, s):
        self.out.append(s)
    def comment(self, s):
        self.out.append("    ; " + s)
    def label(self, name):
        self.out.append(name + ":")
    def clear_hist(self):
        self.hist = []
    def need(self, c):
        req = 0
        dist = 0
        for p in reversed(self.hist):
            n = 0
            vw = {r for r in p.wr if r[0] in "va"}
            sw = {r for r in p.wr if r[0] == "s"}
            crv = {r for r in c.rd if r[0] in "va"}
            cwv = {r for r in c.wr if r[0] in "va"}
            crs = {r for r in c.rd if r[0] == "s"}
            if p.kind == "valu":
                if vw & crv:
                    if c.kind == "mfma": n = max(n, 2)
                    if c.op in ("v_readfirstlane_b32", "v_readlane_b32"): n = max(n, 1)
                    if c.op.startswith("v_permlane") or (c.kind == "valu" and c.dpp): n = max(n, 2)
                    if p.op in TRANS and c.kind in ("valu", "mfma") : n = max(n, 1 if c.kind == "valu" else 2)
                    if "sdwa" in p.op or "op_sel" in p.text or "dst_sel" in p.text: n = max(n, 1)
                if c.op.startswith("v_permlane") and (vw & cwv): n = max(n, 2)
                if sw & crs:
                    if c.kind == "valu":
                        n = max(n, 4 if c.op in ("v_readlane_b32", "v_writelane_b32") else 2)
                    if c.kind == "vmem": n = max(n, 5)
                    if c.kind == "salu": n = max(n, 1)
            if p.kind == "mfma":
                big = 12 if p.passes == 8 else 8
                if c.kind == "mfma":
                    ab = c.rd - c.srcc
                    if p.wr & ab: n = max(n, big)
                    if (p.wr & c.srcc):
                        if p.wr == c.srcc and p.passes == c.passes: pass
                        else: n = max(n, 10 if p.passes == 8 else 6)
                    if (p.wr & c.wr) and not (p.wr == c.wr): n = max(n, big)
                elif c.kind in ("valu", "ds", "vmem"):
                    if p.wr & (crv | cwv): n = max(n, big)
                    if c.kind == "valu" and (p.srcc & cwv): n = max(n, 7 if p.passes == 8 else 3)
            if p.kind == "salu" and (("s", 124) in p.wr) and c.lds_dma: n = max(n, 1)
            if p.widestore and c.kind == "valu" and (p.sdata & cwv): n = max(n, 2)
            if p.widestore and c.kind in ("ds", "vmem") and (p.sdata & cwv): n = max(n, 1)
            if n > dist: req = max(req, n - dist)
            dist += p.ws
            if dist >= 16: break
        return req
    def __call__(self, text):
        c = Ins(text)
        req = self.need(c)
        while req > 0:
            k = min(req, 16)
            nop = Ins(f"s_nop {k-1}")
            self.out.append(f"    s_nop {k-1}")
            self.hist.append(nop); self.nnop += 1
            req -= k
        self.out.append("    " + text)
        self.hist.append(c)
        if len(self.hist) > 40: self.hist = self.hist[-40:]
    def nop(self, n):
        self(f"s_nop {n-1}")
    def text(self):
        return "\n".join(self.out) + "\n"

def vr(a, n=1):
    return f"v{a}" if n == 1 else f"v[{a}:{a+n-1}]"
def sr(a, n=1):
    return f"s{a}" if n == 1 else f"s[{a}:{a+n-1}]"
```

```python
N = 10000; D = 128; E = 160000
NT_NODES = 40; T = 250; C = 64; CH = 2500
WS_CELLS = 0; CELLS_BYTES = T * C * 128
WS_Q = 0x200000; Q_BYTES = N * 256
WS_IMG = 0x500000
IMG_W1 = 0; IMG_WH = 32768; IMG_W4 = 98304; IMG_WDP = 102400; IMG_WXF = 102912; IMG_BYTES = 103424
LOG2E = 1.4426950408889634
LN2 = 0.6931471805599453
import struct
def f2u(x): return struct.unpack("<I", struct.pack("<f", x))[0]
KNAME = "standalone__cheap_equivariant_egnn__graph"
```

```python
from asmlib import *
from consts import *

K1_QWG = 157
K1_GRID = 64 + K1_QWG
K1_LDS = 33792

def srd(a, base, lo, hi, size, add=0):
    if add:
        a(f"s_add_u32 s{base}, s{lo}, {add}")
        a(f"s_addc_u32 s{base+1}, s{hi}, 0")
    else:
        a(f"s_mov_b32 s{base}, s{lo}")
        a(f"s_mov_b32 s{base+1}, s{hi}")
    a(f"s_mov_b32 s{base+2}, {size}")
    a(f"s_mov_b32 s{base+3}, 0x20000")

def gen_k1(a):
    a.raw(".p2align 8")
    a.raw(".type egnn_prep_kernel,@function")
    a.label("egnn_prep_kernel")
    a(f"s_cmp_ge_u32 s2, {K1_GRID}")
    a("s_cbranch_scc1 K1_end")
    a("s_load_dwordx2 s[4:5], s[0:1], 0")
    a("s_load_dwordx4 s[8:11], s[0:1], 24")
    a("s_load_dwordx4 s[12:15], s[0:1], 40")
    a("s_load_dwordx2 s[16:17], s[0:1], 56")
    a("s_load_dwordx2 s[18:19], s[0:1], 80")
    a("s_cmp_ge_u32 s2, 64")
    a("s_cbranch_scc1 K1_q")
    a("v_lshlrev_b32 v1, 4, v0")
    a(f"s_mul_i32 s3, s2, {CH*4}")
    a("v_cmp_gt_u32 vcc, 625, v0")
    a("s_waitcnt lgkmcnt(0)")
    srd(a, 20, 8, 9, E * 4)
    srd(a, 24, 10, 11, E * 4)
    srd(a, 28, 18, 19, CELLS_BYTES)
    a("s_and_saveexec_b64 s[32:33], vcc")
    a("s_cbranch_execz K1_b1")
    a("buffer_load_dwordx4 v[4:7], v1, s[24:27], s3 offen")
    a("buffer_load_dwordx4 v[8:11], v1, s[20:23], s3 offen")
    a.label("K1_b1")
    a("s_mov_b64 exec, s[32:33]")
    a("v_mov_b32 v12, -1"); a("v_mov_b32 v13, -1"); a("v_mov_b32 v14, -1"); a("v_mov_b32 v15, -1")
    a("ds_write_b128 v1, v[12:15]")
    a("ds_write_b128 v1, v[12:15] offset:16384")
    a("v_lshlrev_b32 v2, 2, v0")
    a("v_mov_b32 v3, 0")
    a("v_cmp_gt_u32 vcc, 256, v0")
    a("s_and_saveexec_b64 s[34:35], vcc")
    a("s_cbranch_execz K1_b2")
    a("ds_write_b32 v2, v3 offset:32768")
    a.label("K1_b2")
    a("s_mov_b64 exec, s[34:35]")
    a("s_waitcnt lgkmcnt(0)")
    a("s_barrier")
    a("v_cmp_gt_u32 vcc, 625, v0")
    a("s_and_saveexec_b64 s[32:33], vcc")
    a("s_cbranch_execz K1_b3")
    a("v_lshlrev_b32 v16, 22, v0")
    a("v_mov_b32 v17, 1")
    a("s_waitcnt vmcnt(0)")
    for k in range(4):
        a(f"v_mul_u32_u24 v{20+k}, 52429, v{4+k}")
        a(f"v_lshrrev_b32 v{20+k}, 21, v{20+k}")
    for k in range(4):
        a(f"v_lshlrev_b32 v{28+k}, 2, v{20+k}")
        a(f"ds_add_rtn_u32 v{24+k}, v{28+k}, v17 offset:32768")
    for k in range(4):
        a(f"v_mul_u32_u24 v{32+k}, 40, v{20+k}")
        a(f"v_sub_u32 v{32+k}, v{4+k}, v{32+k}")
        a(f"v_lshl_or_b32 v{8+k}, v{32+k}, 14, v{8+k}")
        if k: a(f"v_add_u32 v{32+k}, {k<<20}, v16")
        else: a(f"v_mov_b32 v{32+k}, v16")
        a(f"v_or_b32 v{8+k}, v{8+k}, v{32+k}")
        a(f"v_lshlrev_b32 v{20+k}, 7, v{20+k}")
    a(f"v_mov_b32 v36, {K1_LDS-4}")
    a("s_waitcnt lgkmcnt(0)")
    for k in range(4):
        a(f"v_lshl_add_u32 v{20+k}, v{24+k}, 2, v{20+k}")
        a(f"v_cmp_gt_u32 vcc, 32, v{24+k}")
        a(f"v_cndmask_b32 v{20+k}, v36, v{20+k}, vcc")
        a(f"ds_write_b32 v{20+k}, v{8+k}")
    a.label("K1_b3")
    a("s_mov_b64 exec, s[32:33]")
    a("s_waitcnt lgkmcnt(0)")
    a("s_barrier")
    a("s_lshl_b32 s3, s2, 7")
    a("v_lshrrev_b32 v2, 3, v0")
    a("v_and_b32 v3, 7, v0")
    a("v_lshlrev_b32 v4, 2, v2")
    a("ds_read_b128 v[8:11], v1")
    a("ds_read_b128 v[12:15], v1 offset:16384")
    a("ds_read_b32 v5, v4 offset:32768")
    a(f"ds_read_b32 v6, v4 offset:{32768+512}")
    a("v_lshlrev_b32 v7, 13, v2")
    a("v_lshl_add_u32 v7, v3, 4, v7")
    a(f"v_add_u32 v16, {128*8192}, v7")
    a("v_cmp_eq_u32 s[36:37], 7, v3")
    a("v_mov_b32 v17, -2")
    a("s_waitcnt lgkmcnt(0)")
    a("v_cmp_lt_u32 vcc, 32, v5")
    a("s_and_b64 vcc, vcc, s[36:37]")
    a("v_cndmask_b32 v11, v11, v17, vcc")
    a("v_cmp_lt_u32 vcc, 32, v6")
    a("s_and_b64 vcc, vcc, s[36:37]")
    a("v_cndmask_b32 v15, v15, v17, vcc")
    a("buffer_store_dwordx4 v[8:11], v7, s[28:31], s3 offen")
    a("buffer_store_dwordx4 v[12:15], v16, s[28:31], s3 offen")
    a("s_endpgm")
    a.label("K1_q")
    a.clear_hist()
    a("v_lshrrev_b32 v1, 6, v0")
    a("v_and_b32 v2, 63, v0")
    a("v_readfirstlane_b32 s3, v1")
    a("s_sub_u32 s2, s2, 64")
    a("s_waitcnt lgkmcnt(0)")
    srd(a, 20, 12, 13, 273 * 256)
    a("s_cmp_ge_u32 s3, 8")
    a("s_cbranch_scc1 K1_img")
    srd(a, 24, 4, 5, N * 256)
    srd(a, 28, 18, 19, Q_BYTES, add=WS_Q)
    a("v_lshlrev_b32 v3, 4, v2")
    a("s_lshl_b32 s33, s3, 12")
    for i in range(4):
        a(f"s_add_u32 m0, s33, {i*1024}")
        a(f"s_add_u32 s34, s33, {32768 + i*1024}")
        a("buffer_load_dwordx4 v3, s[20:23], s34 offen lds")
    a("s_and_b32 s35, s3, 3")
    a("s_lshr_b32 s36, s3, 2")
    a("s_lshl_b32 s37, s2, 6")
    a("s_lshl_b32 s38, s36, 5")
    a("s_add_u32 s37, s37, s38")
    a("v_and_b32 v4, 31, v2")
    a("v_lshrrev_b32 v5, 5, v2")
    a("v_add_u32 v6, s37, v4")
    a("v_lshlrev_b32 v6, 8, v6")
    a("v_lshl_add_u32 v7, v5, 4, v6")
    for ks in range(8):
        a(f"buffer_load_dwordx4 v[{16+4*ks}:{19+4*ks}], v7, s[24:27], 0 offen offset:{ks*32}")
    a("v_and_b32 v8, 15, v2")
    a("v_lshrrev_b32 v9, 2, v8")
    a("v_lshl_add_u32 v9, v5, 3, v9")
    a("v_lshlrev_b32 v9, 8, v9")
    a("v_and_b32 v10, 3, v2")
    a("v_lshlrev_b32 v10, 3, v10")
    a("v_and_b32 v11, 16, v2")
    a("v_lshl_add_u32 v10, v11, 1, v10")
    a("v_add_u32 v9, v9, v10")
    a("s_lshl_b32 s39, s35, 6")
    a("v_add_u32 v9, s39, v9")
    a("s_waitcnt vmcnt(8)")
    a("s_barrier")
    for ks in range(8):
        a(f"ds_read_b64_tr_b16 v[{48+4*ks}:{49+4*ks}], v9 offset:{ks*4096}")
        a(f"ds_read_b64_tr_b16 v[{50+4*ks}:{51+4*ks}], v9 offset:{ks*4096+1024}")
    a("s_waitcnt vmcnt(0) lgkmcnt(0)")
    for ks in range(8):
        c = "0" if ks == 0 else "v[80:95]"
        a(f"v_mfma_f32_32x32x16_bf16 v[80:95], v[{48+4*ks}:{51+4*ks}], v[{16+4*ks}:{19+4*ks}], {c}")
    a(f"s_mov_b32 s40, {f2u(LOG2E):#x}")
    for r in range(16):
        a(f"v_mul_f32 v{80+r}, s40, v{80+r}")
    for p in range(8):
        a(f"v_cvt_pk_bf16_f32 v{16+p}, v{80+2*p}, v{81+2*p}")
    a("v_lshl_add_u32 v7, v5, 3, v6")
    a("v_add_u32 v7, s39, v7")
    for g in range(4):
        a(f"buffer_store_dwordx2 v[{16+2*g}:{17+2*g}], v7, s[28:31], 0 offen offset:{g*16}")
    a("s_endpgm")
    a.label("K1_img")
    a.clear_hist()
    a("s_lshl_b32 s33, s2, 3")
    a("s_add_u32 s33, s33, s3")
    a("s_sub_u32 s33, s33, 8")
    a("s_cmp_ge_u32 s33, 101")
    a("s_cbranch_scc1 K1_end")
    srd(a, 28, 18, 19, IMG_BYTES, add=WS_IMG)
    a("v_and_b32 v4, 31, v2")
    a("v_lshrrev_b32 v5, 5, v2")
    a("v_lshlrev_b32 v6, 11, v5")
    a("v_lshl_add_u32 v6, v4, 1, v6")
    a("v_lshlrev_b32 v3, 4, v2")
    a("s_cmp_ge_u32 s33, 100")
    a("s_cbranch_scc1 K1_wd")
    a("s_cmp_ge_u32 s33, 96")
    a("s_cbranch_scc1 K1_w4")
    a("s_cmp_ge_u32 s33, 32")
    a("s_cbranch_scc1 K1_wh")
    a("s_lshr_b32 s34, s33, 3")
    a("s_and_b32 s35, s33, 7")
    a("s_lshl_b32 s35, s35, 12")
    a("s_lshl_b32 s34, s34, 6")
    a("s_add_u32 s34, s34, s35")
    a("s_lshl_b32 s36, s33, 10")
    for j in range(8):
        a(f"buffer_load_ushort v{16+j}, v6, s[20:23], s34 offen offset:{j*256}")
    a("s_branch K1_pack")
    a.label("K1_wh")
    srd(a, 24, 16, 17, 256 * 256)
    a("s_sub_u32 s33, s33, 32")
    a("s_lshr_b32 s34, s33, 4")
    a("s_and_b32 s35, s33, 15")
    a("s_lshl_b32 s35, s35, 12")
    a("s_lshl_b32 s34, s34, 6")
    a("s_add_u32 s34, s34, s35")
    a("s_lshl_b32 s36, s33, 10")
    a(f"s_add_u32 s36, s36, {IMG_WH}")
    for j in range(8):
        a(f"buffer_load_ushort v{16+j}, v6, s[24:27], s34 offen offset:{j*256}")
    a.label("K1_pack")
    a("s_waitcnt vmcnt(0)")
    for p in range(4):
        a(f"v_lshl_or_b32 v{24+p}, v{17+2*p}, 16, v{16+2*p}")
    a("buffer_store_dwordx4 v[24:27], v3, s[28:31], s36 offen")
    a("s_endpgm")
    a.label("K1_w4")
    a.clear_hist()
    a("s_sub_u32 s33, s33, 96")
    a("s_lshl_b32 s34, s33, 6")
    a(f"s_add_u32 s34, s34, {257*256}")
    a("s_lshl_b32 s36, s33, 10")
    a(f"s_add_u32 s36, s36, {IMG_W4}")
    for j in range(8):
        a(f"buffer_load_ushort v{16+j}, v6, s[20:23], s34 offen offset:{j*256}")
    a(f"s_mov_b32 s40, {f2u(LOG2E):#x}")
    a("s_waitcnt vmcnt(0)")
    for j in range(8):
        a(f"v_lshlrev_b32 v{16+j}, 16, v{16+j}")
        a(f"v_mul_f32 v{16+j}, s40, v{16+j}")
    for p in range(4):
        a(f"v_cvt_pk_bf16_f32 v{24+p}, v{16+2*p}, v{17+2*p}")
    a("buffer_store_dwordx4 v[24:27], v3, s[28:31], s36 offen")
    a("s_endpgm")
    a.label("K1_wd")
    a.clear_hist()
    srd(a, 24, 14, 15, 256)
    a("v_lshlrev_b32 v7, 1, v2")
    a(f"s_mov_b32 s34, {256*256}")
    a("buffer_load_ushort v16, v7, s[20:23], s34 offen")
    a("buffer_load_ushort v17, v7, s[20:23], s34 offen offset:128")
    a("buffer_load_ushort v18, v7, s[24:27], 0 offen")
    a("buffer_load_ushort v19, v7, s[24:27], 0 offen offset:128")
    a(f"s_mov_b32 s40, {f2u(LOG2E):#x}")
    a(f"s_mov_b32 s41, {f2u(LN2):#x}")
    a("v_lshlrev_b32 v8, 2, v2")
    a("s_waitcnt vmcnt(0)")
    for k in range(2):
        a(f"v_lshlrev_b32 v{16+k}, 16, v{16+k}")
        a(f"v_mul_f32 v{16+k}, s40, v{16+k}")
        a(f"v_cvt_pk_bf16_f32 v{20+k}, v{16+k}, v{16+k}")
        a(f"v_and_b32 v{22+k}, 0xffff0000, v{20+k}")
        a(f"v_sub_f32 v{22+k}, v{16+k}, v{22+k}")
        a(f"v_cvt_pk_bf16_f32 v{20+k}, v{16+k}, v{22+k}")
        a(f"v_lshlrev_b32 v{18+k}, 16, v{18+k}")
        a(f"v_mul_f32 v{18+k}, s41, v{18+k}")
    a(f"s_mov_b32 s34, {IMG_WDP}")
    a(f"s_mov_b32 s35, {IMG_WXF}")
    a("buffer_store_dword v20, v8, s[28:31], s34 offen")
    a("buffer_store_dword v21, v8, s[28:31], s34 offen offset:256")
    a("buffer_store_dword v18, v8, s[28:31], s35 offen")
    a("buffer_store_dword v19, v8, s[28:31], s35 offen offset:256")
    a.label("K1_end")
    a("s_endpgm")

K1_KD = f"""
.amdhsa_kernel egnn_prep_kernel
  .amdhsa_next_free_vgpr 96
  .amdhsa_next_free_sgpr 48
  .amdhsa_accum_offset 96
  .amdhsa_group_segment_fixed_size 0
  .amdhsa_kernarg_size 88
  .amdhsa_user_sgpr_count 2
  .amdhsa_user_sgpr_kernarg_segment_ptr 1
  .amdhsa_system_sgpr_workgroup_id_x 1
.end_amdhsa_kernel
"""
```

```python
from asmlib import *
from consts import *
from gen_k1 import srd

MAXT = 28
TS = 3712
O_D2 = 2048; O_EA = 2560; O_LS = 3584
L_QS = MAXT * TS
L_MACC = L_QS + 32768
assert L_MACC % 256 == 0
MROW = 528
L_LTMP = L_MACC + 40 * MROW
L_WCNT = L_LTMP + MAXT * 32 * 4
L_POSACC = L_WCNT + 96 * 4
L_POST = L_POSACC + 640
L_WX = L_POST + 640
K2_LDS = L_WX + 512
assert K2_LDS <= 163840
PRE2 = 40 * MROW
assert 4 * PRE2 <= L_QS
OOB = 0x7FFFFF00
SLOW_BLK = 640
SLOW_NBLK = E // SLOW_BLK

S_H, S_POS, S_EA, S_CELL, S_Q, S_IMG, S_OUT, S_SRC, S_DST = 8, 12, 16, 20, 24, 28, 32, 36, 40
sQB, sLOG2E, sLN2, sPDONE = 4, 5, 6, 7
sW, sS, sQ, sT = 44, 45, 46, 47
sONE = 48
sSLOW = 50
sM0 = 52
sM1 = 62
sN = 72
sTG = 77
sA, sB = 83, 84
sJ, sEND, sFIRST, sHALF = 85, 86, 87, 88
sC0 = 96
sNT = sTG + 5

vLANE = 1
vQ0, vQ1, vSEL, vEA, vSTA, vSTB = 2, 3, 4, 5, 6, 7
vPB = 8; vW4 = 28; vID = 32; vACC = 40; vD1 = 56
vA = 72; vT = 88; vM = 104; vSB = 112
vLS, vCQ, vSN, vFM, vFP = 120, 121, 122, 124, 125
vX, vY = 126, 127
pR, pE, pG, pP, pC, pWA, pWB = 88, 90, 92, 94, 96, 97, 98
t0, t1, t2, t3, t4, t5 = 100, 101, 102, 103, 104, 105
pZ = 108
vN_, vHH, vF = 40, 41, 42

def B(r): return f"s[{r}:{r+3}]"

def lane_consts(a):
    a(f"v_and_b32 v{vN_}, 31, v{vLANE}")
    a(f"v_lshrrev_b32 v{vHH}, 5, v{vLANE}")
    a(f"v_bfe_u32 v{vF}, v{vN_}, 2, 2")

def masked(a, cmp, label, body):
    a(cmp)
    a("s_and_saveexec_b64 s[90:91], vcc")
    a(f"s_cbranch_execz {label}")
    body()
    a.label(label)
    a("s_mov_b64 exec, s[90:91]")

def gen_k2(a):
    a(f"s_cmp_ge_u32 s2, {T}")
    a("s_cbranch_scc1 K2_end")
    a("s_load_dwordx4 s[48:51], s[0:1], 0")
    a("s_load_dwordx4 s[52:55], s[0:1], 16")
    a("s_load_dwordx2 s[56:57], s[0:1], 32")
    a("s_load_dwordx2 s[58:59], s[0:1], 64")
    a("s_load_dwordx2 s[60:61], s[0:1], 80")
    a(f"s_mov_b32 s{sT}, s2")
    a(f"v_and_b32 v{vLANE}, 63, v0")
    a("v_lshrrev_b32 v2, 6, v0")
    a(f"v_readfirstlane_b32 s{sW}, v2")
    a(f"s_and_b32 s{sS}, s{sW}, 3")
    a(f"s_lshr_b32 s{sQ}, s{sW}, 2")
    a(f"s_mov_b32 s{sLOG2E}, {f2u(LOG2E):#x}")
    a(f"s_mov_b32 s{sLN2}, {f2u(LN2):#x}")
    a(f"s_mov_b32 s{sPDONE}, 0")
    a("s_waitcnt lgkmcnt(0)")
    srd(a, S_CELL, 60, 61, CELLS_BYTES)
    a("v_lshlrev_b32 v2, 3, v0")
    a(f"s_lshl_b32 s3, s{sT}, 13")
    a(f"buffer_load_dwordx2 v[{pR}:{pR+1}], v2, {B(S_CELL)}, s3 offen")
    srd(a, S_H, 48, 49, N * 256)
    srd(a, S_POS, 50, 51, N * 6)
    srd(a, S_EA, 52, 53, E * 32)
    srd(a, S_SRC, 54, 55, E * 4)
    srd(a, S_DST, 56, 57, E * 4)
    srd(a, S_OUT, 58, 59, N * 262)
    srd(a, S_Q, 60, 61, Q_BYTES, add=WS_Q)
    srd(a, S_IMG, 60, 61, IMG_BYTES, add=WS_IMG)
    a(f"s_mov_b32 s{sONE}, 1.0")
    a(f"s_mov_b32 s{sONE+1}, 1.0")
    a(f"s_mov_b32 s{sSLOW}, 0")
    a(f"v_lshlrev_b32 v3, 4, v{vLANE}")
    a(f"s_lshl_b32 s3, s{sS}, 13")
    a(f"s_add_u32 s89, s3, 4096")
    for ks in range(8):
        so = "s3" if ks < 4 else "s89"
        a(f"buffer_load_dwordx4 v[{56+4*ks}:{59+4*ks}], v3, {B(S_IMG)}, {so} offen offset:{(ks%4)*1024}")
    a(f"s_lshl_b32 s3, s{sS}, 10")
    a(f"s_add_u32 s3, s3, {IMG_W4}")
    a(f"buffer_load_dwordx4 v[{vW4}:{vW4+3}], v3, {B(S_IMG)}, s3 offen")
    a(f"v_lshlrev_b32 v4, 2, v{vLANE}")
    a(f"v_mov_b32 v5, {OOB:#x}")
    a(f"v_cmp_gt_u32 vcc, 32, v{vLANE}")
    a("v_cndmask_b32 v4, v5, v4, vcc")
    a(f"s_lshl_b32 s3, s{sS}, 7")
    a(f"s_add_u32 s3, s3, {IMG_WDP}")
    a(f"buffer_load_dword v{vFM}, v4, {B(S_IMG)}, s3 offen")
    a("v_lshlrev_b32 v4, 7, v0")
    a(f"buffer_load_dword v{vY}, v4, {B(S_POS)}, 0 offen")
    a("v_lshlrev_b32 v4, 1, v0")
    a("v_cmp_gt_u32 vcc, 120, v0")
    a("v_cndmask_b32 v4, v5, v4, vcc")
    a(f"s_mul_i32 s3, s{sT}, 240")
    a(f"buffer_load_ushort v{vX}, v4, {B(S_POS)}, s3 offen")
    a("v_lshlrev_b32 v4, 2, v0")
    a("v_cmp_gt_u32 vcc, 128, v0")
    a("v_cndmask_b32 v4, v5, v4, vcc")
    a(f"s_mov_b32 s3, {IMG_WXF}")
    a(f"buffer_load_dword v{vFP}, v4, {B(S_IMG)}, s3 offen")
    a(f"s_cmp_ge_u32 s{sW}, 10")
    a("s_cbranch_scc1 K2_noh")
    a(f"v_lshrrev_b32 v4, 4, v{vLANE}")
    a(f"s_lshl_b32 s3, s{sW}, 2")
    a("v_add_u32 v4, s3, v4")
    a(f"v_xor_b32 v5, v4, v{vLANE}")
    a("v_and_b32 v5, 15, v5")
    a("v_lshlrev_b32 v4, 8, v4")
    a("v_lshl_add_u32 v4, v5, 4, v4")
    a(f"s_mul_i32 s3, s{sT}, {40*256}")
    a(f"s_lshl_b32 s89, s{sW}, 10")
    a(f"s_add_u32 m0, s89, {L_MACC}")
    a(f"buffer_load_dwordx4 v4, {B(S_H)}, s3 offen lds")
    a.label("K2_noh")
    lane_consts(a)
    a(f"s_lshl_b32 s{sQB}, s{sW}, 11")
    a(f"s_add_u32 s{sQB}, s{sQB}, {L_QS}")
    a(f"v_xor_b32 v13, v{vHH}, v{vF}")
    a("v_lshlrev_b32 v13, 4, v13")
    a(f"v_lshl_add_u32 v13, v{vN_}, 6, v13")
    a(f"v_add_u32 v{vQ0}, s{sQB}, v13")
    a(f"v_xor_b32 v{vQ1}, 32, v{vQ0}")
    a(f"v_lshrrev_b32 v13, 4, v{vLANE}")
    a(f"v_xor_b32 v13, v13, v{vLANE}")
    a("v_and_b32 v13, 3, v13")
    a("v_lshlrev_b32 v13, 4, v13")
    a(f"s_lshl_b32 s3, s{sS}, 6")
    a(f"v_add_u32 v{vCQ}, s3, v13")
    for aa in range(2):
        a(f"v_lshlrev_b32 v13, 3, v{vHH}")
        a(f"v_sub_u32 v13, v{vN_}, v13")
        if aa: a("v_subrev_u32 v13, 16, v13")
        a("v_and_b32 v14, 1, v13")
        a("v_lshlrev_b32 v14, 4, v14")
        a("v_mov_b32 v15, 0x3f80")
        a("v_lshlrev_b32 v15, v14, v15")
        a("v_lshrrev_b32 v14, 1, v13")
        for d in range(4):
            a(f"v_cmp_eq_u32 vcc, {d}, v14")
            a(f"v_cndmask_b32 v{vID+4*aa+d}, 0, v15, vcc")
    a.label("K2_batch")
    a.clear_hist()
    def slot_init():
        a("v_lshrrev_b32 v%d, 5, v0" % t0)
        a(f"v_mul_u32_u24 v{t0}, {TS}, v{t0}")
        a(f"v_and_b32 v{t1}, 31, v0")
        a(f"v_lshl_add_u32 v{t2}, v{t1}, 6, v{t0}")
        for r in range(4): a(f"v_mov_b32 v{pZ+r}, 0")
        for c in range(4): a(f"ds_write_b128 v{t2}, v[{pZ}:{pZ+3}] offset:{c*16}")
        a(f"v_lshl_add_u32 v{t2}, v{t1}, 2, v{t0}")
        a(f"v_mov_b32 v{t3}, {OOB:#x}")
        a(f"ds_write_b32 v{t2}, v{t3} offset:{O_LS}")
        a(f"v_lshlrev_b32 v{t2}, 2, v0")
        a(f"v_add_u32 v{t2}, {L_LTMP}, v{t2}")
        a(f"v_mov_b32 v{t3}, -1")
        a(f"ds_write_b32 v{t2}, v{t3}")
    masked(a, f"v_cmp_gt_u32 vcc, {MAXT*32}, v0", "K2_noinit", slot_init)
    a(f"s_cmp_lg_u32 s{sSLOW}, 0")
    a("s_cbranch_scc1 K2_slowload")
    a("s_waitcnt vmcnt(13)")
    a(f"v_lshrrev_b32 v{t0}, 4, v0")
    a(f"v_mul_u32_u24 v{t0}, {CH}, v{t0}")
    for k in range(2):
        a(f"v_lshrrev_b32 v{pE+k}, 20, v{pR+k}")
        a(f"v_add_u32 v{pE+k}, v{pE+k}, v{t0}")
    a.label("K2_sort")
    a.clear_hist()
    for k in range(2): a(f"v_bfe_u32 v{pG+k}, v{pR+k}, 17, 3")
    for g in range(5):
        a(f"v_cmp_eq_u32 s[{sM0+2*g}:{sM0+2*g+1}], {g}, v{pG}")
        a(f"v_cmp_eq_u32 s[{sM1+2*g}:{sM1+2*g+1}], {g}, v{pG+1}")
    a(f"v_cmp_eq_u32 vcc, -2, v{pR}")
    a(f"v_cmp_eq_u32 s[90:91], -2, v{pR+1}")
    a("s_or_b64 vcc, vcc, s[90:91]")
    a("s_bcnt1_i32_b64 s89, vcc")
    a(f"v_writelane_b32 v{pC}, s89, 5")
    for g in range(5):
        a(f"s_bcnt1_i32_b64 s{sC0+g}, s[{sM0+2*g}:{sM0+2*g+1}]")
        a(f"s_bcnt1_i32_b64 s89, s[{sM1+2*g}:{sM1+2*g+1}]")
        a(f"s_add_u32 s{sN+g}, s{sC0+g}, s89")
        a(f"v_writelane_b32 v{pC}, s{sN+g}, {g}")
        a(f"s_mov_b64 exec, s[{sM0+2*g}:{sM0+2*g+1}]")
        a(f"v_mbcnt_lo_u32_b32 v{pP}, s{sM0+2*g}, 0")
        a(f"v_mbcnt_hi_u32_b32 v{pP}, s{sM0+2*g+1}, v{pP}")
        a(f"s_mov_b64 exec, s[{sM1+2*g}:{sM1+2*g+1}]")
        a(f"v_mbcnt_lo_u32_b32 v{pP+1}, s{sM1+2*g}, 0")
        a(f"v_mbcnt_hi_u32_b32 v{pP+1}, s{sM1+2*g+1}, v{pP+1}")
        a("s_mov_b64 exec, -1")
    a(f"v_lshlrev_b32 v{t0}, 6, v{vLANE}")
    a(f"s_lshl_b32 s3, s{sW}, 2")
    a(f"s_add_u32 s3, s3, {L_WCNT}")
    a(f"v_add_u32 v{t0}, s3, v{t0}")
    a("s_mov_b64 exec, 0x3f")
    a(f"ds_write_b32 v{t0}, v{pC}")
    a("s_mov_b64 exec, -1")
    a("s_waitcnt lgkmcnt(0)")
    a("s_barrier")
    a(f"v_lshlrev_b32 v{t0}, 2, v{vLANE}")
    a(f"v_add_u32 v{t0}, {L_WCNT}, v{t0}")
    a(f"ds_read_b32 v{pWA}, v{t0}")
    a(f"ds_read_b32 v{pWB}, v{t0} offset:256")
    a("s_waitcnt lgkmcnt(0)")
    for sh in (1, 2, 4, 8):
        a(f"v_add_u32_dpp v{pWA}, v{pWA}, v{pWA} row_shr:{sh} row_mask:0xf bank_mask:0xf bound_ctrl:0")
        a(f"v_add_u32_dpp v{pWB}, v{pWB}, v{pWB} row_shr:{sh} row_mask:0xf bank_mask:0xf bound_ctrl:0")
    a(f"s_mov_b32 s{sTG}, 0")
    for g in range(5):
        vv = pWA if g < 4 else pWB
        ln = 16 * g if g < 4 else 0
        a(f"s_add_u32 s89, s{sW}, {ln}")
        a(f"v_readlane_b32 s90, v{vv}, s89")
        a(f"s_sub_u32 s90, s90, s{sN+g}")
        a(f"v_readlane_b32 s{sN+g}, v{vv}, {ln+15}")
        a(f"s_lshl_b32 s91, s{sTG+g}, 5")
        a(f"s_add_u32 s90, s90, s91")
        a(f"s_add_u32 s92, s{sN+g}, 31")
        a(f"s_lshr_b32 s92, s92, 5")
        a(f"s_add_u32 s{sTG+g+1}, s{sTG+g}, s92")
        a(f"s_add_u32 s{sC0+g}, s{sC0+g}, s90")
        a(f"s_mov_b64 exec, s[{sM0+2*g}:{sM0+2*g+1}]")
        a(f"v_add_u32 v{pP}, s90, v{pP}")
        a(f"s_mov_b64 exec, s[{sM1+2*g}:{sM1+2*g+1}]")
        a(f"v_add_u32 v{pP+1}, s{sC0+g}, v{pP+1}")
        a("s_mov_b64 exec, -1")
    a(f"v_readlane_b32 s89, v{pWB}, 31")
    a(f"s_cmp_lg_u32 s{sSLOW}, 0")
    a("s_cbranch_scc1 K2_go")
    a(f"s_cmp_lg_u32 s89, 0")
    a("s_cbranch_scc1 K2_toslow")
    a(f"s_cmp_gt_u32 s{sNT}, {MAXT}")
    a("s_cbranch_scc1 K2_toslow")
    a.label("K2_go")
    for k in range(2):
        def sc(k=k):
            a(f"v_lshrrev_b32 v{t0}, 5, v{pP+k}")
            a(f"v_mul_u32_u24 v{t0}, {TS}, v{t0}")
            a(f"v_and_b32 v{t1}, 31, v{pP+k}")
            a(f"v_lshl_add_u32 v{t0}, v{t1}, 2, v{t0}")
            a(f"v_and_b32 v{t1}, 0x3fff, v{pR+k}")
            a(f"v_lshlrev_b32 v{t1}, 8, v{t1}")
            a(f"ds_write_b32 v{t0}, v{t1} offset:{O_LS}")
            a(f"v_bfe_u32 v{t1}, v{pR+k}, 14, 6")
            a(f"v_lshl_or_b32 v{t1}, v{t1}, 18, v{pE+k}")
            a(f"v_lshlrev_b32 v{t0}, 2, v{pP+k}")
            a(f"v_add_u32 v{t0}, {L_LTMP}, v{t0}")
            a(f"ds_write_b32 v{t0}, v{t1}")
        masked(a, f"v_cmp_gt_u32 vcc, 5, v{pG+k}", f"K2_sc{k}", sc)
    a(f"s_cmp_lg_u32 s{sPDONE}, 0")
    a("s_cbranch_scc1 K2_nopost")
    a("s_waitcnt vmcnt(0)")
    a(f"v_mul_u32_u24 v{t0}, 43691, v0")
    a(f"v_lshrrev_b32 v{t0}, 17, v{t0}")
    a(f"v_add_u32 v{t0}, v{t0}, v0")
    a(f"v_lshlrev_b32 v{t0}, 2, v{t0}")
    a(f"v_lshlrev_b32 v{t1}, 16, v{vX}")
    masked(a, "v_cmp_gt_u32 vcc, 120, v0", "K2_p1", lambda: a(f"v_add_u32 v{t0}, {L_POST}, v{t0}") or a(f"ds_write_b32 v{t0}, v{t1}"))
    a(f"v_lshlrev_b32 v{t0}, 2, v0")
    a(f"v_add_u32 v{t0}, {L_POSACC}, v{t0}")
    a(f"v_mov_b32 v{t1}, 0")
    masked(a, "v_cmp_gt_u32 vcc, 160, v0", "K2_p2", lambda: a(f"ds_write_b32 v{t0}, v{t1}"))
    masked(a, "v_cmp_gt_u32 vcc, 128, v0", "K2_p3", lambda: a(f"ds_write_b32 v{t0}, v{vFP} offset:{L_WX-L_POSACC}"))
    a.label("K2_nopost")
    a(f"s_mul_i32 s{sA}, s{sQ}, s{sNT}")
    a(f"s_add_u32 s{sB}, s{sA}, s{sNT}")
    a(f"s_lshr_b32 s{sA}, s{sA}, 2")
    a(f"s_lshr_b32 s{sB}, s{sB}, 2")
    a("s_waitcnt vmcnt(0) lgkmcnt(0)")
    a("s_barrier")
    a(f"v_lshrrev_b32 v{t0}, 5, v0")
    a(f"v_min_u32 v{t0}, {MAXT-1}, v{t0}")
    a(f"v_mul_u32_u24 v{t0}, {TS}, v{t0}")
    a(f"v_and_b32 v{t1}, 31, v0")
    a(f"v_lshl_add_u32 v{t0}, v{t1}, 2, v{t0}")
    a(f"ds_read_b32 v{pR}, v{t0} offset:{O_LS}")
    a(f"v_lshrrev_b32 v{t2}, 1, v{vLANE}")
    a(f"v_lshlrev_b32 v{t3}, 2, v{t2}")
    a(f"s_lshl_b32 s3, s{sW}, 7")
    a(f"s_add_u32 s3, s3, {L_LTMP}")
    a(f"v_add_u32 v{t3}, s3, v{t3}")
    a(f"ds_read_b32 v{pE}, v{t3}")
    a(f"ds_read_b32 v{pE+1}, v{t3} offset:2048")
    a(f"v_lshrrev_b32 v{t2}, 3, v{t2}")
    a(f"v_xor_b32 v{t2}, v{t2}, v{vLANE}")
    a(f"v_and_b32 v{t2}, 1, v{t2}")
    a(f"v_lshlrev_b32 v{t2}, 4, v{t2}")
    a(f"s_mul_i32 s3, s{sA}, {TS}")
    a(f"v_lshrrev_b32 v{t4}, 2, v{vLANE}")
    a(f"v_lshlrev_b32 v{t4}, 2, v{t4}")
    a(f"v_add_u32 v{t4}, {O_LS}, v{t4}")
    a(f"v_add_u32 v{vLS}, s3, v{t4}")
    a(f"ds_read2_b32 v[{vSN}:{vSN+1}], v{vLS} offset0:0 offset1:16")
    a("s_waitcnt lgkmcnt(0)")
    a(f"v_lshrrev_b32 v{pR}, 8, v{pR}")
    a(f"v_mul_u32_u24 v{pR}, 6, v{pR}")
    a(f"v_cmp_gt_u32 vcc, {MAXT*32}, v0")
    a(f"v_mov_b32 v{t0}, {OOB:#x}")
    a(f"v_cndmask_b32 v{pR}, v{t0}, v{pR}, vcc")
    a(f"buffer_load_dword v{vX}, v{pR}, {B(S_POS)}, 0 offen")
    a(f"buffer_load_ushort v{vY}, v{pR}, {B(S_POS)}, 0 offen offset:4")
    for k in range(2):
        a(f"s_add_u32 s3, s{sW}, {16*k}")
        a(f"s_cmp_ge_u32 s3, s{sNT}")
        a(f"s_cbranch_scc1 K2_noea{k}")
        a(f"v_and_b32 v{pE+k}, 0x3ffff, v{pE+k}")
        a(f"v_lshl_add_u32 v{pE+k}, v{pE+k}, 5, v{t2}")
        a(f"s_mul_i32 s3, s3, {TS}")
        a(f"s_add_u32 m0, s3, {O_EA}")
        a(f"buffer_load_dwordx4 v{pE+k}, {B(S_EA)}, 0 offen lds")
        a.label(f"K2_noea{k}")
    a(f"s_cmp_ge_u32 s{sA}, s{sB}")
    a("s_cbranch_scc1 K2_noq0")
    a(f"v_add_u32 v{vSN}, v{vSN}, v{vCQ}")
    a(f"v_add_u32 v{vSN+1}, v{vSN+1}, v{vCQ}")
    a(f"s_mov_b32 m0, s{sQB}")
    a(f"buffer_load_dwordx4 v{vSN}, {B(S_Q)}, 0 offen lds")
    a(f"s_add_u32 m0, s{sQB}, 1024")
    a(f"buffer_load_dwordx4 v{vSN+1}, {B(S_Q)}, 0 offen lds")
    a.label("K2_noq0")
    a(f"s_cmp_lg_u32 s{sPDONE}, 0")
    a("s_cbranch_scc1 K2_nop")
    lane_consts(a)
    a(f"v_and_b32 v4, 15, v{vN_}")
    a(f"v_xor_b32 v4, v4, v{vHH}")
    a("v_lshlrev_b32 v4, 4, v4")
    a(f"v_lshl_add_u32 v4, v{vN_}, 8, v4")
    a(f"v_add_u32 v4, {L_MACC}, v4")
    for mt in range(2):
        for ks in range(8):
            a(f"v_xor_b32 v5, {ks*32}, v4" if ks else "v_mov_b32 v5, v4")
            a(f"ds_read_b128 v[{88+4*ks}:{91+4*ks}], v5 offset:{mt*8192}")
        a("s_waitcnt lgkmcnt(0)")
        for ks in range(8):
            c = "0" if ks == 0 else f"v[{vACC}:{vACC+15}]"
            a(f"v_mfma_f32_32x32x16_bf16 v[{vACC}:{vACC+15}], v[{88+4*ks}:{91+4*ks}], v[{56+4*ks}:{59+4*ks}], {c}")
        ng = 4 if mt == 0 else 1
        for r in range(4 * ng):
            a(f"v_mul_f32 v{vACC+r}, s{sLOG2E}, v{vACC+r}")
        for gg in range(ng):
            b = vPB + 4 * (4 * mt + gg)
            a(f"v_cvt_pk_bf16_f32 v{b}, v{vACC+4*gg}, v{vACC+4*gg+1}")
            a(f"v_cvt_pk_bf16_f32 v{b+1}, v{vACC+4*gg+2}, v{vACC+4*gg+3}")
            a(f"v_mov_b32 v{b+2}, v{vFM}")
            a(f"v_mov_b32 v{b+3}, 0")
            a(f"v_permlane32_swap_b32 v{b}, v{b+2}")
            a(f"v_permlane32_swap_b32 v{b+1}, v{b+3}")
    a("s_barrier")
    for r in range(4): a(f"v_mov_b32 v{pZ+r}, 0")
    a(f"v_lshlrev_b32 v{t0}, 4, v0")
    a(f"v_add_u32 v{t0}, {L_MACC}, v{t0}")
    a(f"ds_write_b128 v{t0}, v[{pZ}:{pZ+3}]")
    masked(a, f"v_cmp_gt_u32 vcc, {(40*MROW-16384)//16}, v0", "K2_z2", lambda: a(f"ds_write_b128 v{t0}, v[{pZ}:{pZ+3}] offset:16384"))
    a(f"s_mov_b32 s{sPDONE}, 1")
    a.label("K2_nop")
    a.clear_hist()
    def slot_fin():
        a(f"v_lshrrev_b32 v{t0}, 5, v0")
        a(f"v_mul_u32_u24 v{t0}, {TS}, v{t0}")
        a(f"v_and_b32 v{t1}, 31, v0")
        a(f"v_lshlrev_b32 v{t2}, 2, v0")
        a(f"v_add_u32 v{t2}, {L_LTMP}, v{t2}")
        a(f"ds_read_b32 v{pR}, v{t2}")
        a("s_waitcnt lgkmcnt(0)")
        a(f"v_bfe_u32 v{pG}, v{pR}, 18, 6")
        a(f"v_min_u32 v{t2}, 39, v{pG}")
        a(f"v_lshlrev_b32 v{t2}, 4, v{t2}")
        a(f"v_add_u32 v{t2}, {L_POST}, v{t2}")
        a(f"ds_read_b128 v[92:95], v{t2}".replace("92:95", f"{pZ}:{pZ+3}"))
        a("s_waitcnt vmcnt(0) lgkmcnt(0)")
        a(f"v_lshlrev_b32 v{t2}, 16, v{vX}")
        a(f"v_and_b32 v{t3}, 0xffff0000, v{vX}")
        a(f"v_lshlrev_b32 v{t4}, 16, v{vY}")
        a(f"v_sub_f32 v{t2}, v{pZ}, v{t2}")
        a(f"v_sub_f32 v{t3}, v{pZ+1}, v{t3}")
        a(f"v_sub_f32 v{t4}, v{pZ+2}, v{t4}")
        a(f"v_cvt_pk_bf16_f32 v{pE}, v{t2}, v{t3}")
        a(f"v_cvt_pk_bf16_f32 v{pE+1}, v{t4}, v{t4}")
        a(f"v_lshlrev_b32 v{t2}, 16, v{pE}")
        a(f"v_and_b32 v{t3}, 0xffff0000, v{pE}")
        a(f"v_lshlrev_b32 v{t4}, 16, v{pE+1}")
        a(f"v_mul_f32 v{t2}, v{t2}, v{t2}")
        a(f"v_mul_f32 v{t3}, v{t3}, v{t3}")
        a(f"v_mul_f32 v{t4}, v{t4}, v{t4}")
        a(f"v_cvt_pk_bf16_f32 v{t2}, v{t2}, v{t3}")
        a(f"v_cvt_pk_bf16_f32 v{t4}, v{t4}, v{t4}")
        a(f"v_and_b32 v{t3}, 0xffff0000, v{t2}")
        a(f"v_lshlrev_b32 v{t2}, 16, v{t2}")
        a(f"v_lshlrev_b32 v{t4}, 16, v{t4}")
        a(f"v_add_f32 v{t2}, v{t2}, v{t3}")
        a(f"v_add_f32 v{t2}, v{t2}, v{t4}")
        a(f"v_cvt_pk_bf16_f32 v{pZ}, v{t2}, v{t2}")
        a(f"v_cmp_ne_u32 vcc, -1, v{pR}")
        a(f"v_cndmask_b32 v{pZ}, 0, v{pZ}, vcc")
        for r in range(1, 4): a(f"v_mov_b32 v{pZ+r}, 0")
        a(f"v_lshl_add_u32 v{t2}, v{t1}, 4, v{t0}")
        a(f"ds_write_b128 v{t2}, v[{pZ}:{pZ+3}] offset:{O_D2}")
        a("s_and_saveexec_b64 s[92:93], vcc")
        a("s_cbranch_execz K2_nost")
        a(f"v_and_b32 v{t2}, 7, v{pG}")
        a(f"v_lshlrev_b32 v{t2}, 1, v{t2}")
        a(f"v_lshl_add_u32 v{t2}, v{t1}, 6, v{t2}")
        a(f"v_add_u32 v{t2}, v{t2}, v{t0}")
        a(f"v_bfe_u32 v{t3}, v{t1}, 2, 2")
        a(f"v_lshlrev_b32 v{t3}, 4, v{t3}")
        a(f"v_mov_b32 v{t5}, 0x3f80")
        a(f"v_add_u32 v{t4}, v{t3}, v{t2}")
        a(f"ds_write_b16 v{t4}, v{t5}")
        a(f"v_xad_u32 v{t4}, v{t3}, 16, v{t2}")
        a(f"ds_write_b16 v{t4}, v{pE}")
        a(f"v_xad_u32 v{t4}, v{t3}, 32, v{t2}")
        a(f"ds_write_b16_d16_hi v{t4}, v{pE}")
        a(f"v_xad_u32 v{t4}, v{t3}, 48, v{t2}")
        a(f"ds_write_b16 v{t4}, v{pE+1}")
        a.label("K2_nost")
        a("s_mov_b64 exec, s[92:93]")
    masked(a, f"v_cmp_gt_u32 vcc, {MAXT*32}, v0", "K2_nofin", slot_fin)
    lane_consts(a)
    a(f"s_mul_i32 s3, s{sA}, {TS}")
    a(f"v_lshlrev_b32 v{t0}, 4, v{vF}")
    a(f"v_lshl_add_u32 v{t0}, v{vN_}, 6, v{t0}")
    a(f"v_lshlrev_b32 v{t1}, 4, v{vN_}")
    a(f"v_add_u32 v{t1}, {O_D2}, v{t1}")
    a(f"v_cmp_eq_u32 vcc, 0, v{vHH}")
    a(f"v_cndmask_b32 v{t0}, v{t1}, v{t0}, vcc")
    a(f"v_add_u32 v{vSEL}, s3, v{t0}")
    a(f"v_lshrrev_b32 v{t0}, 3, v{vN_}")
    a(f"v_xor_b32 v{t0}, v{t0}, v{vHH}")
    a(f"v_and_b32 v{t0}, 1, v{t0}")
    a(f"v_lshlrev_b32 v{t0}, 4, v{t0}")
    a(f"v_lshl_add_u32 v{t0}, v{vN_}, 5, v{t0}")
    a(f"v_add_u32 v{t0}, {O_EA}, v{t0}")
    a(f"v_add_u32 v{vEA}, s3, v{t0}")
    a(f"v_bfe_u32 v{t0}, v{vLANE}, 2, 2")
    a(f"v_lshl_add_u32 v{t0}, v{vHH}, 2, v{t0}")
    a(f"v_lshlrev_b32 v{t0}, 6, v{t0}")
    a(f"v_bfe_u32 v{t1}, v{vLANE}, 4, 1")
    a(f"v_bfe_u32 v{t2}, v{vLANE}, 1, 1")
    a(f"v_lshl_add_u32 v{t1}, v{t1}, 1, v{t2}")
    a(f"v_xor_b32 v{t1}, v{t1}, v{vHH}")
    a(f"v_lshl_add_u32 v{t0}, v{t1}, 4, v{t0}")
    a(f"v_and_b32 v{t1}, 1, v{vLANE}")
    a(f"v_lshl_add_u32 v{t0}, v{t1}, 3, v{t0}")
    a(f"v_add_u32 v{vSTA}, s3, v{t0}")
    a(f"v_xor_b32 v{vSTB}, 32, v{vSTA}")
    a(f"v_and_b32 v{t0}, 7, v{vN_}")
    a(f"v_mul_u32_u24 v{t1}, {MROW}, v{t0}")
    a(f"v_lshl_add_u32 v{t1}, v{vHH}, 4, v{t1}")
    a(f"s_lshl_b32 s3, s{sS}, 7")
    a(f"s_add_u32 s3, s3, {L_MACC}")
    a(f"v_add_u32 v{vFM}, s3, v{t1}")
    a(f"v_lshrrev_b32 v{t1}, 3, v{vN_}")
    a(f"v_lshlrev_b32 v{t1}, 2, v{t1}")
    a(f"v_lshl_add_u32 v{t1}, v{t0}, 4, v{t1}")
    a(f"v_add_u32 v{vFP}, {L_POSACC}, v{t1}")
    a(f"v_add_u32 v{vLS}, {TS}, v{vLS}")
    a(f"s_mov_b32 s{sJ}, s{sA}")
    a("s_waitcnt vmcnt(0) lgkmcnt(0)")
    a("s_barrier")
    for g in range(5):
        main_group(a, g)
    a.label("K2_mainend")
    a.clear_hist()
    a(f"s_cmp_eq_u32 s{sSLOW}, 0")
    a("s_cbranch_scc1 K2_epi")
    a(f"s_add_u32 s{sSLOW}, s{sSLOW}, 1")
    a(f"s_cmp_gt_u32 s{sSLOW}, {SLOW_NBLK}")
    a("s_cbranch_scc1 K2_epi")
    a("s_waitcnt lgkmcnt(0)")
    a("s_barrier")
    a("s_branch K2_batch")
    a.label("K2_toslow")
    a.clear_hist()
    a(f"s_mov_b32 s{sSLOW}, 1")
    a("s_waitcnt lgkmcnt(0)")
    a("s_barrier")
    a("s_branch K2_batch")
    a.label("K2_slowload")
    a.clear_hist()
    a(f"s_sub_u32 s3, s{sSLOW}, 1")
    a(f"s_mul_i32 s3, s3, {SLOW_BLK}")
    a(f"v_lshlrev_b32 v{t0}, 1, v0")
    a(f"v_add_u32 v{pE}, s3, v{t0}")
    a(f"v_add_u32 v{pE+1}, 1, v{pE}")
    a(f"v_lshlrev_b32 v{t0}, 2, v{pE}")
    a(f"v_mov_b32 v{t1}, {OOB:#x}")
    a(f"v_cmp_gt_u32 vcc, {SLOW_BLK//2}, v0")
    a(f"v_cndmask_b32 v{t0}, v{t1}, v{t0}, vcc")
    a(f"buffer_load_dwordx2 v[{t2}:{t3}], v{t0}, {B(S_DST)}, 0 offen")
    a(f"buffer_load_dwordx2 v[{t4}:{t5}], v{t0}, {B(S_SRC)}, 0 offen")
    a(f"s_mul_i32 s3, s{sT}, 40")
    a("s_waitcnt vmcnt(0)")
    for k in range(2):
        a(f"v_subrev_u32 v{t2+k}, s3, v{t2+k}")
        a(f"v_lshl_or_b32 v{pR+k}, v{t2+k}, 14, v{t4+k}")
        a(f"v_cmp_gt_u32 s[92:93], 40, v{t2+k}")
        a(f"s_and_b64 s[92:93], s[92:93], vcc")
        a(f"v_cndmask_b32 v{pR+k}, -1, v{pR+k}, s[92:93]")
    a("s_branch K2_sort")
    a.label("K2_epi")
    a.clear_hist()
    epilogue(a)
    a.label("K2_end")
    a("s_endpgm")

def silu_half(a, h):
    r0 = 8 * h
    for i in range(r0, r0 + 8): a(f"v_exp_f32 v{vT+i}, -v{vD1+i}")
    for i in range(r0, r0 + 8, 2): a(f"v_pk_add_f32 v[{vT+i}:{vT+i+1}], v[{vT+i}:{vT+i+1}], s[{sONE}:{sONE+1}]")
    for i in range(r0, r0 + 8): a(f"v_rcp_f32 v{vT+i}, v{vT+i}")
    for i in range(r0, r0 + 8, 2): a(f"v_pk_mul_f32 v[{vT+i}:{vT+i+1}], v[{vT+i}:{vT+i+1}], v[{vD1+i}:{vD1+i+1}]")
    for i in range(r0, r0 + 8, 2): a(f"v_cvt_pk_bf16_f32 v{vM+i//2}, v{vT+i}, v{vT+i+1}")

def main_group(a, g):
    L = f"K2_g{g}"
    pb = vPB + 4 * g
    D1 = f"v[{vD1}:{vD1+15}]"; ACC = f"v[{vACC}:{vACC+15}]"
    a.label(L)
    a.clear_hist()
    a(f"s_min_u32 s{sEND}, s{sB}, s{sTG+g+1}")
    a(f"s_cmp_ge_u32 s{sJ}, s{sEND}")
    a(f"s_cbranch_scc1 {L}_done")
    a(f"s_sub_u32 s89, s{sN+g}, 1")
    a(f"s_and_b32 s89, s89, 31")
    a(f"s_sub_u32 s{sHALF}, s{sTG+g+1}, 1")
    a(f"s_cmp_lt_u32 s89, 16")
    a(f"s_cselect_b32 s{sHALF}, s{sHALF}, -1")
    a(f"s_mov_b32 s{sFIRST}, 1")
    a.label(f"{L}_loop")
    a.clear_hist()
    a(f"ds_read2_b32 v[{vSN}:{vSN+1}], v{vLS} offset0:0 offset1:16")
    a(f"ds_read_b128 v[{vA+8}:{vA+11}], v{vEA}")
    a(f"ds_read_b128 v[{vA+12}:{vA+15}], v{vSEL}")
    a("s_waitcnt vmcnt(0)")
    a(f"ds_read_b128 v[{vA}:{vA+3}], v{vQ0}")
    a(f"ds_read_b128 v[{vA+4}:{vA+7}], v{vQ1}")
    a("s_waitcnt lgkmcnt(2)")
    a(f"v_mfma_f32_32x32x16_bf16 {D1}, v[{vA+8}:{vA+11}], v[{vW4}:{vW4+3}], 0")
    a(f"v_mfma_f32_32x32x16_bf16 {D1}, v[{vA+12}:{vA+15}], v[{pb}:{pb+3}], {D1}")
    a(f"ds_read_b64_tr_b16 v[{vSB}:{vSB+1}], v{vSTA}")
    a(f"ds_read_b64_tr_b16 v[{vSB+2}:{vSB+3}], v{vSTB} offset:512")
    a(f"ds_read_b64_tr_b16 v[{vSB+4}:{vSB+5}], v{vSTA} offset:1024")
    a(f"ds_read_b64_tr_b16 v[{vSB+6}:{vSB+7}], v{vSTB} offset:1536")
    a("s_waitcnt lgkmcnt(4)")
    a(f"v_mfma_f32_32x32x16_bf16 {D1}, v[{vA}:{vA+3}], v[{vID}:{vID+3}], {D1}")
    a(f"v_mfma_f32_32x32x16_bf16 {D1}, v[{vA+4}:{vA+7}], v[{vID+4}:{vID+7}], {D1}")
    a(f"s_add_u32 s89, s{sJ}, 1")
    a(f"s_cmp_ge_u32 s89, s{sB}")
    a(f"s_cbranch_scc1 {L}_nodma")
    a(f"v_add_u32 v{vSN}, v{vSN}, v{vCQ}")
    a(f"v_add_u32 v{vSN+1}, v{vSN+1}, v{vCQ}")
    a(f"s_mov_b32 m0, s{sQB}")
    a(f"buffer_load_dwordx4 v{vSN}, {B(S_Q)}, 0 offen lds")
    a(f"s_add_u32 m0, s{sQB}, 1024")
    a(f"buffer_load_dwordx4 v{vSN+1}, {B(S_Q)}, 0 offen lds")
    a.label(f"{L}_nodma")
    for r in (vLS, vEA, vSEL, vSTA, vSTB):
        a(f"v_add_u32 v{r}, {TS}, v{r}")
    a("s_nop 7")
    silu_half(a, 0)
    a("s_waitcnt lgkmcnt(0)")
    a(f"s_cmp_eq_u32 s{sFIRST}, 0")
    a(f"s_cbranch_scc1 {L}_acc")
    a(f"v_mfma_f32_32x32x16_bf16 {ACC}, v[{vM}:{vM+3}], v[{vSB}:{vSB+3}], 0")
    a(f"s_mov_b32 s{sFIRST}, 0")
    a(f"s_branch {L}_acc2")
    a.label(f"{L}_acc")
    a(f"v_mfma_f32_32x32x16_bf16 {ACC}, v[{vM}:{vM+3}], v[{vSB}:{vSB+3}], {ACC}")
    a.label(f"{L}_acc2")
    a(f"s_cmp_eq_u32 s{sJ}, s{sHALF}")
    a(f"s_cbranch_scc1 {L}_skip2")
    silu_half(a, 1)
    a(f"v_mfma_f32_32x32x16_bf16 {ACC}, v[{vM+4}:{vM+7}], v[{vSB+4}:{vSB+7}], {ACC}")
    a.label(f"{L}_skip2")
    a(f"s_add_u32 s{sJ}, s{sJ}, 1")
    a(f"s_cmp_lt_u32 s{sJ}, s{sEND}")
    a(f"s_cbranch_scc1 {L}_loop")
    a.clear_hist()
    a(f"s_lshl_b32 s3, s{sS}, 7")
    a(f"v_lshrrev_b32 v{vX}, 5, v{vLANE}")
    a(f"v_lshlrev_b32 v{vX}, 4, v{vX}")
    a(f"v_add_u32 v{vX}, s3, v{vX}")
    a(f"v_add_u32 v{vX}, {L_WX}, v{vX}")
    for q4 in range(4):
        a(f"ds_read_b128 v[{vT+4*q4}:{vT+4*q4+3}], v{vX} offset:{q4*32}")
    a("s_nop 7")
    a("s_nop 3")
    a("s_waitcnt lgkmcnt(0)")
    a(f"v_pk_mul_f32 v[{vM}:{vM+1}], v[{vACC}:{vACC+1}], v[{vT}:{vT+1}]")
    for i in range(2, 16, 2):
        a(f"v_pk_fma_f32 v[{vM}:{vM+1}], v[{vACC+i}:{vACC+i+1}], v[{vT+i}:{vT+i+1}], v[{vM}:{vM+1}]")
    a(f"v_add_f32 v{vM}, v{vM}, v{vM+1}")
    a(f"ds_add_f32 v{vFP}, v{vM} offset:{g*128}")
    a("s_mov_b32 exec_lo, 0xff")
    a("s_mov_b32 exec_hi, 0xff")
    for r in range(16):
        off = g * 8 * MROW + (8 * (r // 4) + r % 4) * 4
        a(f"ds_add_f32 v{vFM}, v{vACC+r} offset:{off}")
    a("s_mov_b64 exec, -1")
    a.label(f"{L}_done")

def epilogue(a):
    D0 = f"v[{vACC}:{vACC+15}]"; D1 = f"v[{vD1}:{vD1+15}]"
    vB = 72
    vAf = 88
    lane_consts_regs = None
    a(f"v_lshlrev_b32 v{vX}, 4, v{vLANE}")
    a(f"s_lshl_b32 s3, s{sS}, 14")
    a(f"s_lshl_b32 s89, s{sQ}, 12")
    a(f"s_add_u32 s3, s3, s89")
    a(f"s_add_u32 s3, s3, {IMG_WH}")
    for i in range(4):
        a(f"buffer_load_dwordx4 v[{vB+4*i}:{vB+4*i+3}], v{vX}, {B(S_IMG)}, s3 offen offset:{i*1024}")
    a(f"v_lshlrev_b32 v2, 4, v0")
    a(f"v_mov_b32 v3, {OOB:#x}")
    a("v_cmp_gt_u32 vcc, 640, v0")
    a("v_cndmask_b32 v2, v3, v2, vcc")
    a(f"s_mul_i32 s92, s{sT}, {40*256}")
    a(f"buffer_load_dwordx4 v[28:31], v2, {B(S_H)}, s92 offen")
    a(f"v_and_b32 v4, 31, v{vLANE}")
    a(f"v_lshrrev_b32 v5, 5, v{vLANE}")
    a(f"s_cmp_ge_u32 s{sQ}, 2")
    a("s_cbranch_scc1 K2_e_m")
    a("v_lshlrev_b32 v6, 8, v4")
    a("v_lshl_add_u32 v6, v5, 4, v6")
    a(f"s_lshl_b32 s3, s{sQ}, 7")
    a(f"s_add_u32 s3, s3, s92")
    for i in range(4):
        a(f"buffer_load_dwordx4 v[{vAf+4*i}:{vAf+4*i+3}], v6, {B(S_H)}, s3 offen offset:{i*32}")
    a(f"v_add_u32 v7, {32*256}, v6")
    a("v_cmp_gt_u32 vcc, 8, v4")
    a("v_cndmask_b32 v7, v3, v7, vcc")
    for i in range(4):
        a(f"buffer_load_dwordx4 v[{vAf+16+4*i}:{vAf+16+4*i+3}], v7, {B(S_H)}, s3 offen offset:{i*32}")
    a("s_waitcnt lgkmcnt(0)")
    a("s_barrier")
    a("s_branch K2_e_mm")
    a.label("K2_e_m")
    a.clear_hist()
    a("s_waitcnt lgkmcnt(0)")
    a("s_barrier")
    a(f"s_sub_u32 s3, s{sQ}, 2")
    a(f"s_lshl_b32 s3, s3, 8")
    a(f"s_add_u32 s3, s3, {L_MACC}")
    for mt in range(2):
        if mt == 0: a("v_mov_b32 v6, v4")
        else:
            a("v_add_u32 v6, 32, v4")
            a("v_min_u32 v6, 39, v6")
        a(f"v_mul_u32_u24 v6, {MROW}, v6")
        a("v_lshl_add_u32 v6, v5, 5, v6")
        a("v_add_u32 v6, s3, v6")
        for i in range(4):
            a(f"ds_read_b128 v[{8+8*(i%2)}:{11+8*(i%2)}], v6 offset:{i*64}")
            a(f"ds_read_b128 v[{12+8*(i%2)}:{15+8*(i%2)}], v6 offset:{i*64+16}")
            a("s_waitcnt lgkmcnt(0)")
            for r in range(8):
                a(f"v_mul_f32 v{8+8*(i%2)+r}, s{sLN2}, v{8+8*(i%2)+r}")
            for p in range(4):
                a(f"v_cvt_pk_bf16_f32 v{vAf+16*mt+4*i+p}, v{8+8*(i%2)+2*p}, v{9+8*(i%2)+2*p}")
    a.label("K2_e_mm")
    a.clear_hist()
    a("s_waitcnt vmcnt(0)")
    a("s_nop 1")
    for mt in range(2):
        Dm = D0 if mt == 0 else D1
        for i in range(4):
            c = "0" if i == 0 else Dm
            a(f"v_mfma_f32_32x32x16_bf16 {Dm}, v[{vAf+16*mt+4*i}:{vAf+16*mt+4*i+3}], v[{vB+4*i}:{vB+4*i+3}], {c}")
    a(f"s_mul_i32 s3, s{sQ}, {PRE2}")
    a(f"s_lshl_b32 s89, s{sS}, 7")
    a(f"s_add_u32 s3, s3, s89")
    a(f"v_mul_u32_u24 v6, {4*MROW}, v5")
    a("v_lshl_add_u32 v6, v4, 2, v6")
    a("v_add_u32 v6, s3, v6")
    for r in range(16):
        a(f"ds_write_b32 v6, v{vACC+r} offset:{(8*(r//4)+r%4)*MROW}")
    for r in range(4):
        a(f"ds_write_b32 v6, v{vD1+r} offset:{(32+r)*MROW}")
    a("s_waitcnt lgkmcnt(0)")
    a("s_barrier")
    a(f"s_cmp_ge_u32 s{sW}, 12")
    a("s_cbranch_scc1 K2_end")
    a(f"s_cmp_ge_u32 s{sW}, 10")
    a("s_cbranch_scc1 K2_e_pos")
    a("v_lshrrev_b32 v4, 4, v0")
    a("v_and_b32 v5, 15, v0")
    a(f"v_mul_u32_u24 v6, {MROW}, v4")
    a("v_lshl_add_u32 v6, v5, 5, v6")
    for q in range(4):
        a(f"ds_read_b128 v[{40+8*q}:{43+8*q}], v6 offset:{q*PRE2}")
        a(f"ds_read_b128 v[{44+8*q}:{47+8*q}], v6 offset:{q*PRE2+16}")
    a("s_waitcnt lgkmcnt(0)")
    for r in range(0, 8, 2):
        a(f"v_pk_add_f32 v[{40+r}:{41+r}], v[{40+r}:{41+r}], v[{48+r}:{49+r}]")
        a(f"v_pk_add_f32 v[{56+r}:{57+r}], v[{56+r}:{57+r}], v[{64+r}:{65+r}]")
    for r in range(0, 8, 2):
        a(f"v_pk_add_f32 v[{40+r}:{41+r}], v[{40+r}:{41+r}], v[{56+r}:{57+r}]")
    for r in range(8): a(f"v_mul_f32 v{48+r}, s{sLOG2E}, v{40+r}")
    for r in range(8): a(f"v_exp_f32 v{48+r}, -v{48+r}")
    for r in range(8): a(f"v_add_f32 v{48+r}, 1.0, v{48+r}")
    for r in range(8): a(f"v_rcp_f32 v{48+r}, v{48+r}")
    for r in range(8): a(f"v_mul_f32 v{40+r}, v{40+r}, v{48+r}")
    for p in range(4): a(f"v_cvt_pk_bf16_f32 v{48+p}, v{40+2*p}, v{41+2*p}")
    for p in range(4):
        a(f"v_lshlrev_b32 v{40+2*p}, 16, v{48+p}")
        a(f"v_and_b32 v{41+2*p}, 0xffff0000, v{48+p}")
        a(f"v_lshlrev_b32 v{56+2*p}, 16, v{28+p}")
        a(f"v_and_b32 v{57+2*p}, 0xffff0000, v{28+p}")
    for r in range(0, 8, 2):
        a(f"v_pk_add_f32 v[{40+r}:{41+r}], v[{40+r}:{41+r}], v[{56+r}:{57+r}]")
    for p in range(4): a(f"v_cvt_pk_bf16_f32 v{48+p}, v{40+2*p}, v{41+2*p}")
    a(f"buffer_store_dwordx4 v[48:51], v2, {B(S_OUT)}, s92 offen")
    a("s_endpgm")
    a.label("K2_e_pos")
    a.clear_hist()
    a("v_subrev_u32 v4, 640, v0")
    a("v_mul_u32_u24 v5, 43691, v4")
    a("v_lshrrev_b32 v5, 17, v5")
    a("v_add_u32 v5, v5, v4")
    a("v_lshlrev_b32 v5, 2, v5")
    a("v_cmp_gt_u32 vcc, 120, v4")
    a("s_and_saveexec_b64 s[90:91], vcc")
    a("s_cbranch_execz K2_end")
    a(f"v_add_u32 v6, {L_POST}, v5")
    a("ds_read_b32 v7, v6")
    a(f"v_add_u32 v6, {L_POSACC+4}, v5")
    a("ds_read_b32 v8, v6")
    a("s_waitcnt lgkmcnt(0)")
    a("v_add_f32 v7, v7, v8")
    a("v_cvt_pk_bf16_f32 v7, v7, v7")
    a("v_lshlrev_b32 v4, 1, v4")
    a(f"s_mul_i32 s3, s{sT}, 240")
    a(f"s_add_u32 s3, s3, {N*256}")
    a(f"buffer_store_short v7, v4, {B(S_OUT)}, s3 offen")

K2_KD = f"""
.amdhsa_kernel {KNAME}_kernel
  .amdhsa_next_free_vgpr 128
  .amdhsa_next_free_sgpr 102
  .amdhsa_accum_offset 128
  .amdhsa_group_segment_fixed_size 0
  .amdhsa_kernarg_size 88
  .amdhsa_user_sgpr_count 2
  .amdhsa_user_sgpr_kernarg_segment_ptr 1
  .amdhsa_system_sgpr_workgroup_id_x 1
.end_amdhsa_kernel
"""
```

```python
import sys
from asmlib import *
from consts import *
import gen_k1
try:
    import gen_k2
except ImportError:
    gen_k2 = None

HEADER = """; EGNN layer (gather / edge-MLP / segment-sum / node-MLP), gfx950, two launches:
"""

def build(k2=True):
    a = Asm()
    main = KNAME + "_kernel"
    lds2 = gen_k2.K2_LDS if (gen_k2 and k2) else 0
    txt = HEADER
    txt += f"; @launch kernel=egnn_prep_kernel grid=({gen_k1.K1_GRID},1,1) block=(1024,1,1) lds={gen_k1.K1_LDS}\n"
    txt += f"; @launch kernel={main} grid=({T},1,1) block=(1024,1,1) lds={lds2}\n"
    txt += '.amdgcn_target "amdgcn-amd-amdhsa--gfx950"\n.text\n'
    txt += ".globl egnn_prep_kernel\n"
    gen_k1.gen_k1(a)
    a.raw(f".globl {main}")
    a.raw(".p2align 8")
    a.raw(f".type {main},@function")
    a.label(main)
    a.clear_hist()
    if gen_k2 and k2:
        gen_k2.gen_k2(a)
        kd2 = gen_k2.K2_KD
    else:
        a("s_endpgm")
        kd2 = f"""
.amdhsa_kernel {main}
  .amdhsa_next_free_vgpr 32
  .amdhsa_next_free_sgpr 48
  .amdhsa_accum_offset 32
  .amdhsa_group_segment_fixed_size 0
  .amdhsa_kernarg_size 88
  .amdhsa_user_sgpr_count 2
  .amdhsa_user_sgpr_kernarg_segment_ptr 1
  .amdhsa_system_sgpr_workgroup_id_x 1
.end_amdhsa_kernel
"""
    txt += a.text()
    txt += '.section .rodata,"a"\n.p2align 6\n'
    txt += gen_k1.K1_KD.lstrip("\n")
    txt += ".p2align 6\n"
    txt += kd2.lstrip("\n")
    return txt

if __name__ == "__main__":
    out = sys.argv[1] if len(sys.argv) > 1 else "cdna_kernels/" + KNAME + ".s"
    k2 = not (len(sys.argv) > 2 and sys.argv[2] == "nok2")
    open(out, "w").write(build(k2))
    print("wrote", out)
```

```python
N = 10000; D = 128; E = 160000
NT_NODES = 40; T = 250; C = 64; CH = 2500
WS_CELLS = 0; CELLS_BYTES = T * C * 128
WS_Q = 0x200000; Q_BYTES = (N + 1) * 256
WS_P = 0x480000; P_BYTES = (N // 8) * 4 * 512
WS_R = 0x700000; R_BYTES = N * 256
WS_IMG = 0xA00000
IMG_WH = 0; IMG_W4 = 32768; IMG_WDP = 36864; IMG_WXF = 37376; IMG_BYTES = 37888
WS_END = WS_IMG + IMG_BYTES
LOG2E = 1.4426950408889634
LN2 = 0.6931471805599453
import struct
def f2u(x): return struct.unpack("<I", struct.pack("<f", x))[0]
KNAME = "standalone__cheap_equivariant_egnn__graph"
```

```python
from asmlib import *
from consts import *

K1_GWG = 157
K1_IWG = 3
K1_GRID = 64 + K1_GWG + K1_IWG
L_H = 0; L_W2 = 16384; L_W1 = 49152; L_WH = 81920; L_OQ = 114688; L_OR = L_OQ + 64 * 272
K1_LDS = L_OR + 64 * 272

def srd(a, base, lo, hi, size, add=0):
    if add:
        a(f"s_add_u32 s{base}, s{lo}, {add}")
        a(f"s_addc_u32 s{base+1}, s{hi}, 0")
    else:
        a(f"s_mov_b32 s{base}, s{lo}")
        a(f"s_mov_b32 s{base+1}, s{hi}")
    a(f"s_mov_b32 s{base+2}, {size}")
    a(f"s_mov_b32 s{base+3}, 0x20000")

def gen_k1(a):
    a.raw(".p2align 8")
    a.raw(".type egnn_prep_kernel,@function")
    a.label("egnn_prep_kernel")
    a(f"s_cmp_ge_u32 s2, {K1_GRID}")
    a("s_cbranch_scc1 K1_end")
    a("s_cmp_ge_u32 s2, 64")
    a("s_cbranch_scc1 K1_q")
    a("s_load_dwordx4 s[8:11], s[0:1], 24")
    a("s_load_dwordx2 s[18:19], s[0:1], 80")
    a("v_lshlrev_b32 v1, 4, v0")
    a(f"s_mul_i32 s3, s2, {CH*4}")
    a("v_cmp_gt_u32 vcc, 625, v0")
    a("v_mov_b32 v12, -1"); a("v_mov_b32 v13, -1"); a("v_mov_b32 v14, -1"); a("v_mov_b32 v15, -1")
    a("v_lshlrev_b32 v2, 2, v0")
    a("v_mov_b32 v3, 0")
    a("s_waitcnt lgkmcnt(0)")
    srd(a, 24, 10, 11, E * 4)
    srd(a, 20, 8, 9, E * 4)
    a("s_and_saveexec_b64 s[32:33], vcc")
    a("s_cbranch_execz K1_b1")
    a("buffer_load_dwordx4 v[4:7], v1, s[24:27], s3 offen")
    a("buffer_load_dwordx4 v[8:11], v1, s[20:23], s3 offen")
    a.label("K1_b1")
    a("s_mov_b64 exec, s[32:33]")
    a("ds_write_b128 v1, v[12:15]")
    a("ds_write_b128 v1, v[12:15] offset:16384")
    a("v_cmp_gt_u32 vcc, 256, v0")
    a("s_and_saveexec_b64 s[34:35], vcc")
    a("s_cbranch_execz K1_b2")
    a("ds_write_b32 v2, v3 offset:32768")
    a.label("K1_b2")
    a("s_mov_b64 exec, s[34:35]")
    srd(a, 28, 18, 19, CELLS_BYTES)
    a("v_lshlrev_b32 v16, 22, v0")
    a("v_mov_b32 v17, 1")
    a("v_mov_b32 v36, 33788")
    a("s_waitcnt lgkmcnt(0)")
    a("s_barrier")
    a("v_cmp_gt_u32 vcc, 625, v0")
    a("s_and_saveexec_b64 s[32:33], vcc")
    a("s_cbranch_execz K1_b3")
    a("s_waitcnt vmcnt(0)")
    for k in range(4):
        a(f"v_mul_u32_u24 v{20+k}, 52429, v{4+k}")
        a(f"v_lshrrev_b32 v{20+k}, 21, v{20+k}")
        a(f"v_lshlrev_b32 v{28+k}, 2, v{20+k}")
        a(f"ds_add_rtn_u32 v{24+k}, v{28+k}, v17 offset:32768")
    for k in range(4):
        a(f"v_mul_u32_u24 v{32+k}, 40, v{20+k}")
        a(f"v_sub_u32 v{32+k}, v{4+k}, v{32+k}")
        a(f"v_lshl_or_b32 v{8+k}, v{32+k}, 14, v{8+k}")
        if k: a(f"v_add_u32 v{32+k}, {k<<20}, v16")
        a(f"v_or_b32 v{8+k}, v{8+k}, v{32+k if k else 16}")
        a(f"v_lshlrev_b32 v{20+k}, 7, v{20+k}")
    a("s_waitcnt lgkmcnt(0)")
    for k in range(4):
        a(f"v_lshl_add_u32 v{20+k}, v{24+k}, 2, v{20+k}")
        a(f"v_cmp_gt_u32 vcc, 32, v{24+k}")
        a(f"v_cndmask_b32 v{20+k}, v36, v{20+k}, vcc")
        a(f"ds_write_b32 v{20+k}, v{8+k}")
    a.label("K1_b3")
    a("s_mov_b64 exec, s[32:33]")
    a("s_lshl_b32 s3, s2, 7")
    a("v_lshrrev_b32 v2, 3, v0")
    a("v_and_b32 v3, 7, v0")
    a("v_lshlrev_b32 v4, 2, v2")
    a("v_lshlrev_b32 v7, 13, v2")
    a("v_lshl_add_u32 v7, v3, 4, v7")
    a(f"v_add_u32 v16, {128*8192}, v7")
    a("v_cmp_eq_u32 s[36:37], 7, v3")
    a("v_mov_b32 v17, -2")
    a("s_waitcnt lgkmcnt(0)")
    a("s_barrier")
    a("ds_read_b128 v[8:11], v1")
    a("ds_read_b128 v[12:15], v1 offset:16384")
    a("ds_read_b32 v5, v4 offset:32768")
    a(f"ds_read_b32 v6, v4 offset:{32768+512}")
    a("s_waitcnt lgkmcnt(0)")
    a("v_cmp_lt_u32 vcc, 32, v5")
    a("s_and_b64 vcc, vcc, s[36:37]")
    a("v_cndmask_b32 v11, v11, v17, vcc")
    a("v_cmp_lt_u32 vcc, 32, v6")
    a("s_and_b64 vcc, vcc, s[36:37]")
    a("v_cndmask_b32 v15, v15, v17, vcc")
    a("buffer_store_dwordx4 v[8:11], v7, s[28:31], s3 offen")
    a("buffer_store_dwordx4 v[12:15], v16, s[28:31], s3 offen")
    a("s_endpgm")
    a.label("K1_q")
    a.clear_hist()
    a(f"s_cmp_ge_u32 s2, {64 + K1_GWG}")
    a("s_cbranch_scc1 K1_img")
    a("s_load_dwordx2 s[4:5], s[0:1], 0")
    a("s_load_dwordx2 s[12:13], s[0:1], 40")
    a("s_load_dwordx2 s[16:17], s[0:1], 56")
    a("s_load_dwordx2 s[18:19], s[0:1], 80")
    a("v_lshrrev_b32 v1, 6, v0")
    a("v_and_b32 v2, 63, v0")
    a("v_readfirstlane_b32 s3, v1")
    a("s_sub_u32 s2, s2, 64")
    a("v_lshrrev_b32 v4, 4, v2")
    a("s_lshl_b32 s33, s3, 2")
    a("v_add_u32 v4, s33, v4")
    a("v_xor_b32 v5, v4, v2")
    a("v_and_b32 v5, 15, v5")
    a("v_lshlrev_b32 v4, 8, v4")
    a("v_lshl_add_u32 v4, v5, 4, v4")
    a("v_lshlrev_b32 v3, 4, v2")
    a("s_lshl_b32 s34, s2, 14")
    a("s_lshl_b32 s35, s3, 10")
    a("s_lshl_b32 s36, s3, 11")
    a("s_waitcnt lgkmcnt(0)")
    srd(a, 24, 4, 5, N * 256)
    srd(a, 20, 12, 13, 273 * 256)
    srd(a, 28, 16, 17, 256 * 256)
    a(f"s_add_u32 m0, s35, {L_H}")
    a("buffer_load_dwordx4 v4, s[24:27], s34 offen lds")
    for (lb, sr_, go) in ((L_W2, 20, 32768), (L_W1, 20, 0), (L_WH, 28, 0)):
        for i in range(2):
            a(f"s_add_u32 m0, s36, {lb + i*1024}")
            a(f"s_add_u32 s37, s36, {go + i*1024}")
            a(f"buffer_load_dwordx4 v3, s[{sr_}:{sr_+3}], s37 offen lds")
    a("s_and_b32 s35, s3, 3")
    a("s_bfe_u32 s36, s3, 0x10002")
    a("v_and_b32 v4, 31, v2")
    a("v_lshrrev_b32 v5, 5, v2")
    a("v_and_b32 v6, 15, v4")
    a("v_xor_b32 v6, v6, v5")
    a("v_lshlrev_b32 v6, 4, v6")
    a("v_lshl_add_u32 v6, v4, 8, v6")
    a("s_lshl_b32 s37, s36, 13")
    a("v_add_u32 v6, s37, v6")
    a("v_bfe_u32 v9, v2, 2, 2")
    a("v_lshl_add_u32 v9, v5, 3, v9")
    a("v_lshlrev_b32 v9, 8, v9")
    a("v_and_b32 v10, 3, v2")
    a("v_lshlrev_b32 v10, 3, v10")
    a("v_and_b32 v11, 16, v2")
    a("v_lshl_add_u32 v10, v11, 1, v10")
    a("v_add_u32 v9, v9, v10")
    a("s_lshl_b32 s39, s35, 6")
    a("v_add_u32 v9, s39, v9")
    a(f"s_mov_b32 s40, {f2u(LOG2E):#x}")
    a("s_waitcnt vmcnt(0)")
    a("s_barrier")
    for ks in range(8):
        a(f"v_xor_b32 v7, {ks*32}, v6" if ks else "v_mov_b32 v7, v6")
        a(f"ds_read_b128 v[{16+4*ks}:{19+4*ks}], v7")
    a("s_cmp_ge_u32 s3, 8")
    a("s_cbranch_scc1 K1_p")
    for m, (lb, lo) in enumerate(((L_W2, L_OQ), (L_WH, L_OR))):
        a(f"v_add_u32 v8, {lb}, v9")
        for ks in range(8):
            a(f"ds_read_b64_tr_b16 v[{48+4*ks}:{49+4*ks}], v8 offset:{ks*4096}")
            a(f"ds_read_b64_tr_b16 v[{50+4*ks}:{51+4*ks}], v8 offset:{ks*4096+1024}")
        a("s_waitcnt lgkmcnt(0)")
        for ks in range(8):
            c = "0" if ks == 0 else "v[80:95]"
            a(f"v_mfma_f32_32x32x16_bf16 v[80:95], v[{48+4*ks}:{51+4*ks}], v[{16+4*ks}:{19+4*ks}], {c}")
        if m == 0:
            a("s_mul_i32 s37, s36, %d" % (32 * 272))
            a("s_add_u32 s37, s37, s39")
            a(f"s_add_u32 s37, s37, {L_OQ}")
            a("v_mul_u32_u24 v12, 272, v4")
            a("v_lshl_add_u32 v12, v5, 3, v12")
            a("v_add_u32 v12, s37, v12")
            for r in range(16):
                a(f"v_mul_f32 v{80+r}, s40, v{80+r}")
        for p in range(8):
            a(f"v_cvt_pk_bf16_f32 v{96+p}, v{80+2*p}, v{81+2*p}")
        for g in range(4):
            a(f"ds_write_b64 v12, v[{96+2*g}:{97+2*g}] offset:{lo - L_OQ + g*16}")
    a("s_branch K1_qst")
    a.label("K1_p")
    a.clear_hist()
    a(f"v_add_u32 v8, {L_W1}, v9")
    for ks in range(8):
        a(f"ds_read_b64_tr_b16 v[{48+4*ks}:{49+4*ks}], v8 offset:{ks*4096}")
        a(f"ds_read_b64_tr_b16 v[{50+4*ks}:{51+4*ks}], v8 offset:{ks*4096+1024}")
    a("s_waitcnt lgkmcnt(0)")
    for ks in range(8):
        c = "0" if ks == 0 else "v[80:95]"
        a(f"v_mfma_f32_32x32x16_bf16 v[80:95], v[{16+4*ks}:{19+4*ks}], v[{48+4*ks}:{51+4*ks}], {c}")
    a("s_lshl_b32 s37, s2, 3")
    a("s_lshl_b32 s38, s36, 2")
    a("s_add_u32 s37, s37, s38")
    a("v_lshlrev_b32 v12, 4, v4")
    a("v_lshl_add_u32 v12, v5, 3, v12")
    a("s_lshl_b32 s38, s35, 9")
    a("v_add_u32 v12, s38, v12")
    srd(a, 28, 18, 19, P_BYTES, add=WS_P)
    a("s_lshl_b32 s38, s37, 11")
    for r in range(16):
        a(f"v_mul_f32 v{80+r}, s40, v{80+r}")
    for p in range(8):
        a(f"v_cvt_pk_bf16_f32 v{96+p}, v{80+2*p}, v{81+2*p}")
    for g in range(4):
        if g: a("s_add_u32 s38, s38, 2048")
        a(f"buffer_store_dwordx2 v[{96+2*g}:{97+2*g}], v12, s[28:31], s38 offen")
    a.label("K1_qst")
    a.clear_hist()
    a("v_lshrrev_b32 v4, 4, v0")
    a("v_and_b32 v5, 15, v0")
    a("v_mul_u32_u24 v6, 272, v4")
    a("v_lshl_add_u32 v6, v5, 4, v6")
    a("v_lshlrev_b32 v7, 4, v0")
    srd(a, 20, 18, 19, Q_BYTES, add=WS_Q)
    srd(a, 28, 18, 19, R_BYTES, add=WS_R)
    a("s_add_u32 s35, s34, 256")
    a("s_waitcnt lgkmcnt(0)")
    a("s_barrier")
    a(f"v_add_u32 v8, {L_OQ}, v6")
    a("ds_read_b128 v[16:19], v8")
    a(f"ds_read_b128 v[20:23], v8 offset:{L_OR-L_OQ}")
    a("s_waitcnt lgkmcnt(1)")
    a("buffer_store_dwordx4 v[16:19], v7, s[20:23], s35 offen")
    a("s_waitcnt lgkmcnt(0)")
    a("buffer_store_dwordx4 v[20:23], v7, s[28:31], s34 offen")
    a("s_cmp_lg_u32 s2, 0")
    a("s_cbranch_scc1 K1_end")
    a("v_cmp_gt_u32 vcc, 16, v0")
    a("s_and_saveexec_b64 s[32:33], vcc")
    a("s_cbranch_execz K1_end")
    for r in range(4): a(f"v_mov_b32 v{24+r}, 0")
    a("buffer_store_dwordx4 v[24:27], v7, s[20:23], 0 offen")
    a("s_endpgm")
    a.label("K1_img")
    a.clear_hist()
    a("s_load_dwordx4 s[12:15], s[0:1], 40")
    a("s_load_dwordx2 s[16:17], s[0:1], 56")
    a("s_load_dwordx2 s[18:19], s[0:1], 80")
    a("v_lshrrev_b32 v1, 6, v0")
    a("v_and_b32 v2, 63, v0")
    a("v_readfirstlane_b32 s3, v1")
    a(f"s_sub_u32 s2, s2, {64 + K1_GWG}")
    a("s_lshl_b32 s33, s2, 4")
    a("s_add_u32 s33, s33, s3")
    a("s_cmp_ge_u32 s33, 37")
    a("s_cbranch_scc1 K1_end")
    a("v_and_b32 v4, 31, v2")
    a("v_lshrrev_b32 v5, 5, v2")
    a("v_lshlrev_b32 v6, 11, v5")
    a("v_lshl_add_u32 v6, v4, 1, v6")
    a("v_lshlrev_b32 v3, 4, v2")
    a("s_waitcnt lgkmcnt(0)")
    srd(a, 28, 18, 19, IMG_BYTES, add=WS_IMG)
    srd(a, 20, 12, 13, 273 * 256)
    a("s_cmp_ge_u32 s33, 36")
    a("s_cbranch_scc1 K1_wd")
    a("s_cmp_ge_u32 s33, 32")
    a("s_cbranch_scc1 K1_w4")
    srd(a, 24, 16, 17, 256 * 256)
    a("s_lshr_b32 s34, s33, 3")
    a("s_and_b32 s35, s33, 7")
    a("s_lshl_b32 s35, s35, 12")
    a("s_lshl_b32 s34, s34, 6")
    a("s_add_u32 s34, s34, s35")
    a(f"s_add_u32 s34, s34, {128*256}")
    a("s_lshl_b32 s36, s33, 10")
    for j in range(8):
        a(f"buffer_load_ushort v{16+j}, v6, s[24:27], s34 offen offset:{j*256}")
    a("s_waitcnt vmcnt(0)")
    for p in range(4):
        a(f"v_lshl_or_b32 v{24+p}, v{17+2*p}, 16, v{16+2*p}")
    a("buffer_store_dwordx4 v[24:27], v3, s[28:31], s36 offen")
    a("s_endpgm")
    a.label("K1_w4")
    a.clear_hist()
    a("s_sub_u32 s33, s33, 32")
    a("s_lshl_b32 s34, s33, 6")
    a(f"s_add_u32 s34, s34, {257*256}")
    a("s_lshl_b32 s36, s33, 10")
    a(f"s_add_u32 s36, s36, {IMG_W4}")
    for j in range(8):
        a(f"buffer_load_ushort v{16+j}, v6, s[20:23], s34 offen offset:{j*256}")
    a(f"s_mov_b32 s40, {f2u(LOG2E):#x}")
    a("s_waitcnt vmcnt(0)")
    for j in range(8):
        a(f"v_lshlrev_b32 v{16+j}, 16, v{16+j}")
        a(f"v_mul_f32 v{16+j}, s40, v{16+j}")
    for p in range(4):
        a(f"v_cvt_pk_bf16_f32 v{24+p}, v{16+2*p}, v{17+2*p}")
    a("buffer_store_dwordx4 v[24:27], v3, s[28:31], s36 offen")
    a("s_endpgm")
    a.label("K1_wd")
    a.clear_hist()
    srd(a, 24, 14, 15, 256)
    a("v_lshlrev_b32 v7, 1, v2")
    a(f"s_mov_b32 s34, {256*256}")
    a("buffer_load_ushort v16, v7, s[20:23], s34 offen")
    a("buffer_load_ushort v17, v7, s[20:23], s34 offen offset:128")
    a("buffer_load_ushort v18, v7, s[24:27], 0 offen")
    a("buffer_load_ushort v19, v7, s[24:27], 0 offen offset:128")
    a(f"s_mov_b32 s40, {f2u(LOG2E):#x}")
    a(f"s_mov_b32 s41, {f2u(LN2):#x}")
    a("v_lshlrev_b32 v8, 2, v2")
    a("s_waitcnt vmcnt(0)")
    for k in range(2):
        a(f"v_lshlrev_b32 v{16+k}, 16, v{16+k}")
        a(f"v_mul_f32 v{16+k}, s40, v{16+k}")
        a(f"v_cvt_pk_bf16_f32 v{20+k}, v{16+k}, v{16+k}")
        a(f"v_and_b32 v{22+k}, 0xffff0000, v{20+k}")
        a(f"v_sub_f32 v{22+k}, v{16+k}, v{22+k}")
        a(f"v_cvt_pk_bf16_f32 v{20+k}, v{16+k}, v{22+k}")
        a(f"v_lshlrev_b32 v{18+k}, 16, v{18+k}")
        a(f"v_mul_f32 v{18+k}, s41, v{18+k}")
    a(f"s_mov_b32 s34, {IMG_WDP}")
    a(f"s_mov_b32 s35, {IMG_WXF}")
    a("buffer_store_dword v20, v8, s[28:31], s34 offen")
    a("buffer_store_dword v21, v8, s[28:31], s34 offen offset:256")
    a("buffer_store_dword v18, v8, s[28:31], s35 offen")
    a("buffer_store_dword v19, v8, s[28:31], s35 offen offset:256")
    a.label("K1_end")
    a("s_endpgm")

K1_KD = f"""
.amdhsa_kernel egnn_prep_kernel
  .amdhsa_next_free_vgpr 104
  .amdhsa_next_free_sgpr 48
  .amdhsa_accum_offset 104
  .amdhsa_group_segment_fixed_size 0
  .amdhsa_kernarg_size 88
  .amdhsa_user_sgpr_count 2
  .amdhsa_user_sgpr_kernarg_segment_ptr 1
  .amdhsa_system_sgpr_workgroup_id_x 1
.end_amdhsa_kernel
"""
```

```python
from asmlib import *
from consts import *
from gen_k1 import srd

MAXT = 29
TS = 3584
O_D2 = 2048; O_EA = 2560
L_CNT = 0
L_OWN = 32
L_WX = 128
L_T0 = 768
L_QS = L_T0 + MAXT * TS
L_MB = L_QS + 32768
MBROW = 272
L_POSP = L_MB + 64 * MBROW
K2_LDS = L_POSP + 8192
assert K2_LDS <= 163840, K2_LDS
assert L_POSP % 32 == 0
L_MACC = L_MB; MROW = 528; L_POSACC = L_MACC + 40 * MROW
assert L_POSACC + 640 <= K2_LDS
PROW = 528
OOB = 0x7FFFFF00
SLOW_BLK = 640
SLOW_NBLK = E // SLOW_BLK

S_WS, S_POS, S_EA, S_OUT, S_H, S_SRC, S_DST = 8, 12, 16, 20, 24, 28, 32
sW, sS, sQ, sT = 36, 37, 38, 39
sONE = 40
sSLOW, sQB, sWSQ, sT240 = 42, 43, 44, 45
sTG = 46
sNT = sTG + 5
sHM = 52
sA, sB, sJ, sEND, sFIRST, sHALF = 54, 55, 56, 57, 58, 59
sLN2, sLOG2E = 60, 61
sV0, sV1 = 80, 82
vQ0, vQ1, vCQ, vSEL, vEA, vST, vLS = 1, 2, 3, 4, 5, 6, 7
vPB = 8; vW4 = 28; vID = 32; vACC = 40; vD1 = 56
vA = 72; vT = 88; vM = 104; vSB = 112
vSN, vFM, vFP = 120, 122, 123
vX, vY, vZ = 124, 125, 126
vPR = 127
vWD = 119
vWXl = 118
vTAB = 40

PROF = False
DBG = set()
def stamp(a, k):
    if not PROF: return
    a("s_memtime s[74:75]")
    a("s_waitcnt lgkmcnt(0)")
    a(f"v_writelane_b32 v{vPR}, s74, {k}")

def B(r): return f"s[{r}:{r+3}]"

def masked(a, cmp, label, body, sv=76):
    a(cmp)
    a(f"s_and_saveexec_b64 s[{sv}:{sv+1}], vcc")
    a(f"s_cbranch_execz {label}")
    body()
    a.label(label)
    a(f"s_mov_b64 exec, s[{sv}:{sv+1}]")

class RS:
    def __init__(self, base):
        self.rec = base; self.g = base + 1; self.dl = base + 2; self.so = base + 3
        self.rk = base + 4; self.tb = base + 5; self.e = base + 6; self.x = base + 7
        self.ps = base + 8; self.pd = base + 10; self.ea = base + 12; self.eid = base + 20
RS0, RS1 = RS(56), RS(80)
vCB, vONE1, vK1, vT32 = 102, 103, 104, 105
vZR = 108

def phase1(a, r):
    a(f"v_and_b32 v{r.so}, 0x3fff, v{r.rec}")
    a(f"v_bfe_u32 v{r.dl}, v{r.rec}, 14, 6")
    a(f"v_mul_u32_u24 v{r.x}, 6, v{r.so}")
    a(f"v_lshlrev_b32 v{r.e}, 5, v{r.eid}")
    a(f"buffer_load_dwordx4 v[{r.ea}:{r.ea+3}], v{r.e}, {B(S_EA)}, 0 offen")
    a(f"buffer_load_dwordx4 v[{r.ea+4}:{r.ea+7}], v{r.e}, {B(S_EA)}, 0 offen offset:16")
    a(f"v_mul_u32_u24 v{r.tb}, 6, v{r.dl}")
    a(f"buffer_load_dword v{r.ps}, v{r.x}, {B(S_POS)}, 0 offen")
    a(f"buffer_load_ushort v{r.ps+1}, v{r.x}, {B(S_POS)}, 0 offen offset:4")
    a(f"buffer_load_dword v{r.pd}, v{r.tb}, {B(S_POS)}, s{sT240} offen")
    a(f"buffer_load_ushort v{r.pd+1}, v{r.tb}, {B(S_POS)}, s{sT240} offen offset:4")
    a(f"v_lshrrev_b32 v{r.g}, 1, v{r.dl}")
    a(f"v_and_b32 v{r.g}, 28, v{r.g}")
    a(f"ds_add_rtn_u32 v{r.rk}, v{r.g}, v{vONE1} offset:{L_CNT}")
    a(f"v_lshlrev_b32 v{r.so}, 8, v{r.so}")
    a(f"v_add_u32 v{r.so}, 256, v{r.so}")

def phase1b(a, r):
    a(f"v_add_u32 v{r.rk}, v{r.rk}, v{r.x}")
    a(f"v_lshrrev_b32 v{r.tb}, 5, v{r.rk}")
    a(f"v_mul_u32_u24 v{r.tb}, {TS}, v{r.tb}")
    a(f"v_and_b32 v{r.e}, 31, v{r.rk}")
    a(f"v_lshl_add_u32 v{r.x}, v{r.e}, 4, v{r.tb}")
    a(f"ds_write_b32 v{r.x}, v{r.so} offset:{L_T0+O_D2+4}")

def phase2(a, r):
    t0, t1, t2 = vX, vY, vZ
    a(f"v_lshl_add_u32 v{r.so}, v{r.e}, 5, v{r.tb}")
    a(f"ds_write_b128 v{r.so}, v[{r.ea}:{r.ea+3}] offset:{L_T0+O_EA}")
    a(f"ds_write_b128 v{r.so}, v[{r.ea+4}:{r.ea+7}] offset:{L_T0+O_EA+16}")
    a(f"v_lshlrev_b32 v{t0}, 16, v{r.ps}")
    a(f"v_lshlrev_b32 v{t1}, 16, v{r.pd}")
    a(f"v_sub_f32 v{t0}, v{t1}, v{t0}")
    a(f"v_and_b32 v{r.ps}, 0xffff0000, v{r.ps}")
    a(f"v_and_b32 v{r.pd}, 0xffff0000, v{r.pd}")
    a(f"v_sub_f32 v{t1}, v{r.pd}, v{r.ps}")
    a(f"v_lshlrev_b32 v{r.ps+1}, 16, v{r.ps+1}")
    a(f"v_lshlrev_b32 v{r.pd+1}, 16, v{r.pd+1}")
    a(f"v_sub_f32 v{t2}, v{r.pd+1}, v{r.ps+1}")
    a(f"v_cvt_pk_bf16_f32 v{r.ps}, v{t0}, v{t1}")
    a(f"v_cvt_pk_bf16_f32 v{r.ps+1}, v{t2}, v{t2}")
    a(f"v_and_b32 v{t2}, 7, v{r.dl}")
    a(f"v_lshl_add_u32 v{r.rk}, v{r.e}, 6, v{r.tb}")
    a(f"v_lshl_add_u32 v{r.rk}, v{t2}, 1, v{r.rk}")
    a(f"ds_write_b16 v{r.rk}, v{vK1} offset:{L_T0}")
    a(f"ds_write_b16 v{r.rk}, v{r.ps} offset:{L_T0+16}")
    a(f"ds_write_b16_d16_hi v{r.rk}, v{r.ps} offset:{L_T0+32}")
    a(f"ds_write_b16 v{r.rk}, v{r.ps+1} offset:{L_T0+48}")
    a(f"v_lshlrev_b32 v{t0}, 16, v{r.ps}")
    a(f"v_and_b32 v{t1}, 0xffff0000, v{r.ps}")
    a(f"v_and_b32 v{t2}, 0xffff0000, v{r.ps+1}")
    a(f"v_mul_f32 v{t0}, v{t0}, v{t0}")
    a(f"v_mul_f32 v{t1}, v{t1}, v{t1}")
    a(f"v_mul_f32 v{t2}, v{t2}, v{t2}")
    a(f"v_cvt_pk_bf16_f32 v{t0}, v{t0}, v{t1}")
    a(f"v_cvt_pk_bf16_f32 v{t2}, v{t2}, v{t2}")
    a(f"v_and_b32 v{t1}, 0xffff0000, v{t0}")
    a(f"v_lshlrev_b32 v{t0}, 16, v{t0}")
    a(f"v_and_b32 v{t2}, 0xffff0000, v{t2}")
    a(f"v_add_f32 v{t0}, v{t0}, v{t1}")
    a(f"v_add_f32 v{t0}, v{t0}, v{t2}")
    a(f"v_cvt_pk_bf16_f32 v{t0}, v{t0}, v{t0}")
    a(f"ds_write_b32 v{r.x}, v{t0} offset:{L_T0+O_D2}")

def table_data():
    out = []
    for s in range(4):
        rows = []
        for l in range(64):
            e = l & 31; hh = l >> 5
            d = []
            for aa in range(2):
                idx = e - 16 * aa - 8 * hh
                for dd in range(4):
                    v = 0
                    if 0 <= idx < 8 and (idx >> 1) == dd: v = 0x3f80 << (16 * (idx & 1))
                    d.append(v)
            f = (e >> 2) & 3
            d.append(e * 64 + ((hh ^ f) * 16))
            d.append(s * 64 + (((l & 3) ^ ((l >> 4) & 3)) * 16))
            d.append(L_T0 + (O_D2 + e * 16 if hh else e * 64))
            d.append(L_T0 + O_EA + e * 32 + hh * 16)
            r = (l >> 2) & 3; cb = (l >> 4) & 1; cc = l & 3
            c = 2 * cb + (cc >> 1); half = cc & 1
            d.append(L_T0 + (4 * hh + r) * 64 + c * 16 + half * 8)
            d.append(L_T0 + O_D2 + (l >> 2) * 16 + 4)
            d.append(L_MB + (e & 7) * MBROW + hh * 8 + s * 64)
            d.append(L_POSP + e * 32 + hh * 16 + s * 4)
            rows.append(d)
        for ch in range(4):
            for l in range(64):
                out += rows[l][4 * ch: 4 * ch + 4]
    return out

def gen_k2(a):
    a(f"s_cmp_ge_u32 s2, {T}")
    a("s_cbranch_scc1 K2_end")
    stamp(a, 0)
    if "rt" in DBG: rt_begin(a, 84)
    a("s_load_dwordx2 s[4:5], s[0:1], 80")
    a("s_load_dwordx4 s[64:67], s[0:1], 0")
    a("s_load_dwordx2 s[68:69], s[0:1], 16")
    a("s_load_dwordx2 s[70:71], s[0:1], 64")
    a("s_getpc_b64 s[62:63]")
    a.label("K2_pc")
    a(f"s_mov_b32 s{sT}, s2")
    a(f"v_lshrrev_b32 v{vX}, 4, v0")
    a(f"v_lshlrev_b32 v{vY}, 6, v{vX}")
    a(f"v_lshl_add_u32 v{vY}, v0, 2, v{vY}")
    a(f"v_mul_u32_u24 v{vCB}, {CH}, v{vX}")
    a(f"v_lshrrev_b32 v{vX}, 6, v0")
    a(f"v_readfirstlane_b32 s{sW}, v{vX}")
    a(f"v_and_b32 v{vZ}, 63, v0")
    a(f"s_lshl_b32 s3, s{sT}, 13")
    a(f"s_add_u32 s62, s62, K2_table-K2_pc")
    a(f"s_addc_u32 s63, s63, 0")
    a(f"s_and_b32 s{sS}, s{sW}, 3")
    a(f"s_lshr_b32 s{sQ}, s{sW}, 2")
    a(f"v_lshlrev_b32 v{vX}, 4, v{vZ}")
    a(f"s_lshl_b32 s72, s{sS}, 12")
    a(f"v_add_u32 v{vSN}, s72, v{vX}")
    a("s_waitcnt lgkmcnt(0)")
    stamp(a, 1)
    srd(a, S_WS, 4, 5, WS_END)
    a(f"buffer_load_dword v{RS0.rec}, v{vY}, {B(S_WS)}, s3 offen")
    a(f"buffer_load_dword v{RS1.rec}, v{vY}, {B(S_WS)}, s3 offen offset:64")
    a(f"global_load_dwordx4 v[{vID}:{vID+3}], v{vSN}, s[62:63]")
    a(f"global_load_dwordx4 v[{vID+4}:{vID+7}], v{vSN}, s[62:63] offset:1024")
    a(f"global_load_dwordx4 v[{vTAB}:{vTAB+3}], v{vSN}, s[62:63] offset:2048")
    a(f"global_load_dwordx4 v[{vTAB+4}:{vTAB+7}], v{vSN}, s[62:63] offset:3072")
    srd(a, S_POS, 66, 67, N * 6)
    srd(a, S_EA, 68, 69, E * 32)
    a(f"s_lshl_b32 s3, s{sS}, 10")
    a(f"s_add_u32 s3, s3, {WS_IMG + IMG_W4}")
    a(f"buffer_load_dwordx4 v[{vW4}:{vW4+3}], v{vX}, {B(S_WS)}, s3 offen")
    a(f"v_mov_b32 v{vY}, {OOB:#x}")
    a(f"v_cmp_gt_u32 vcc, 32, v{vZ}")
    a(f"v_cndmask_b32 v{vY}, v{vY}, v{vX}, vcc")
    a(f"s_mul_i32 s3, s{sT}, {5*2048}")
    a(f"s_lshl_b32 s72, s{sS}, 9")
    a(f"s_add_u32 s3, s3, s72")
    a(f"s_add_u32 s3, s3, {WS_P}")
    for g in range(5):
        if g == 2: a("s_add_u32 s3, s3, 4096")
        if g == 4: a("s_add_u32 s3, s3, 4096")
        a(f"buffer_load_dwordx4 v[{vPB+4*g}:{vPB+4*g+3}], v{vY}, {B(S_WS)}, s3 offen offset:{(g%2)*2048}")
    a(f"v_and_b32 v{vY}, 31, v{vZ}")
    a(f"v_lshlrev_b32 v{vY}, 2, v{vY}")
    a(f"s_lshl_b32 s3, s{sS}, 7")
    a(f"s_add_u32 s3, s3, {WS_IMG + IMG_WDP}")
    a(f"buffer_load_dword v{vWD}, v{vY}, {B(S_WS)}, s3 offen")
    a(f"v_lshlrev_b32 v{vY}, 2, v0")
    a(f"s_mov_b32 s3, {WS_IMG + IMG_WXF}")
    a(f"buffer_load_dword v{vWXl}, v{vY}, {B(S_WS)}, s3 offen")
    srd(a, S_OUT, 70, 71, N * 262)
    srd(a, S_H, 64, 65, N * 256)
    a(f"s_mov_b32 s{sONE}, 1.0")
    a(f"s_mov_b32 s{sONE+1}, 1.0")
    a(f"s_mov_b32 s{sSLOW}, 0")
    a(f"s_mov_b32 s{sWSQ}, {WS_Q}")
    a(f"s_mul_i32 s{sT240}, s{sT}, 240")
    a(f"s_lshl_b32 s{sQB}, s{sW}, 11")
    a(f"s_add_u32 s{sQB}, s{sQB}, {L_QS}")
    a(f"s_mov_b32 s{sLN2}, {f2u(LN2):#x}")
    a(f"s_mov_b32 s{sLOG2E}, {f2u(LOG2E):#x}")
    a.label("K2_batch")
    a.clear_hist()
    a(f"v_lshlrev_b32 v{vZ}, 4, v0")
    for r in range(4): a(f"v_mov_b32 v{vZR+r}, 0")
    ZR = f"v[{vZR}:{vZR+3}]"
    nfull = (MAXT * TS) // 16384
    for i in range(3): a(f"ds_write_b128 v{vZ}, {ZR} offset:{L_T0+i*16384}")
    a(f"v_add_u32 v{vX}, 49152, v{vZ}")
    for i in range(3, nfull): a(f"ds_write_b128 v{vX}, {ZR} offset:{L_T0+i*16384-49152}")
    rem = MAXT * TS - nfull * 16384
    masked(a, f"v_cmp_gt_u32 vcc, {rem//16}, v0", "K2_zf", lambda: a(f"ds_write_b128 v{vX}, {ZR} offset:{L_T0+nfull*16384-49152}"))
    masked(a, "v_cmp_gt_u32 vcc, 6, v0", "K2_cz", lambda: a(f"ds_write_b128 v{vZ}, {ZR}"))
    a(f"v_mov_b32 v{vONE1}, 1")
    a(f"v_mov_b32 v{vK1}, 0x3f80")
    a(f"s_cmp_lg_u32 s{sSLOW}, 0")
    a("s_cbranch_scc1 K2_slowload")
    a("s_waitcnt lgkmcnt(0)")
    a("s_barrier")
    stamp(a, 2)
    a("s_waitcnt vmcnt(12)")
    stamp(a, 3)
    for r in (RS0, RS1):
        a(f"v_lshrrev_b32 v{r.eid}, 20, v{r.rec}")
        a(f"v_add_u32 v{r.eid}, v{r.eid}, v{vCB}")
    a.label("K2_sort")
    a.clear_hist()
    a(f"v_cmp_gt_u32 s[{sV0}:{sV0+1}], -2, v{RS0.rec}")
    a(f"v_cmp_gt_u32 s[{sV1}:{sV1+1}], -2, v{RS1.rec}")
    a(f"v_cmp_eq_u32 vcc, -2, v{RS1.rec}")
    a("s_cbranch_vccz K2_nomark")
    a(f"v_mov_b32 v{vX}, 0")
    a(f"v_mov_b32 v{vY}, 0x10000")
    a("s_mov_b64 exec, vcc")
    a(f"ds_add_u32 v{vX}, v{vY} offset:{L_CNT}")
    a("s_mov_b64 exec, -1")
    a.label("K2_nomark")
    a(f"s_mov_b64 exec, s[{sV0}:{sV0+1}]")
    a("s_cbranch_execz K2_p1a")
    phase1(a, RS0)
    a.label("K2_p1a")
    a(f"s_mov_b64 exec, s[{sV1}:{sV1+1}]")
    a("s_cbranch_execz K2_p1b")
    phase1(a, RS1)
    a.label("K2_p1b")
    a("s_mov_b64 exec, -1")
    a("s_waitcnt lgkmcnt(0)")
    a("s_barrier")
    stamp(a, 4)
    a(f"v_and_b32 v{vX}, 7, v0")
    a(f"v_lshlrev_b32 v{vX}, 2, v{vX}")
    a(f"ds_read_b32 v{vY}, v{vX} offset:{L_CNT}")
    a("s_waitcnt lgkmcnt(0)")
    a(f"v_add_u32 v{vT32}, 31, v{vY}")
    a(f"v_lshrrev_b32 v{vT32}, 5, v{vT32}")
    a(f"v_add_u32 v{vZ}, -1, v{vY}")
    a(f"v_and_b32 v{vZ}, 31, v{vZ}")
    a(f"v_cmp_gt_u32 s[{sHM}:{sHM+1}], 16, v{vZ}")
    a(f"v_mov_b32 v{vY}, v{vT32}")
    for sh in (1, 2, 4):
        a(f"v_add_u32_dpp v{vT32}, v{vT32}, v{vT32} row_shr:{sh} row_mask:0xf bank_mask:0xf bound_ctrl:0")
    for g in range(5):
        a(f"v_readlane_b32 s{sTG+g+1}, v{vT32}, {g}")
    a(f"s_mov_b32 s{sTG}, 0")
    a(f"v_sub_u32 v{vT32}, v{vT32}, v{vY}")
    a(f"v_lshlrev_b32 v{vT32}, 5, v{vT32}")
    a(f"s_cmp_lg_u32 s{sSLOW}, 0")
    a("s_cbranch_scc1 K2_go")
    a(f"s_cmp_gt_u32 s{sNT}, {MAXT}")
    a("s_cbranch_scc1 K2_toslow")
    a.label("K2_go")
    a(f"ds_bpermute_b32 v{RS0.x}, v{RS0.g}, v{vT32}")
    a(f"ds_bpermute_b32 v{RS1.x}, v{RS1.g}, v{vT32}")
    a("s_waitcnt lgkmcnt(0)")
    a(f"s_mov_b64 exec, s[{sV0}:{sV0+1}]")
    a("s_cbranch_execz K2_p1c")
    phase1b(a, RS0)
    a.label("K2_p1c")
    a(f"s_mov_b64 exec, s[{sV1}:{sV1+1}]")
    a("s_cbranch_execz K2_p1d")
    phase1b(a, RS1)
    a.label("K2_p1d")
    a("s_mov_b64 exec, -1")
    a(f"s_mul_i32 s{sA}, s{sQ}, s{sNT}")
    a(f"s_add_u32 s{sB}, s{sA}, s{sNT}")
    a(f"s_lshr_b32 s{sA}, s{sA}, 2")
    a(f"s_lshr_b32 s{sB}, s{sB}, 2")
    a(f"s_mul_i32 s3, s{sA}, {TS}")
    a(f"s_cmp_lg_u32 s{sSLOW}, 0")
    a("s_cbranch_scc1 K2_slowaddr")
    a("s_waitcnt vmcnt(6)")
    a.label("K2_addr")
    a(f"v_add_u32 v{vQ0}, s{sQB}, v{vTAB}")
    a(f"v_xor_b32 v{vQ1}, 32, v{vQ0}")
    a(f"v_mov_b32 v{vCQ}, v{vTAB+1}")
    a(f"v_add_u32 v{vSEL}, s3, v{vTAB+2}")
    a(f"v_add_u32 v{vEA}, s3, v{vTAB+3}")
    a(f"v_add_u32 v{vST}, s3, v{vTAB+4}")
    a(f"v_add_u32 v{vLS}, s3, v{vTAB+5}")
    a(f"s_mul_i32 s72, s{sQ}, {8*MBROW}")
    a(f"v_add_u32 v{vFM}, s72, v{vTAB+6}")
    a(f"s_lshl_b32 s72, s{sQ}, 10")
    a(f"v_add_u32 v{vFP}, s72, v{vTAB+7}")
    a("s_waitcnt lgkmcnt(0)")
    a("s_barrier")
    stamp(a, 5)
    a(f"s_cmp_ge_u32 s{sA}, s{sB}")
    a("s_cbranch_scc1 K2_noq0")
    a(f"ds_read2_b32 v[{vSN}:{vSN+1}], v{vLS} offset0:0 offset1:64")
    a("s_waitcnt lgkmcnt(0)")
    a(f"v_add_u32 v{vSN}, v{vSN}, v{vCQ}")
    a(f"v_add_u32 v{vSN+1}, v{vSN+1}, v{vCQ}")
    a(f"s_mov_b32 m0, s{sQB}")
    a(f"buffer_load_dwordx4 v{vSN}, {B(S_WS)}, s{sWSQ} offen lds")
    a(f"s_add_u32 m0, s{sQB}, 1024")
    a(f"buffer_load_dwordx4 v{vSN+1}, {B(S_WS)}, s{sWSQ} offen lds")
    a("s_waitcnt vmcnt(2)")
    a("s_branch K2_q0done")
    a.label("K2_noq0")
    a("s_waitcnt vmcnt(0)")
    a.label("K2_q0done")
    a.clear_hist()
    stamp(a, 6)
    a(f"v_add_u32 v{vLS}, {TS}, v{vLS}")
    a(f"s_mov_b64 exec, s[{sV0}:{sV0+1}]")
    a("s_cbranch_execz K2_p2a")
    phase2(a, RS0)
    a.label("K2_p2a")
    a(f"s_mov_b64 exec, s[{sV1}:{sV1+1}]")
    a("s_cbranch_execz K2_p2b")
    phase2(a, RS1)
    a.label("K2_p2b")
    a("s_mov_b64 exec, -1")
    a(f"s_cmp_gt_u32 s{sSLOW}, 1")
    a("s_cbranch_scc1 K2_nofirst")
    a("s_mov_b64 exec, 0")
    a("s_mov_b32 exec_hi, -1")
    for g in range(5): a(f"v_mov_b32 v{vPB+4*g}, v{vWD}")
    a("s_mov_b64 exec, -1")
    def wxw():
        a(f"v_lshlrev_b32 v{vX}, 2, v0")
        a(f"v_add_u32 v{vX}, {L_WX}, v{vX}")
        a(f"ds_write_b32 v{vX}, v{vWXl}")
    masked(a, "v_cmp_gt_u32 vcc, 128, v0", "K2_wx", wxw)
    a.label("K2_nofirst")
    a(f"s_mov_b32 s{sJ}, s{sA}")
    a("s_waitcnt lgkmcnt(0)")
    a("s_barrier")
    stamp(a, 7)
    for g in range(5):
        main_group(a, g)
    a.label("K2_mainend")
    a.clear_hist()
    stamp(a, 8)
    a(f"s_cmp_eq_u32 s{sSLOW}, 0")
    a("s_cbranch_scc1 K2_epi")
    a(f"s_add_u32 s{sSLOW}, s{sSLOW}, 1")
    a(f"s_cmp_gt_u32 s{sSLOW}, {SLOW_NBLK}")
    a("s_cbranch_scc1 K2_slowend")
    a("s_waitcnt vmcnt(0) lgkmcnt(0)")
    a("s_barrier")
    a("s_branch K2_batch")
    a.label("K2_epi")
    a.clear_hist()
    epilogue(a)
    a.label("K2_end")
    a("s_endpgm")
    slow_code(a)
    a.raw(".p2align 8")
    a.label("K2_table")
    td = table_data()
    for i in range(0, len(td), 8):
        a.raw("    .long " + ", ".join(f"{v:#x}" for v in td[i:i+8]))

def silu_half(a, h):
    r0 = 8 * h
    if "nosilu" in DBG: return
    for i in range(r0, r0 + 8): a(f"v_exp_f32 v{vT+i}, -v{vD1+i}")
    for i in range(r0, r0 + 8, 2): a(f"v_pk_add_f32 v[{vT+i}:{vT+i+1}], v[{vT+i}:{vT+i+1}], s[{sONE}:{sONE+1}]")
    for i in range(r0, r0 + 8): a(f"v_rcp_f32 v{vT+i}, v{vT+i}")
    for i in range(r0, r0 + 8, 2): a(f"v_pk_mul_f32 v[{vT+i}:{vT+i+1}], v[{vT+i}:{vT+i+1}], v[{vD1+i}:{vD1+i+1}]")
    for i in range(r0, r0 + 8, 2): a(f"v_cvt_pk_bf16_f32 v{vM+i//2}, v{vT+i}, v{vT+i+1}")

def main_group(a, g):
    L = f"K2_g{g}"
    pb = vPB + 4 * g
    D1 = f"v[{vD1}:{vD1+15}]"; ACC = f"v[{vACC}:{vACC+15}]"
    a.label(L)
    a.clear_hist()
    a(f"s_min_u32 s{sEND}, s{sB}, s{sTG+g+1}")
    a(f"s_cmp_ge_u32 s{sJ}, s{sEND}")
    a(f"s_cbranch_scc1 {L}_done")
    a(f"s_sub_u32 s{sHALF}, s{sTG+g+1}, 1")
    a(f"s_bitcmp1_b32 s{sHM}, {g}")
    a(f"s_cselect_b32 s{sHALF}, s{sHALF}, -1")
    a(f"s_mov_b32 s{sFIRST}, 1")
    a.label(f"{L}_loop")
    a.clear_hist()
    a(f"ds_read2_b32 v[{vSN}:{vSN+1}], v{vLS} offset0:0 offset1:64")
    a(f"ds_read_b128 v[{vA+8}:{vA+11}], v{vEA}")
    a(f"ds_read_b128 v[{vA+12}:{vA+15}], v{vSEL}")
    a("s_waitcnt vmcnt(0)")
    a(f"ds_read_b128 v[{vA}:{vA+3}], v{vQ0}")
    a(f"ds_read_b128 v[{vA+4}:{vA+7}], v{vQ1}")
    a("s_waitcnt lgkmcnt(2)")
    a(f"v_mfma_f32_32x32x16_bf16 {D1}, v[{vA+8}:{vA+11}], v[{vW4}:{vW4+3}], 0")
    a(f"v_mfma_f32_32x32x16_bf16 {D1}, v[{vA+12}:{vA+15}], v[{pb}:{pb+3}], {D1}")
    if "notr" not in DBG:
        for i in range(4):
            a(f"ds_read_b64_tr_b16 v[{vSB+2*i}:{vSB+2*i+1}], v{vST} offset:{512*i}")
        a("s_waitcnt lgkmcnt(4)")
    else:
        a("s_waitcnt lgkmcnt(0)")
    a(f"v_mfma_f32_32x32x16_bf16 {D1}, v[{vA}:{vA+3}], v[{vID}:{vID+3}], {D1}")
    a(f"v_mfma_f32_32x32x16_bf16 {D1}, v[{vA+4}:{vA+7}], v[{vID+4}:{vID+7}], {D1}")
    a(f"s_add_u32 s72, s{sJ}, 1")
    a(f"s_cmp_ge_u32 s72, s{sB}")
    if "nodma" in DBG: a(f"s_branch {L}_nodma")
    a(f"s_cbranch_scc1 {L}_nodma")
    a(f"v_add_u32 v{vSN}, v{vSN}, v{vCQ}")
    a(f"v_add_u32 v{vSN+1}, v{vSN+1}, v{vCQ}")
    a(f"s_mov_b32 m0, s{sQB}")
    a(f"buffer_load_dwordx4 v{vSN}, {B(S_WS)}, s{sWSQ} offen lds")
    a(f"s_add_u32 m0, s{sQB}, 1024")
    a(f"buffer_load_dwordx4 v{vSN+1}, {B(S_WS)}, s{sWSQ} offen lds")
    a.label(f"{L}_nodma")
    for r in (vLS, vEA, vSEL, vST):
        a(f"v_add_u32 v{r}, {TS}, v{r}")
    a("s_nop 7")
    a("s_nop 1")
    silu_half(a, 0)
    a("s_waitcnt lgkmcnt(0)")
    a(f"s_cmp_eq_u32 s{sFIRST}, 0")
    a(f"s_cbranch_scc1 {L}_acc")
    a(f"v_mfma_f32_32x32x16_bf16 {ACC}, v[{vM}:{vM+3}], v[{vSB}:{vSB+3}], 0")
    a(f"s_mov_b32 s{sFIRST}, 0")
    a(f"s_branch {L}_acc2")
    a.label(f"{L}_acc")
    a(f"v_mfma_f32_32x32x16_bf16 {ACC}, v[{vM}:{vM+3}], v[{vSB}:{vSB+3}], {ACC}")
    a.label(f"{L}_acc2")
    a(f"s_cmp_eq_u32 s{sJ}, s{sHALF}")
    a(f"s_cbranch_scc1 {L}_skip2")
    silu_half(a, 1)
    a(f"v_mfma_f32_32x32x16_bf16 {ACC}, v[{vM+4}:{vM+7}], v[{vSB+4}:{vSB+7}], {ACC}")
    a.label(f"{L}_skip2")
    a(f"s_add_u32 s{sJ}, s{sJ}, 1")
    a(f"s_cmp_lt_u32 s{sJ}, s{sEND}")
    a(f"s_cbranch_scc1 {L}_loop")
    a.clear_hist()
    if "noflush" in DBG: a(f"s_branch {L}_done")
    a(f"v_and_b32 v{vX}, 16, v{vFP}")
    a(f"s_lshl_b32 s72, s{sS}, 7")
    a(f"s_add_u32 s72, s72, {L_WX}")
    a(f"v_add_u32 v{vX}, s72, v{vX}")
    for q4 in range(4):
        a(f"ds_read_b128 v[{vT+4*q4}:{vT+4*q4+3}], v{vX} offset:{q4*32}")
    a(f"s_cmp_lg_u32 s{sSLOW}, 0")
    a(f"s_cbranch_scc1 {L}_sflush")
    a("s_nop 7")
    for p in range(8):
        a(f"v_cvt_pk_bf16_f32 v{vM+p}, v{vACC+2*p}, v{vACC+2*p+1}")
    a("s_mov_b32 exec_lo, 0xff")
    a("s_mov_b32 exec_hi, 0xff")
    for gm in range(4):
        a(f"ds_write_b64 v{vFM}, v[{vM+2*gm}:{vM+2*gm+1}] offset:{g*8*MBROW + gm*16}")
    a("s_mov_b64 exec, -1")
    a("s_waitcnt lgkmcnt(4)")
    a(f"v_pk_mul_f32 v[{vSB}:{vSB+1}], v[{vACC}:{vACC+1}], v[{vT}:{vT+1}]")
    for i in range(2, 16, 2):
        a(f"v_pk_fma_f32 v[{vSB}:{vSB+1}], v[{vACC+i}:{vACC+i+1}], v[{vT+i}:{vT+i+1}], v[{vSB}:{vSB+1}]")
    a(f"v_add_f32 v{vSB}, v{vSB}, v{vSB+1}")
    a(f"ds_write_b32 v{vFP}, v{vSB} offset:{g*1024}")
    a(f"s_cmp_lg_u32 s{sS}, 0")
    a(f"s_cbranch_scc1 {L}_done")
    a(f"s_lshl_b32 s72, s{sQ}, 2")
    a(f"v_mov_b32 v{vX}, s72")
    a(f"v_mov_b32 v{vY}, {g+1}")
    a("s_mov_b64 exec, 1")
    a(f"ds_write_b32 v{vX}, v{vY} offset:{L_OWN + 4*g}")
    a("s_mov_b64 exec, -1")
    a.label(f"{L}_done")

def epilogue(a):
    D0 = f"v[{vACC}:{vACC+15}]"
    vB = 56
    vAf = 88
    a(f"v_and_b32 v4, 63, v0")
    a(f"s_mul_i32 s73, s{sT}, {40*256}")
    a(f"s_cmp_ge_u32 s{sQ}, 2")
    a("s_cbranch_scc1 K2_e0")
    a(f"v_lshlrev_b32 v5, 4, v4")
    a(f"s_lshl_b32 s3, s{sS}, 13")
    a(f"s_add_u32 s3, s3, {WS_IMG + IMG_WH}")
    a(f"s_add_u32 s72, s3, 4096")
    for ks in range(8):
        so = "s3" if ks < 4 else "s72"
        a(f"buffer_load_dwordx4 v[{vB+4*ks}:{vB+4*ks+3}], v5, {B(S_WS)}, {so} offen offset:{(ks%4)*1024}")
    a.label("K2_e0")
    a(f"v_lshlrev_b32 v2, 4, v0")
    a(f"v_mov_b32 v3, {OOB:#x}")
    a("v_cmp_gt_u32 vcc, 640, v0")
    a("v_cndmask_b32 v2, v3, v2, vcc")
    a(f"buffer_load_dwordx4 v[28:31], v2, {B(S_H)}, s73 offen")
    a(f"s_add_u32 s72, s73, {WS_R}")
    a(f"buffer_load_dwordx4 v[32:35], v2, {B(S_WS)}, s72 offen")
    a("v_subrev_u32 v7, 640, v0")
    a("v_lshlrev_b32 v6, 1, v7")
    a("v_cmp_gt_u32 vcc, 120, v7")
    a("v_cndmask_b32 v6, v3, v6, vcc")
    a(f"buffer_load_ushort v36, v6, {B(S_POS)}, s{sT240} offen")
    a("s_waitcnt lgkmcnt(0)")
    a("s_barrier")
    stamp(a, 9)
    a(f"s_cmp_ge_u32 s{sQ}, 2")
    a("s_cbranch_scc1 K2_e1")
    a("v_and_b32 v8, 31, v4")
    a("v_lshrrev_b32 v9, 5, v4")
    a(f"v_mul_u32_u24 v10, {MBROW}, v8")
    a("v_lshl_add_u32 v10, v9, 4, v10")
    a(f"s_mul_i32 s3, s{sQ}, {32*MBROW}")
    a(f"s_add_u32 s3, s3, {L_MB}")
    a("v_add_u32 v10, s3, v10")
    for ks in range(8):
        a(f"ds_read_b128 v[{vAf+4*ks}:{vAf+4*ks+3}], v10 offset:{ks*32}")
    a(f"v_mul_u32_u24 v11, {4*PROW}, v9")
    a("v_lshl_add_u32 v11, v8, 2, v11")
    a(f"s_mul_i32 s3, s{sQ}, {32*PROW}")
    a(f"s_lshl_b32 s72, s{sS}, 7")
    a(f"s_add_u32 s3, s3, s72")
    a(f"s_add_u32 s3, s3, {L_T0}")
    a("v_add_u32 v11, s3, v11")
    a("s_waitcnt vmcnt(3) lgkmcnt(0)")
    for ks in range(8):
        c = "0" if ks == 0 else D0
        a(f"v_mfma_f32_32x32x16_bf16 {D0}, v[{vAf+4*ks}:{vAf+4*ks+3}], v[{vB+4*ks}:{vB+4*ks+3}], {c}")
    for r in range(16):
        a(f"ds_write_b32 v11, v{vACC+r} offset:{(8*(r//4)+r%4)*PROW}")
    a.label("K2_e1")
    a.clear_hist()
    a("s_waitcnt lgkmcnt(0)")
    a("s_barrier")
    stamp(a, 10)
    a(f"s_cmp_ge_u32 s{sW}, 12")
    a("s_cbranch_scc1 K2_end")
    a(f"s_cmp_ge_u32 s{sW}, 10")
    a("s_cbranch_scc1 K2_e_pos")
    a(f"s_lshr_b32 s3, s{sW}, 1")
    a(f"s_lshl_b32 s72, s3, 2")
    a("v_mov_b32 v8, s72")
    a(f"ds_read2_b32 v[10:11], v8 offset0:{L_OWN//4} offset1:{L_OWN//4+1}")
    a(f"ds_read2_b32 v[12:13], v8 offset0:{L_OWN//4+2} offset1:{L_OWN//4+3}")
    a("v_lshrrev_b32 v5, 4, v0")
    a("v_and_b32 v5, 7, v5")
    a("v_and_b32 v6, 15, v0")
    a(f"v_mul_u32_u24 v5, {PROW}, v5")
    a("v_lshl_add_u32 v5, v6, 5, v5")
    a(f"s_mul_i32 s72, s3, {8*PROW}")
    a(f"s_add_u32 s72, s72, {L_T0}")
    a("v_add_u32 v5, s72, v5")
    for r in range(8): a(f"v_mov_b32 v{40+r}, 0")
    a("s_add_u32 s3, s3, 1")
    a("s_waitcnt lgkmcnt(0)")
    for q in range(4):
        a(f"v_readfirstlane_b32 s72, v{10+q}")
        a(f"s_cmp_lg_u32 s72, s3")
        a(f"s_cbranch_scc1 K2_f{q}")
        a(f"ds_read_b128 v[48:51], v5 offset:{q*8*PROW}")
        a(f"ds_read_b128 v[52:55], v5 offset:{q*8*PROW+16}")
        a("s_waitcnt lgkmcnt(0)")
        for r in range(8): a(f"v_add_f32 v{40+r}, v{40+r}, v{48+r}")
        a.label(f"K2_f{q}")
        a.clear_hist()
    a("s_waitcnt vmcnt(0)")
    for p in range(4):
        a(f"v_lshlrev_b32 v{48+2*p}, 16, v{32+p}")
        a(f"v_and_b32 v{49+2*p}, 0xffff0000, v{32+p}")
    a(f"v_mov_b32 v56, s{sLN2}")
    a(f"v_mov_b32 v57, s{sLOG2E}")
    for r in range(8): a(f"v_fmac_f32 v{48+r}, v56, v{40+r}")
    for r in range(8): a(f"v_mul_f32 v{40+r}, v57, v{48+r}")
    for r in range(8): a(f"v_exp_f32 v{40+r}, -v{40+r}")
    for r in range(8): a(f"v_add_f32 v{40+r}, 1.0, v{40+r}")
    for r in range(8): a(f"v_rcp_f32 v{40+r}, v{40+r}")
    for r in range(8): a(f"v_mul_f32 v{40+r}, v{48+r}, v{40+r}")
    for p in range(4): a(f"v_cvt_pk_bf16_f32 v{48+p}, v{40+2*p}, v{41+2*p}")
    for p in range(4):
        a(f"v_lshlrev_b32 v{40+2*p}, 16, v{48+p}")
        a(f"v_and_b32 v{41+2*p}, 0xffff0000, v{48+p}")
        a(f"v_lshlrev_b32 v{56+2*p}, 16, v{28+p}")
        a(f"v_and_b32 v{57+2*p}, 0xffff0000, v{28+p}")
    for r in range(8): a(f"v_add_f32 v{40+r}, v{40+r}, v{56+r}")
    for p in range(4): a(f"v_cvt_pk_bf16_f32 v{48+p}, v{40+2*p}, v{41+2*p}")
    a(f"buffer_store_dwordx4 v[48:51], v2, {B(S_OUT)}, s73 offen")
    if PROF:
        a("s_waitcnt vmcnt(0)")
        stamp(a, 11)
        prof_out(a)
    if "rt" in DBG: rt_end(a, 84, 64, 1, sT, 100, "")
    a("s_endpgm")
    a.label("K2_e_pos")
    a.clear_hist()
    a("v_cmp_gt_u32 vcc, 120, v7")
    a("s_and_saveexec_b64 s[76:77], vcc")
    a("s_cbranch_execz K2_end")
    a("v_mul_u32_u24 v8, 43691, v7")
    a("v_lshrrev_b32 v8, 17, v8")
    a("v_mul_u32_u24 v9, 3, v8")
    a("v_sub_u32 v9, v7, v9")
    a("v_lshrrev_b32 v10, 3, v8")
    a("v_and_b32 v11, 7, v8")
    a("v_add_u32 v9, 1, v9")
    a("v_lshl_add_u32 v9, v9, 3, v11")
    a("v_lshlrev_b32 v9, 5, v9")
    a("v_lshl_add_u32 v9, v10, 10, v9")
    a(f"v_add_u32 v9, {L_POSP}, v9")
    a("v_lshlrev_b32 v12, 2, v10")
    a(f"v_add_u32 v12, {L_OWN}, v12")
    a("v_add_u32 v10, 1, v10")
    a("v_mov_b32 v13, 0")
    for q in range(4):
        a(f"ds_read_b32 v14, v12 offset:{4*q}")
        a(f"ds_read_b128 v[16:19], v9 offset:{q*1024}")
        a(f"ds_read_b128 v[20:23], v9 offset:{q*1024+16}")
        a("s_waitcnt lgkmcnt(0)")
        a("v_add_f32 v16, v16, v17"); a("v_add_f32 v18, v18, v19")
        a("v_add_f32 v20, v20, v21"); a("v_add_f32 v22, v22, v23")
        a("v_add_f32 v16, v16, v18"); a("v_add_f32 v20, v20, v22")
        a("v_add_f32 v16, v16, v20")
        a("v_cmp_eq_u32 vcc, v14, v10")
        a("v_cndmask_b32 v16, 0, v16, vcc")
        a("v_add_f32 v13, v13, v16")
    a("s_waitcnt vmcnt(0)")
    a("v_lshlrev_b32 v36, 16, v36")
    a("v_add_f32 v13, v13, v36")
    a("v_cvt_pk_bf16_f32 v13, v13, v13")
    a(f"s_add_u32 s3, s{sT240}, {N*256}")
    a(f"buffer_store_short v13, v6, {B(S_OUT)}, s3 offen")
    a("s_endpgm")

def prof_out(a):
    a(f"s_cmp_ge_u32 s{sT}, 4")
    a("s_cbranch_scc1 K2_sto")
    a(f"s_cmp_lg_u32 s{sW}, 0")
    a("s_cbranch_scc1 K2_sto")
    a(f"v_writelane_b32 v{vPR}, s{sNT}, 14")
    a("s_load_dwordx2 s[64:65], s[0:1], 72")
    a("s_waitcnt lgkmcnt(0)")
    a("s_mov_b32 s66, 256")
    a("s_mov_b32 s67, 0x20000")
    a(f"v_lshlrev_b32 v{vX}, 2, v0")
    a(f"v_mov_b32 v3, {OOB:#x}")
    a(f"v_cmp_gt_u32 vcc, 16, v0")
    a(f"v_cndmask_b32 v{vX}, v3, v{vX}, vcc")
    a(f"s_lshl_b32 s3, s{sT}, 6")
    a(f"buffer_store_dword v{vPR}, v{vX}, s[64:67], s3 offen")
    a("s_waitcnt vmcnt(0)")
    a.label("K2_sto")

def slow_code(a):
    a.label("K2_toslow")
    a.clear_hist()
    a(f"s_mov_b32 s{sSLOW}, 1")
    a("s_load_dwordx4 s[64:67], s[0:1], 24")
    a("s_waitcnt vmcnt(0) lgkmcnt(0)")
    srd(a, S_SRC, 64, 65, E * 4)
    srd(a, S_DST, 66, 67, E * 4)
    a("s_barrier")
    a(f"v_lshlrev_b32 v{vX}, 4, v0")
    a(f"v_add_u32 v{vX}, {L_MACC}, v{vX}")
    for r in range(4): a(f"v_mov_b32 v{vZR+r}, 0")
    a(f"ds_write_b128 v{vX}, v[{vZR}:{vZR+3}]")
    masked(a, f"v_cmp_gt_u32 vcc, {(40*MROW+640-16384)//16}, v0", "K2_sz", lambda: a(f"ds_write_b128 v{vX}, v[{vZR}:{vZR+3}] offset:16384"))
    a("s_waitcnt lgkmcnt(0)")
    a("s_barrier")
    a("s_branch K2_batch")
    a.label("K2_slowload")
    a.clear_hist()
    a(f"s_sub_u32 s3, s{sSLOW}, 1")
    a(f"s_mul_i32 s3, s3, {SLOW_BLK}")
    a(f"v_add_u32 v{RS0.eid}, s3, v0")
    a(f"v_lshlrev_b32 v{vX}, 2, v{RS0.eid}")
    a(f"v_mov_b32 v{vY}, {OOB:#x}")
    a(f"v_cmp_gt_u32 vcc, {SLOW_BLK}, v0")
    a(f"v_cndmask_b32 v{vX}, v{vY}, v{vX}, vcc")
    a(f"buffer_load_dword v{RS0.dl}, v{vX}, {B(S_DST)}, 0 offen")
    a(f"buffer_load_dword v{RS0.so}, v{vX}, {B(S_SRC)}, 0 offen")
    a(f"s_mul_i32 s3, s{sT}, 40")
    a(f"v_mov_b32 v{RS1.rec}, -1")
    a("s_waitcnt vmcnt(0) lgkmcnt(0)")
    a("s_barrier")
    a(f"v_subrev_u32 v{RS0.dl}, s3, v{RS0.dl}")
    a(f"v_lshl_or_b32 v{RS0.rec}, v{RS0.dl}, 14, v{RS0.so}")
    a(f"v_cmp_gt_u32 s[78:79], 40, v{RS0.dl}")
    a(f"s_and_b64 s[78:79], s[78:79], vcc")
    a(f"v_cndmask_b32 v{RS0.rec}, -1, v{RS0.rec}, s[78:79]")
    a("s_branch K2_sort")
    a.label("K2_slowaddr")
    a.clear_hist()
    a("s_getpc_b64 s[62:63]")
    a.label("K2_pc2")
    a(f"s_add_u32 s62, s62, K2_table-K2_pc2")
    a(f"s_addc_u32 s63, s63, 0")
    a(f"v_and_b32 v{vX}, 63, v0")
    a(f"v_lshlrev_b32 v{vX}, 4, v{vX}")
    a(f"s_lshl_b32 s72, s{sS}, 12")
    a(f"v_add_u32 v{vX}, s72, v{vX}")
    a(f"global_load_dwordx4 v[{vTAB}:{vTAB+3}], v{vX}, s[62:63] offset:2048")
    a(f"global_load_dwordx4 v[{vTAB+4}:{vTAB+7}], v{vX}, s[62:63] offset:3072")
    a("s_waitcnt vmcnt(0)")
    a("s_branch K2_addr")
    for g in range(5):
        L = f"K2_g{g}"
        a.label(f"{L}_sflush")
        a.clear_hist()
        a("s_waitcnt lgkmcnt(0)")
        a("s_nop 7")
        a(f"v_pk_mul_f32 v[{vSB}:{vSB+1}], v[{vACC}:{vACC+1}], v[{vT}:{vT+1}]")
        for i in range(2, 16, 2):
            a(f"v_pk_fma_f32 v[{vSB}:{vSB+1}], v[{vACC+i}:{vACC+i+1}], v[{vT+i}:{vT+i+1}], v[{vSB}:{vSB+1}]")
        a(f"v_add_f32 v{vSB}, v{vSB}, v{vSB+1}")
        a(f"v_and_b32 v{vX}, 63, v0")
        a(f"v_and_b32 v{vY}, 7, v{vX}")
        a(f"v_bfe_u32 v{vZ}, v{vX}, 3, 2")
        a(f"v_lshlrev_b32 v{vZ}, 2, v{vZ}")
        a(f"v_lshl_add_u32 v{vZ}, v{vY}, 4, v{vZ}")
        a(f"v_add_u32 v{vZ}, {L_POSACC + g*128}, v{vZ}")
        a(f"ds_add_f32 v{vZ}, v{vSB}")
        a(f"v_mul_u32_u24 v{vY}, {MROW}, v{vY}")
        a(f"v_lshrrev_b32 v{vX}, 5, v{vX}")
        a(f"v_lshl_add_u32 v{vY}, v{vX}, 4, v{vY}")
        a(f"s_lshl_b32 s72, s{sS}, 7")
        a(f"s_add_u32 s72, s72, {L_MACC}")
        a(f"v_add_u32 v{vY}, s72, v{vY}")
        a("s_mov_b32 exec_lo, 0xff")
        a("s_mov_b32 exec_hi, 0xff")
        for r in range(16):
            a(f"ds_add_f32 v{vY}, v{vACC+r} offset:{g*8*MROW + (8*(r//4)+r%4)*4}")
        a("s_mov_b64 exec, -1")
        a(f"s_branch {L}_done")
    a.label("K2_slowend")
    a.clear_hist()
    a("s_waitcnt vmcnt(0) lgkmcnt(0)")
    a("s_barrier")
    a("v_lshrrev_b32 v8, 4, v0")
    a("v_min_u32 v8, 39, v8")
    a("v_and_b32 v9, 15, v0")
    a(f"v_mul_u32_u24 v10, {MROW}, v8")
    a("v_lshl_add_u32 v10, v9, 5, v10")
    a(f"v_add_u32 v10, {L_MACC}, v10")
    a("ds_read_b128 v[16:19], v10")
    a("ds_read_b128 v[20:23], v10 offset:16")
    a("v_subrev_u32 v7, 640, v0")
    a("v_mul_u32_u24 v11, 43691, v7")
    a("v_lshrrev_b32 v11, 17, v11")
    a("v_min_u32 v11, 39, v11")
    a("v_add_u32 v12, v11, v7")
    a("v_and_b32 v12, 0xff, v12")
    a("v_lshlrev_b32 v12, 2, v12")
    a(f"v_add_u32 v12, {L_POSACC+4}, v12")
    a("ds_read_b32 v24, v12")
    a("s_waitcnt lgkmcnt(0)")
    a("s_barrier")
    def wm():
        for p in range(4): a(f"v_cvt_pk_bf16_f32 v{16+p}, v{16+2*p}, v{17+2*p}")
        a(f"v_mul_u32_u24 v10, {MBROW}, v8")
        a("v_lshl_add_u32 v10, v9, 4, v10")
        a(f"v_add_u32 v10, {L_MB}, v10")
        a("ds_write_b128 v10, v[16:19]")
    masked(a, "v_cmp_gt_u32 vcc, 640, v0", "K2_se1", wm)
    def wp():
        a("v_mul_u32_u24 v13, 3, v11")
        a("v_sub_u32 v13, v7, v13")
        a("v_add_u32 v13, 1, v13")
        a("v_and_b32 v14, 7, v11")
        a("v_lshl_add_u32 v13, v13, 3, v14")
        a("v_lshlrev_b32 v13, 5, v13")
        a("v_lshrrev_b32 v14, 3, v11")
        a("v_lshl_add_u32 v13, v14, 10, v13")
        a(f"v_add_u32 v13, {L_POSP}, v13")
        for r in range(25, 32): a(f"v_mov_b32 v{r}, 0")
        a("ds_write_b128 v13, v[24:27]")
        a("ds_write_b128 v13, v[28:31] offset:16")
    masked(a, "v_cmp_gt_u32 vcc, 120, v7", "K2_se2", wp)
    def wo():
        a("v_add_u32 v13, 1, v0")
        a("v_cmp_gt_u32 vcc, 5, v0")
        a("v_cndmask_b32 v13, 0, v13, vcc")
        a("v_lshlrev_b32 v14, 2, v0")
        a(f"v_add_u32 v14, {L_OWN}, v14")
        a("ds_write_b32 v14, v13")
    masked(a, "v_cmp_gt_u32 vcc, 12, v0", "K2_se3", wo)
    a("s_branch K2_epi")

K2_KD = f"""
.amdhsa_kernel {KNAME}_kernel
  .amdhsa_next_free_vgpr 128
  .amdhsa_next_free_sgpr 96
  .amdhsa_accum_offset 128
  .amdhsa_group_segment_fixed_size 0
  .amdhsa_kernarg_size 88
  .amdhsa_user_sgpr_count 2
  .amdhsa_user_sgpr_kernarg_segment_ptr 1
  .amdhsa_system_sgpr_workgroup_id_x 1
.end_amdhsa_kernel
"""
```

```python
import sys
from asmlib import *
from consts import *
import gen_k1, gen_k2

HEADER = """; EGNN layer (gather / edge-MLP / segment-sum / node-MLP), gfx950, two launches:
"""

def build():
    a = Asm()
    main = KNAME + "_kernel"
    txt = HEADER
    txt += f"; @launch kernel=egnn_prep_kernel grid=({gen_k1.K1_GRID},1,1) block=(1024,1,1) lds={gen_k1.K1_LDS}\n"
    txt += f"; @launch kernel={main} grid=({T},1,1) block=(1024,1,1) lds={gen_k2.K2_LDS}\n"
    txt += '.amdgcn_target "amdgcn-amd-amdhsa--gfx950"\n.text\n'
    txt += ".globl egnn_prep_kernel\n"
    gen_k1.gen_k1(a)
    a.raw(f".globl {main}")
    a.raw(".p2align 8")
    a.raw(f".type {main},@function")
    a.label(main)
    a.clear_hist()
    gen_k2.gen_k2(a)
    txt += a.text()
    txt += '.section .rodata,"a"\n.p2align 6\n'
    txt += gen_k1.K1_KD.lstrip("\n")
    txt += ".p2align 6\n"
    txt += gen_k2.K2_KD.lstrip("\n")
    return txt

if __name__ == "__main__":
    out = sys.argv[1] if len(sys.argv) > 1 else "cdna_kernels/" + KNAME + ".s"
    opts = sys.argv[2].split(",") if len(sys.argv) > 2 else []
    if "prof" in opts: gen_k2.PROF = True
    gen_k2.DBG = set(opts)
    gen_k1.DBG1 = set(opts)
    open(out, "w").write(build())
    print("wrote", out)
```

```python
import re

TRANS = ("v_exp_f32", "v_log_f32", "v_rcp_f32", "v_rsq_f32", "v_sqrt_f32", "v_sin_f32", "v_cos_f32",
         "v_rcp_iflag_f32", "v_exp_f16", "v_rcp_f16")

def parse_reg(tok):
    t = tok.strip()
    t = t.lstrip("-")
    m = re.match(r"^abs\((.*)\)$", t)
    if m: t = m.group(1)
    t = t.strip("|")
    if t == "vcc": return {("s", 106), ("s", 107)}
    if t == "vcc_lo": return {("s", 106)}
    if t == "vcc_hi": return {("s", 107)}
    if t == "exec": return {("s", 126), ("s", 127)}
    if t == "exec_lo": return {("s", 126)}
    if t == "exec_hi": return {("s", 127)}
    if t == "m0": return {("s", 124)}
    m = re.match(r"^([vsa])(\d+)$", t)
    if m: return {(m.group(1), int(m.group(2)))}
    m = re.match(r"^([vsa])\[(\d+):(\d+)\]$", t)
    if m: return {(m.group(1), i) for i in range(int(m.group(2)), int(m.group(3)) + 1)}
    return set()

def split_ops(rest):
    ops, depth, cur = [], 0, ""
    for ch in rest:
        if ch == "[": depth += 1
        if ch == "]": depth -= 1
        if ch == "," and depth == 0:
            ops.append(cur.strip()); cur = ""
        else:
            cur += ch
    if cur.strip(): ops.append(cur.strip())
    return ops

class Ins:
    __slots__ = ("text", "op", "kind", "wr", "rd", "srcc", "passes", "dpp", "ws", "lds_dma", "widestore", "sdata")
    def __init__(self, text):
        self.text = text
        t = text.split(";")[0].strip()
        parts = t.split(None, 1)
        self.op = parts[0]
        rest = parts[1] if len(parts) > 1 else ""
        op = self.op
        self.wr, self.rd, self.srcc = set(), set(), set()
        self.passes = 0
        self.dpp = ("row_" in rest) or ("quad_perm" in rest) or ("wave_" in rest) or ("_dpp" in op)
        self.ws = 1
        self.lds_dma = False
        self.widestore = False
        self.sdata = set()
        ops = split_ops(rest)
        mods = ""
        if ops:
            last = ops[-1].split()
            if len(last) > 1:
                ops[-1] = last[0]; mods = " ".join(last[1:])
        R = [parse_reg(o) for o in ops]
        if op == "s_nop":
            self.kind = "nop"; self.ws = int(ops[0], 0) + 1
        elif op.startswith("v_mfma"):
            self.kind = "mfma"
            self.wr = R[0]; self.rd = R[1] | R[2] | R[3]; self.srcc = R[3]
            self.passes = 8 if "32x32x16" in op else 4
        elif op.startswith("v_cmp"):
            self.kind = "valu"; self.wr = R[0]
            for r in R[1:]: self.rd |= r
        elif op in ("v_readfirstlane_b32", "v_readlane_b32"):
            self.kind = "valu"; self.wr = R[0]
            for r in R[1:]: self.rd |= r
        elif op.startswith("v_permlane"):
            self.kind = "valu"; self.wr = R[0] | R[1]; self.rd = R[0] | R[1]
        elif op.startswith("v_"):
            self.kind = "valu"; self.wr = set(R[0])
            k = 1
            if op.startswith(("v_add_co", "v_sub_co", "v_addc_co", "v_subb_co", "v_mad_u64", "v_div_scale")):
                self.wr |= R[1]; k = 2
            for r in R[k:]: self.rd |= r
            if op.startswith(("v_fmac", "v_pk_fmac", "v_mac", "v_writelane", "v_dot2c")) or "d16" in op or op.startswith(("v_fma_mix",)):
                self.rd |= R[0]
            if op.startswith("v_cndmask") and len(ops) == 3: self.rd |= parse_reg("vcc")
            if self.dpp: self.rd |= R[0]
        elif op.startswith("ds_"):
            self.kind = "ds"
            if op.startswith(("ds_read", "ds_bpermute", "ds_permute", "ds_swizzle")) or "_rtn" in op:
                self.wr = R[0]
                for r in R[1:]: self.rd |= r
            else:
                for r in R: self.rd |= r
        elif op.startswith(("buffer_", "global_")):
            self.kind = "vmem"
            allm = mods + " " + rest
            self.lds_dma = bool(re.search(r"\blds\b", allm)) or "load_lds" in op
            if "load" in op and not self.lds_dma:
                self.wr = R[0]
                for r in R[1:]: self.rd |= r
                if "d16" in op: self.rd |= R[0]
            elif "atomic" in op and ("sc0" in allm):
                self.wr = R[0]
                for r in R: self.rd |= r
            else:
                for r in R: self.rd |= r
                if "store" in op and ("x4" in op or "x3" in op):
                    self.widestore = True
                    self.sdata = R[0] if op.startswith("buffer_") else R[1]
            if self.lds_dma: self.rd |= parse_reg("m0")
        elif op.startswith("s_"):
            self.kind = "salu"
            if op.startswith(("s_cmp", "s_cbranch", "s_branch", "s_waitcnt", "s_barrier", "s_endpgm", "s_setprio", "s_sleep", "s_bitcmp")):
                for r in R: self.rd |= r
            else:
                self.wr = R[0] if R else set()
                for r in R[1:]: self.rd |= r
                if "saveexec" in op: self.wr |= parse_reg("exec")
        else:
            raise ValueError("unknown op " + text)

class Asm:
    def __init__(self):
        self.out = []
        self.hist = []
        self.nnop = 0
    def raw(self, s):
        self.out.append(s)
    def comment(self, s):
        self.out.append("    ; " + s)
    def label(self, name):
        self.out.append(name + ":")
    def clear_hist(self):
        self.hist = []
    def need(self, c):
        req = 0
        dist = 0
        for p in reversed(self.hist):
            n = 0
            vw = {r for r in p.wr if r[0] in "va"}
            sw = {r for r in p.wr if r[0] == "s"}
            crv = {r for r in c.rd if r[0] in "va"}
            cwv = {r for r in c.wr if r[0] in "va"}
            crs = {r for r in c.rd if r[0] == "s"}
            if p.kind == "valu":
                if vw & crv:
                    if c.kind == "mfma": n = max(n, 2)
                    if c.op in ("v_readfirstlane_b32", "v_readlane_b32"): n = max(n, 1)
                    if c.op.startswith("v_permlane") or (c.kind == "valu" and c.dpp): n = max(n, 2)
                    if p.op in TRANS and c.kind in ("valu", "mfma") : n = max(n, 1 if c.kind == "valu" else 2)
                    if "sdwa" in p.op or "op_sel" in p.text or "dst_sel" in p.text: n = max(n, 1)
                if c.op.startswith("v_permlane") and (vw & cwv): n = max(n, 2)
                if sw & crs:
                    if c.kind == "valu":
                        n = max(n, 4 if c.op in ("v_readlane_b32", "v_writelane_b32") else 2)
                    if c.kind == "vmem": n = max(n, 5)
                    if c.kind == "salu": n = max(n, 1)
            if p.kind == "mfma":
                big = 12 if p.passes == 8 else 8
                if c.kind == "mfma":
                    ab = c.rd - c.srcc
                    if p.wr & ab: n = max(n, big)
                    if (p.wr & c.srcc):
                        if p.wr == c.srcc and p.passes == c.passes: pass
                        else: n = max(n, 10 if p.passes == 8 else 6)
                    if (p.wr & c.wr) and not (p.wr == c.wr): n = max(n, big)
                elif c.kind in ("valu", "ds", "vmem"):
                    if p.wr & (crv | cwv): n = max(n, big)
                    if c.kind == "valu" and (p.srcc & cwv): n = max(n, 7 if p.passes == 8 else 3)
            if p.kind == "salu" and (("s", 124) in p.wr) and c.lds_dma: n = max(n, 1)
            if p.widestore and c.kind == "valu" and (p.sdata & cwv): n = max(n, 2)
            if p.widestore and c.kind in ("ds", "vmem") and (p.sdata & cwv): n = max(n, 1)
            if n > dist: req = max(req, n - dist)
            dist += p.ws
            if dist >= 16: break
        return req
    def __call__(self, text):
        c = Ins(text)
        req = self.need(c)
        while req > 0:
            k = min(req, 16)
            nop = Ins(f"s_nop {k-1}")
            self.out.append(f"    s_nop {k-1}")
            self.hist.append(nop); self.nnop += 1
            req -= k
        self.out.append("    " + text)
        self.hist.append(c)
        if len(self.hist) > 40: self.hist = self.hist[-40:]
    def nop(self, n):
        self(f"s_nop {n-1}")
    def text(self):
        return "\n".join(self.out) + "\n"

def vr(a, n=1):
    return f"v{a}" if n == 1 else f"v[{a}:{a+n-1}]"
def sr(a, n=1):
    return f"s{a}" if n == 1 else f"s[{a}:{a+n-1}]"


RT_OFF = 0xB00000
def rt_begin(a, sr_):
    a(f"s_memrealtime s[{sr_}:{sr_+1}]")
def rt_end(a, sr_, tmp, kern, wgreg, vt, lbl):
    a(f"s_waitcnt vmcnt(0) lgkmcnt(0)")
    a(f"s_memrealtime s[{tmp}:{tmp+1}]")
    a(f"s_load_dwordx2 s[{tmp+4}:{tmp+5}], s[0:1], 80")
    a(f"s_waitcnt lgkmcnt(0)")
    a(f"s_add_u32 s{tmp+4}, s{tmp+4}, {RT_OFF + kern*8192}")
    a(f"s_addc_u32 s{tmp+5}, s{tmp+5}, 0")
    a(f"s_mov_b32 s{tmp+6}, 8192")
    a(f"s_mov_b32 s{tmp+7}, 0x20000")
    a(f"v_mov_b32 v{vt}, s{sr_}")
    a(f"v_mov_b32 v{vt+1}, s{tmp}")
    a(f"s_lshl_b32 s{tmp+2}, s{wgreg}, 3")
    a(f"v_mov_b32 v{vt+2}, 0x7fffff00")
    a(f"v_cmp_eq_u32 vcc, 0, v0")
    a(f"v_cndmask_b32 v{vt+2}, v{vt+2}, 0, vcc") if False else None
    a(f"v_cndmask_b32 v{vt+3}, v{vt+2}, v0, vcc")
    a(f"buffer_store_dwordx2 v[{vt}:{vt+1}], v{vt+3}, s[{tmp+4}:{tmp+7}], s{tmp+2} offen")
    a(f"s_waitcnt vmcnt(0)")
```

```python
from asmlib import *
from consts import *

K1_GWG = 157
K1_IWG = 3
K1_GRID = 64 + K1_GWG + K1_IWG
L_H = 0; L_W2 = 16384; L_W1 = 49152; L_WH = 81920; L_OQ = 114688; L_OR = L_OQ + 64 * 272
K1_LDS = L_OR + 64 * 272

def srd(a, base, lo, hi, size, add=0):
    if add:
        a(f"s_add_u32 s{base}, s{lo}, {add}")
        a(f"s_addc_u32 s{base+1}, s{hi}, 0")
    else:
        a(f"s_mov_b32 s{base}, s{lo}")
        a(f"s_mov_b32 s{base+1}, s{hi}")
    a(f"s_mov_b32 s{base+2}, {size}")
    a(f"s_mov_b32 s{base+3}, 0x20000")

DBG1 = set()
def gen_k1(a):
    a.raw(".p2align 8")
    a.raw(".type egnn_prep_kernel,@function")
    a.label("egnn_prep_kernel")
    a(f"s_cmp_ge_u32 s2, {K1_GRID}")
    a("s_cbranch_scc1 K1_end")
    RT = "rt" in DBG1
    if RT:
        rt_begin(a, 60)
        a("s_mov_b32 s62, s2")
    if "clk" in DBG1:
        a("s_memtime s[50:51]")
        a("s_memrealtime s[52:53]")
    def fin():
        if "clk" in DBG1:
            a("s_waitcnt vmcnt(0) lgkmcnt(0)")
            a("s_memtime s[54:55]")
            a("s_memrealtime s[56:57]")
            a("s_load_dwordx2 s[64:65], s[0:1], 72")
            a("s_waitcnt lgkmcnt(0)")
            a("s_sub_u32 s54, s54, s50")
            a("s_sub_u32 s56, s56, s52")
            a("s_mov_b32 s66, 256")
            a("s_mov_b32 s67, 0x20000")
            a("v_mov_b32 v100, s54")
            a("v_mov_b32 v101, s56")
            a("s_lshl_b32 s58, s2, 3")
            a("v_mov_b32 v102, 0x7fffff00")
            a("v_cmp_eq_u32 vcc, 0, v0")
            a("v_cndmask_b32 v103, v102, v0, vcc")
            a("buffer_store_dwordx2 v[100:101], v103, s[64:67], s58 offen")
            a("s_waitcnt vmcnt(0)")
        if RT: rt_end(a, 60, 64, 0, 62, 100, "")
        a("s_endpgm")
    a("s_cmp_ge_u32 s2, 64")
    a("s_cbranch_scc1 K1_q")
    if "k1_nobin" in DBG1: a("s_endpgm")
    a("s_load_dwordx4 s[8:11], s[0:1], 24")
    a("s_load_dwordx2 s[18:19], s[0:1], 80")
    a("v_lshlrev_b32 v1, 4, v0")
    a(f"s_mul_i32 s3, s2, {CH*4}")
    a("v_cmp_gt_u32 vcc, 625, v0")
    a("v_mov_b32 v12, -1"); a("v_mov_b32 v13, -1"); a("v_mov_b32 v14, -1"); a("v_mov_b32 v15, -1")
    a("v_lshlrev_b32 v2, 2, v0")
    a("v_mov_b32 v3, 0")
    a("s_waitcnt lgkmcnt(0)")
    srd(a, 24, 10, 11, E * 4)
    srd(a, 20, 8, 9, E * 4)
    a("s_and_saveexec_b64 s[32:33], vcc")
    a("s_cbranch_execz K1_b1")
    a("buffer_load_dwordx4 v[4:7], v1, s[24:27], s3 offen")
    a("buffer_load_dwordx4 v[8:11], v1, s[20:23], s3 offen")
    a.label("K1_b1")
    a("s_mov_b64 exec, s[32:33]")
    a("ds_write_b128 v1, v[12:15]")
    a("ds_write_b128 v1, v[12:15] offset:16384")
    a("v_cmp_gt_u32 vcc, 256, v0")
    a("s_and_saveexec_b64 s[34:35], vcc")
    a("s_cbranch_execz K1_b2")
    a("ds_write_b32 v2, v3 offset:32768")
    a.label("K1_b2")
    a("s_mov_b64 exec, s[34:35]")
    srd(a, 28, 18, 19, CELLS_BYTES)
    a("v_lshlrev_b32 v16, 22, v0")
    a("v_mov_b32 v17, 1")
    a("v_mov_b32 v36, 33788")
    a("s_waitcnt lgkmcnt(0)")
    a("s_barrier")
    a("v_cmp_gt_u32 vcc, 625, v0")
    a("s_and_saveexec_b64 s[32:33], vcc")
    a("s_cbranch_execz K1_b3")
    a("s_waitcnt vmcnt(0)")
    for k in range(4):
        a(f"v_mul_u32_u24 v{20+k}, 52429, v{4+k}")
        a(f"v_lshrrev_b32 v{20+k}, 21, v{20+k}")
        a(f"v_lshlrev_b32 v{28+k}, 2, v{20+k}")
        a(f"ds_add_rtn_u32 v{24+k}, v{28+k}, v17 offset:32768")
    for k in range(4):
        a(f"v_mul_u32_u24 v{32+k}, 40, v{20+k}")
        a(f"v_sub_u32 v{32+k}, v{4+k}, v{32+k}")
        a(f"v_lshl_or_b32 v{8+k}, v{32+k}, 14, v{8+k}")
        if k: a(f"v_add_u32 v{32+k}, {k<<20}, v16")
        a(f"v_or_b32 v{8+k}, v{8+k}, v{32+k if k else 16}")
        a(f"v_lshlrev_b32 v{20+k}, 7, v{20+k}")
    a("s_waitcnt lgkmcnt(0)")
    for k in range(4):
        a(f"v_lshl_add_u32 v{20+k}, v{24+k}, 2, v{20+k}")
        a(f"v_cmp_gt_u32 vcc, 32, v{24+k}")
        a(f"v_cndmask_b32 v{20+k}, v36, v{20+k}, vcc")
        a(f"ds_write_b32 v{20+k}, v{8+k}")
    a.label("K1_b3")
    a("s_mov_b64 exec, s[32:33]")
    a("s_lshl_b32 s3, s2, 7")
    a("v_lshrrev_b32 v2, 3, v0")
    a("v_and_b32 v3, 7, v0")
    a("v_lshlrev_b32 v4, 2, v2")
    a("v_lshlrev_b32 v7, 13, v2")
    a("v_lshl_add_u32 v7, v3, 4, v7")
    a(f"v_add_u32 v16, {128*8192}, v7")
    a("v_cmp_eq_u32 s[36:37], 7, v3")
    a("v_mov_b32 v17, -2")
    a("s_waitcnt lgkmcnt(0)")
    a("s_barrier")
    a("ds_read_b128 v[8:11], v1")
    a("ds_read_b128 v[12:15], v1 offset:16384")
    a("ds_read_b32 v5, v4 offset:32768")
    a(f"ds_read_b32 v6, v4 offset:{32768+512}")
    a("s_waitcnt lgkmcnt(0)")
    a("v_cmp_lt_u32 vcc, 32, v5")
    a("s_and_b64 vcc, vcc, s[36:37]")
    a("v_cndmask_b32 v11, v11, v17, vcc")
    a("v_cmp_lt_u32 vcc, 32, v6")
    a("s_and_b64 vcc, vcc, s[36:37]")
    a("v_cndmask_b32 v15, v15, v17, vcc")
    a("buffer_store_dwordx4 v[8:11], v7, s[28:31], s3 offen")
    a("buffer_store_dwordx4 v[12:15], v16, s[28:31], s3 offen")
    fin()
    a.label("K1_q")
    a.clear_hist()
    a(f"s_cmp_ge_u32 s2, {64 + K1_GWG}")
    a("s_cbranch_scc1 K1_img")
    if "k1_nogemm" in DBG1: a("s_endpgm")
    a("s_load_dwordx2 s[4:5], s[0:1], 0")
    a("s_load_dwordx2 s[12:13], s[0:1], 40")
    a("s_load_dwordx2 s[16:17], s[0:1], 56")
    a("s_load_dwordx2 s[18:19], s[0:1], 80")
    a("v_lshrrev_b32 v1, 6, v0")
    a("v_and_b32 v2, 63, v0")
    a("v_readfirstlane_b32 s3, v1")
    a("s_sub_u32 s2, s2, 64")
    a("v_lshrrev_b32 v4, 4, v2")
    a("s_lshl_b32 s33, s3, 2")
    a("v_add_u32 v4, s33, v4")
    a("v_xor_b32 v5, v4, v2")
    a("v_and_b32 v5, 15, v5")
    a("v_lshlrev_b32 v4, 8, v4")
    a("v_lshl_add_u32 v4, v5, 4, v4")
    a("v_lshlrev_b32 v3, 4, v2")
    a("s_lshl_b32 s34, s2, 14")
    a("s_lshl_b32 s35, s3, 10")
    a("s_lshl_b32 s36, s3, 11")
    a("s_waitcnt lgkmcnt(0)")
    srd(a, 24, 4, 5, N * 256)
    srd(a, 20, 12, 13, 273 * 256)
    srd(a, 28, 16, 17, 256 * 256)
    a(f"s_add_u32 m0, s35, {L_H}")
    a("buffer_load_dwordx4 v4, s[24:27], s34 offen lds")
    for (lb, sr_, go) in ((L_W2, 20, 32768), (L_W1, 20, 0), (L_WH, 28, 0)):
        for i in range(2):
            a(f"s_add_u32 m0, s36, {lb + i*1024}")
            a(f"s_add_u32 s37, s36, {go + i*1024}")
            a(f"buffer_load_dwordx4 v3, s[{sr_}:{sr_+3}], s37 offen lds")
    a("s_and_b32 s35, s3, 3")
    a("s_bfe_u32 s36, s3, 0x10002")
    a("v_and_b32 v4, 31, v2")
    a("v_lshrrev_b32 v5, 5, v2")
    a("v_and_b32 v6, 15, v4")
    a("v_xor_b32 v6, v6, v5")
    a("v_lshlrev_b32 v6, 4, v6")
    a("v_lshl_add_u32 v6, v4, 8, v6")
    a("s_lshl_b32 s37, s36, 13")
    a("v_add_u32 v6, s37, v6")
    a("v_bfe_u32 v9, v2, 2, 2")
    a("v_lshl_add_u32 v9, v5, 3, v9")
    a("v_lshlrev_b32 v9, 8, v9")
    a("v_and_b32 v10, 3, v2")
    a("v_lshlrev_b32 v10, 3, v10")
    a("v_and_b32 v11, 16, v2")
    a("v_lshl_add_u32 v10, v11, 1, v10")
    a("v_add_u32 v9, v9, v10")
    a("s_lshl_b32 s39, s35, 6")
    a("v_add_u32 v9, s39, v9")
    a(f"s_mov_b32 s40, {f2u(LOG2E):#x}")
    a("s_waitcnt vmcnt(0)")
    a("s_barrier")
    for ks in range(8):
        a(f"v_xor_b32 v7, {ks*32}, v6" if ks else "v_mov_b32 v7, v6")
        a(f"ds_read_b128 v[{16+4*ks}:{19+4*ks}], v7")
    a("s_cmp_ge_u32 s3, 8")
    a("s_cbranch_scc1 K1_p")
    for m, (lb, lo) in enumerate(((L_W2, L_OQ), (L_WH, L_OR))):
        a(f"v_add_u32 v8, {lb}, v9")
        for ks in range(8):
            a(f"ds_read_b64_tr_b16 v[{48+4*ks}:{49+4*ks}], v8 offset:{ks*4096}")
            a(f"ds_read_b64_tr_b16 v[{50+4*ks}:{51+4*ks}], v8 offset:{ks*4096+1024}")
        a("s_waitcnt lgkmcnt(0)")
        for ks in range(8):
            c = "0" if ks == 0 else "v[80:95]"
            a(f"v_mfma_f32_32x32x16_bf16 v[80:95], v[{48+4*ks}:{51+4*ks}], v[{16+4*ks}:{19+4*ks}], {c}")
        if m == 0:
            a("s_mul_i32 s37, s36, %d" % (32 * 272))
            a("s_add_u32 s37, s37, s39")
            a(f"s_add_u32 s37, s37, {L_OQ}")
            a("v_mul_u32_u24 v12, 272, v4")
            a("v_lshl_add_u32 v12, v5, 3, v12")
            a("v_add_u32 v12, s37, v12")
            for r in range(16):
                a(f"v_mul_f32 v{80+r}, s40, v{80+r}")
        for p in range(8):
            a(f"v_cvt_pk_bf16_f32 v{96+p}, v{80+2*p}, v{81+2*p}")
        for g in range(4):
            a(f"ds_write_b64 v12, v[{96+2*g}:{97+2*g}] offset:{lo - L_OQ + g*16}")
    a("s_branch K1_qst")
    a.label("K1_p")
    a.clear_hist()
    a(f"v_add_u32 v8, {L_W1}, v9")
    for ks in range(8):
        a(f"ds_read_b64_tr_b16 v[{48+4*ks}:{49+4*ks}], v8 offset:{ks*4096}")
        a(f"ds_read_b64_tr_b16 v[{50+4*ks}:{51+4*ks}], v8 offset:{ks*4096+1024}")
    a("s_waitcnt lgkmcnt(0)")
    for ks in range(8):
        c = "0" if ks == 0 else "v[80:95]"
        a(f"v_mfma_f32_32x32x16_bf16 v[80:95], v[{16+4*ks}:{19+4*ks}], v[{48+4*ks}:{51+4*ks}], {c}")
    a("s_lshl_b32 s37, s2, 3")
    a("s_lshl_b32 s38, s36, 2")
    a("s_add_u32 s37, s37, s38")
    a("v_lshlrev_b32 v12, 4, v4")
    a("v_lshl_add_u32 v12, v5, 3, v12")
    a("s_lshl_b32 s38, s35, 9")
    a("v_add_u32 v12, s38, v12")
    srd(a, 28, 18, 19, P_BYTES, add=WS_P)
    a("s_lshl_b32 s38, s37, 11")
    for r in range(16):
        a(f"v_mul_f32 v{80+r}, s40, v{80+r}")
    for p in range(8):
        a(f"v_cvt_pk_bf16_f32 v{96+p}, v{80+2*p}, v{81+2*p}")
    for g in range(4):
        if g: a("s_add_u32 s38, s38, 2048")
        if "k1_nostore" not in DBG1: a(f"buffer_store_dwordx2 v[{96+2*g}:{97+2*g}], v12, s[28:31], s38 offen")
    a.label("K1_qst")
    a.clear_hist()
    a("v_lshrrev_b32 v4, 4, v0")
    a("v_and_b32 v5, 15, v0")
    a("v_mul_u32_u24 v6, 272, v4")
    a("v_lshl_add_u32 v6, v5, 4, v6")
    a("v_lshlrev_b32 v7, 4, v0")
    srd(a, 20, 18, 19, Q_BYTES, add=WS_Q)
    srd(a, 28, 18, 19, R_BYTES, add=WS_R)
    a("s_add_u32 s35, s34, 256")
    a("s_waitcnt lgkmcnt(0)")
    a("s_barrier")
    a(f"v_add_u32 v8, {L_OQ}, v6")
    a("ds_read_b128 v[16:19], v8")
    a(f"ds_read_b128 v[20:23], v8 offset:{L_OR-L_OQ}")
    a("s_waitcnt lgkmcnt(1)")
    sfx = " sc0 sc1" if "k1_wt" in DBG1 else (" nt" if "k1_nt" in DBG1 else "")
    if "k1_nostore" not in DBG1: a("buffer_store_dwordx4 v[16:19], v7, s[20:23], s35 offen" + sfx)
    a("s_waitcnt lgkmcnt(0)")
    if "k1_nostore" not in DBG1: a("buffer_store_dwordx4 v[20:23], v7, s[28:31], s34 offen" + sfx)
    if RT: rt_end(a, 60, 64, 0, 62, 100, "")
    a("s_cmp_lg_u32 s2, 0")
    a("s_cbranch_scc1 K1_end")
    a("v_cmp_gt_u32 vcc, 16, v0")
    a("s_and_saveexec_b64 s[32:33], vcc")
    a("s_cbranch_execz K1_end")
    for r in range(4): a(f"v_mov_b32 v{24+r}, 0")
    a("buffer_store_dwordx4 v[24:27], v7, s[20:23], 0 offen")
    a("s_endpgm")
    a.label("K1_img")
    a.clear_hist()
    a("s_load_dwordx4 s[12:15], s[0:1], 40")
    a("s_load_dwordx2 s[16:17], s[0:1], 56")
    a("s_load_dwordx2 s[18:19], s[0:1], 80")
    a("v_lshrrev_b32 v1, 6, v0")
    a("v_and_b32 v2, 63, v0")
    a("v_readfirstlane_b32 s3, v1")
    a(f"s_sub_u32 s2, s2, {64 + K1_GWG}")
    a("s_lshl_b32 s33, s2, 4")
    a("s_add_u32 s33, s33, s3")
    a("s_cmp_ge_u32 s33, 37")
    a("s_cbranch_scc1 K1_end")
    a("v_and_b32 v4, 31, v2")
    a("v_lshrrev_b32 v5, 5, v2")
    a("v_lshlrev_b32 v6, 11, v5")
    a("v_lshl_add_u32 v6, v4, 1, v6")
    a("v_lshlrev_b32 v3, 4, v2")
    a("s_waitcnt lgkmcnt(0)")
    srd(a, 28, 18, 19, IMG_BYTES, add=WS_IMG)
    srd(a, 20, 12, 13, 273 * 256)
    a("s_cmp_ge_u32 s33, 36")
    a("s_cbranch_scc1 K1_wd")
    a("s_cmp_ge_u32 s33, 32")
    a("s_cbranch_scc1 K1_w4")
    srd(a, 24, 16, 17, 256 * 256)
    a("s_lshr_b32 s34, s33, 3")
    a("s_and_b32 s35, s33, 7")
    a("s_lshl_b32 s35, s35, 12")
    a("s_lshl_b32 s34, s34, 6")
    a("s_add_u32 s34, s34, s35")
    a(f"s_add_u32 s34, s34, {128*256}")
    a("s_lshl_b32 s36, s33, 10")
    for j in range(8):
        a(f"buffer_load_ushort v{16+j}, v6, s[24:27], s34 offen offset:{j*256}")
    a("s_waitcnt vmcnt(0)")
    for p in range(4):
        a(f"v_lshl_or_b32 v{24+p}, v{17+2*p}, 16, v{16+2*p}")
    a("buffer_store_dwordx4 v[24:27], v3, s[28:31], s36 offen")
    a("s_endpgm")
    a.label("K1_w4")
    a.clear_hist()
    a("s_sub_u32 s33, s33, 32")
    a("s_lshl_b32 s34, s33, 6")
    a(f"s_add_u32 s34, s34, {257*256}")
    a("s_lshl_b32 s36, s33, 10")
    a(f"s_add_u32 s36, s36, {IMG_W4}")
    for j in range(8):
        a(f"buffer_load_ushort v{16+j}, v6, s[20:23], s34 offen offset:{j*256}")
    a(f"s_mov_b32 s40, {f2u(LOG2E):#x}")
    a("s_waitcnt vmcnt(0)")
    for j in range(8):
        a(f"v_lshlrev_b32 v{16+j}, 16, v{16+j}")
        a(f"v_mul_f32 v{16+j}, s40, v{16+j}")
    for p in range(4):
        a(f"v_cvt_pk_bf16_f32 v{24+p}, v{16+2*p}, v{17+2*p}")
    a("buffer_store_dwordx4 v[24:27], v3, s[28:31], s36 offen")
    a("s_endpgm")
    a.label("K1_wd")
    a.clear_hist()
    srd(a, 24, 14, 15, 256)
    a("v_lshlrev_b32 v7, 1, v2")
    a(f"s_mov_b32 s34, {256*256}")
    a("buffer_load_ushort v16, v7, s[20:23], s34 offen")
    a("buffer_load_ushort v17, v7, s[20:23], s34 offen offset:128")
    a("buffer_load_ushort v18, v7, s[24:27], 0 offen")
    a("buffer_load_ushort v19, v7, s[24:27], 0 offen offset:128")
    a(f"s_mov_b32 s40, {f2u(LOG2E):#x}")
    a(f"s_mov_b32 s41, {f2u(LN2):#x}")
    a("v_lshlrev_b32 v8, 2, v2")
    a("s_waitcnt vmcnt(0)")
    for k in range(2):
        a(f"v_lshlrev_b32 v{16+k}, 16, v{16+k}")
        a(f"v_mul_f32 v{16+k}, s40, v{16+k}")
        a(f"v_cvt_pk_bf16_f32 v{20+k}, v{16+k}, v{16+k}")
        a(f"v_and_b32 v{22+k}, 0xffff0000, v{20+k}")
        a(f"v_sub_f32 v{22+k}, v{16+k}, v{22+k}")
        a(f"v_cvt_pk_bf16_f32 v{20+k}, v{16+k}, v{22+k}")
        a(f"v_lshlrev_b32 v{18+k}, 16, v{18+k}")
        a(f"v_mul_f32 v{18+k}, s41, v{18+k}")
    a(f"s_mov_b32 s34, {IMG_WDP}")
    a(f"s_mov_b32 s35, {IMG_WXF}")
    a("buffer_store_dword v20, v8, s[28:31], s34 offen")
    a("buffer_store_dword v21, v8, s[28:31], s34 offen offset:256")
    a("buffer_store_dword v18, v8, s[28:31], s35 offen")
    a("buffer_store_dword v19, v8, s[28:31], s35 offen offset:256")
    a.label("K1_end")
    a("s_endpgm")

K1_KD = f"""
.amdhsa_kernel egnn_prep_kernel
  .amdhsa_next_free_vgpr 104
  .amdhsa_next_free_sgpr 80
  .amdhsa_accum_offset 104
  .amdhsa_group_segment_fixed_size 0
  .amdhsa_kernarg_size 88
  .amdhsa_user_sgpr_count 2
  .amdhsa_user_sgpr_kernarg_segment_ptr 1
  .amdhsa_system_sgpr_workgroup_id_x 1
.end_amdhsa_kernel
"""
```

```python
from asmlib import *
from consts import *
from gen_k1 import srd

MAXT = 29
TS = 3584
O_D2 = 2048; O_EA = 2560
L_CNT = 0
L_OWN = 32
L_WX = 128
L_T0 = 768
L_QS = L_T0 + MAXT * TS
L_MB = L_QS + 32768
MBROW = 272
L_POSP = L_MB + 64 * MBROW
K2_LDS = L_POSP + 8192
assert K2_LDS <= 163840, K2_LDS
assert L_POSP % 32 == 0
L_MACC = L_MB; MROW = 528; L_POSACC = L_MACC + 40 * MROW
assert L_POSACC + 640 <= K2_LDS
PROW = 528
OOB = 0x7FFFFF00
SLOW_BLK = 640
SLOW_NBLK = E // SLOW_BLK

S_WS, S_POS, S_EA, S_OUT, S_H, S_SRC, S_DST = 8, 12, 16, 20, 24, 28, 32
sW, sS, sQ, sT = 36, 37, 38, 39
sONE = 40
sSLOW, sQB, sWSQ, sT240 = 42, 43, 44, 45
sTG = 46
sNT = sTG + 5
sHM = 52
sA, sB, sJ, sEND, sFIRST, sHALF = 54, 55, 56, 57, 58, 59
sLN2, sLOG2E = 60, 61
sV0, sV1 = 80, 82
vQ0, vQ1, vCQ, vSEL, vEA, vST, vLS = 1, 2, 3, 4, 5, 6, 7
vPB = 8; vW4 = 28; vID = 32; vACC = 40; vD1 = 56
vA = 72; vT = 88; vM = 104; vSB = 112
vSN, vFM, vFP = 120, 122, 123
vX, vY, vZ = 124, 125, 126
vPR = 127
vWD = 119
vWXl = 118
vTAB = 40

PROF = False
DBG = set()
def stamp(a, k):
    if not PROF: return
    a("s_memtime s[74:75]")
    a("s_waitcnt lgkmcnt(0)")
    a(f"v_writelane_b32 v{vPR}, s74, {k}")

def B(r): return f"s[{r}:{r+3}]"

def masked(a, cmp, label, body, sv=76):
    a(cmp)
    a(f"s_and_saveexec_b64 s[{sv}:{sv+1}], vcc")
    a(f"s_cbranch_execz {label}")
    body()
    a.label(label)
    a(f"s_mov_b64 exec, s[{sv}:{sv+1}]")

class RS:
    def __init__(self, base):
        self.rec = base; self.g = base + 1; self.dl = base + 2; self.so = base + 3
        self.rk = base + 4; self.tb = base + 5; self.e = base + 6; self.x = base + 7
        self.ps = base + 8; self.pd = base + 10; self.ea = base + 12; self.eid = base + 20
RS0, RS1 = RS(56), RS(80)
vCB, vONE1, vK1, vT32 = 102, 103, 104, 105
vZR = 108

def phase1(a, r):
    a(f"v_and_b32 v{r.so}, 0x3fff, v{r.rec}")
    a(f"v_bfe_u32 v{r.dl}, v{r.rec}, 14, 6")
    a(f"v_mul_u32_u24 v{r.x}, 6, v{r.so}")
    a(f"v_lshlrev_b32 v{r.e}, 5, v{r.eid}")
    a(f"buffer_load_dwordx4 v[{r.ea}:{r.ea+3}], v{r.e}, {B(S_EA)}, 0 offen")
    a(f"buffer_load_dwordx4 v[{r.ea+4}:{r.ea+7}], v{r.e}, {B(S_EA)}, 0 offen offset:16")
    a(f"v_mul_u32_u24 v{r.tb}, 6, v{r.dl}")
    a(f"buffer_load_dword v{r.ps}, v{r.x}, {B(S_POS)}, 0 offen")
    a(f"buffer_load_ushort v{r.ps+1}, v{r.x}, {B(S_POS)}, 0 offen offset:4")
    a(f"buffer_load_dword v{r.pd}, v{r.tb}, {B(S_POS)}, s{sT240} offen")
    a(f"buffer_load_ushort v{r.pd+1}, v{r.tb}, {B(S_POS)}, s{sT240} offen offset:4")
    a(f"v_lshrrev_b32 v{r.g}, 1, v{r.dl}")
    a(f"v_and_b32 v{r.g}, 28, v{r.g}")
    a(f"ds_add_rtn_u32 v{r.rk}, v{r.g}, v{vONE1} offset:{L_CNT}")
    a(f"v_lshlrev_b32 v{r.so}, 8, v{r.so}")
    a(f"v_add_u32 v{r.so}, 256, v{r.so}")

def phase1b(a, r):
    a(f"v_add_u32 v{r.rk}, v{r.rk}, v{r.x}")
    a(f"v_lshrrev_b32 v{r.tb}, 5, v{r.rk}")
    a(f"v_mul_u32_u24 v{r.tb}, {TS}, v{r.tb}")
    a(f"v_and_b32 v{r.e}, 31, v{r.rk}")
    a(f"v_lshl_add_u32 v{r.x}, v{r.e}, 4, v{r.tb}")
    a(f"ds_write_b32 v{r.x}, v{r.so} offset:{L_T0+O_D2+4}")

def phase2(a, r):
    t0, t1, t2 = vX, vY, vZ
    a(f"v_lshl_add_u32 v{r.so}, v{r.e}, 5, v{r.tb}")
    a(f"ds_write_b128 v{r.so}, v[{r.ea}:{r.ea+3}] offset:{L_T0+O_EA}")
    a(f"ds_write_b128 v{r.so}, v[{r.ea+4}:{r.ea+7}] offset:{L_T0+O_EA+16}")
    a(f"v_lshlrev_b32 v{t0}, 16, v{r.ps}")
    a(f"v_lshlrev_b32 v{t1}, 16, v{r.pd}")
    a(f"v_sub_f32 v{t0}, v{t1}, v{t0}")
    a(f"v_and_b32 v{r.ps}, 0xffff0000, v{r.ps}")
    a(f"v_and_b32 v{r.pd}, 0xffff0000, v{r.pd}")
    a(f"v_sub_f32 v{t1}, v{r.pd}, v{r.ps}")
    a(f"v_lshlrev_b32 v{r.ps+1}, 16, v{r.ps+1}")
    a(f"v_lshlrev_b32 v{r.pd+1}, 16, v{r.pd+1}")
    a(f"v_sub_f32 v{t2}, v{r.pd+1}, v{r.ps+1}")
    a(f"v_cvt_pk_bf16_f32 v{r.ps}, v{t0}, v{t1}")
    a(f"v_cvt_pk_bf16_f32 v{r.ps+1}, v{t2}, v{t2}")
    a(f"v_and_b32 v{t2}, 7, v{r.dl}")
    a(f"v_lshl_add_u32 v{r.rk}, v{r.e}, 6, v{r.tb}")
    a(f"v_lshl_add_u32 v{r.rk}, v{t2}, 1, v{r.rk}")
    a(f"ds_write_b16 v{r.rk}, v{vK1} offset:{L_T0}")
    a(f"ds_write_b16 v{r.rk}, v{r.ps} offset:{L_T0+16}")
    a(f"ds_write_b16_d16_hi v{r.rk}, v{r.ps} offset:{L_T0+32}")
    a(f"ds_write_b16 v{r.rk}, v{r.ps+1} offset:{L_T0+48}")
    a(f"v_lshlrev_b32 v{t0}, 16, v{r.ps}")
    a(f"v_and_b32 v{t1}, 0xffff0000, v{r.ps}")
    a(f"v_and_b32 v{t2}, 0xffff0000, v{r.ps+1}")
    a(f"v_mul_f32 v{t0}, v{t0}, v{t0}")
    a(f"v_mul_f32 v{t1}, v{t1}, v{t1}")
    a(f"v_mul_f32 v{t2}, v{t2}, v{t2}")
    a(f"v_cvt_pk_bf16_f32 v{t0}, v{t0}, v{t1}")
    a(f"v_cvt_pk_bf16_f32 v{t2}, v{t2}, v{t2}")
    a(f"v_and_b32 v{t1}, 0xffff0000, v{t0}")
    a(f"v_lshlrev_b32 v{t0}, 16, v{t0}")
    a(f"v_and_b32 v{t2}, 0xffff0000, v{t2}")
    a(f"v_add_f32 v{t0}, v{t0}, v{t1}")
    a(f"v_add_f32 v{t0}, v{t0}, v{t2}")
    a(f"v_cvt_pk_bf16_f32 v{t0}, v{t0}, v{t0}")
    a(f"ds_write_b32 v{r.x}, v{t0} offset:{L_T0+O_D2}")

def table_data():
    out = []
    for s in range(4):
        rows = []
        for l in range(64):
            e = l & 31; hh = l >> 5
            d = []
            for aa in range(2):
                idx = e - 16 * aa - 8 * hh
                for dd in range(4):
                    v = 0
                    if 0 <= idx < 8 and (idx >> 1) == dd: v = 0x3f80 << (16 * (idx & 1))
                    d.append(v)
            f = (e >> 2) & 3
            d.append(e * 64 + ((hh ^ f) * 16))
            d.append(s * 64 + (((l & 3) ^ ((l >> 4) & 3)) * 16))
            d.append(L_T0 + (O_D2 + e * 16 if hh else e * 64))
            d.append(L_T0 + O_EA + e * 32 + hh * 16)
            r = (l >> 2) & 3; cb = (l >> 4) & 1; cc = l & 3
            c = 2 * cb + (cc >> 1); half = cc & 1
            d.append(L_T0 + (4 * hh + r) * 64 + c * 16 + half * 8)
            d.append(L_T0 + O_D2 + (l >> 2) * 16 + 4)
            d.append(L_MB + (e & 7) * MBROW + hh * 8 + s * 64)
            d.append(L_POSP + e * 32 + hh * 16 + s * 4)
            rows.append(d)
        for ch in range(4):
            for l in range(64):
                out += rows[l][4 * ch: 4 * ch + 4]
    return out

def gen_k2(a):
    a(f"s_cmp_ge_u32 s2, {T}")
    a("s_cbranch_scc1 K2_end")
    stamp(a, 0)
    if "rt" in DBG: rt_begin(a, 84)
    if "clk2" in DBG:
        a("s_memtime s[86:87]")
        a("s_memrealtime s[88:89]")
    a("s_load_dwordx2 s[4:5], s[0:1], 80")
    a("s_load_dwordx4 s[64:67], s[0:1], 0")
    a("s_load_dwordx2 s[68:69], s[0:1], 16")
    a("s_load_dwordx2 s[70:71], s[0:1], 64")
    a("s_getpc_b64 s[62:63]")
    a.label("K2_pc")
    a(f"s_mov_b32 s{sT}, s2")
    a(f"v_lshrrev_b32 v{vX}, 4, v0")
    a(f"v_lshlrev_b32 v{vY}, 6, v{vX}")
    a(f"v_lshl_add_u32 v{vY}, v0, 2, v{vY}")
    a(f"v_mul_u32_u24 v{vCB}, {CH}, v{vX}")
    a(f"v_lshrrev_b32 v{vX}, 6, v0")
    a(f"v_readfirstlane_b32 s{sW}, v{vX}")
    a(f"v_and_b32 v{vZ}, 63, v0")
    a(f"s_lshl_b32 s3, s{sT}, 13")
    a(f"s_add_u32 s62, s62, K2_table-K2_pc")
    a(f"s_addc_u32 s63, s63, 0")
    a(f"s_and_b32 s{sS}, s{sW}, 3")
    a(f"s_lshr_b32 s{sQ}, s{sW}, 2")
    a(f"v_lshlrev_b32 v{vX}, 4, v{vZ}")
    a(f"s_lshl_b32 s72, s{sS}, 12")
    a(f"v_add_u32 v{vSN}, s72, v{vX}")
    a("s_waitcnt lgkmcnt(0)")
    stamp(a, 1)
    srd(a, S_WS, 4, 5, WS_END)
    a(f"buffer_load_dword v{RS0.rec}, v{vY}, {B(S_WS)}, s3 offen")
    a(f"buffer_load_dword v{RS1.rec}, v{vY}, {B(S_WS)}, s3 offen offset:64")
    a(f"global_load_dwordx4 v[{vID}:{vID+3}], v{vSN}, s[62:63]")
    a(f"global_load_dwordx4 v[{vID+4}:{vID+7}], v{vSN}, s[62:63] offset:1024")
    a(f"global_load_dwordx4 v[{vTAB}:{vTAB+3}], v{vSN}, s[62:63] offset:2048")
    a(f"global_load_dwordx4 v[{vTAB+4}:{vTAB+7}], v{vSN}, s[62:63] offset:3072")
    srd(a, S_POS, 66, 67, N * 6)
    srd(a, S_EA, 68, 69, E * 32)
    a(f"s_lshl_b32 s3, s{sS}, 10")
    a(f"s_add_u32 s3, s3, {WS_IMG + IMG_W4}")
    a(f"buffer_load_dwordx4 v[{vW4}:{vW4+3}], v{vX}, {B(S_WS)}, s3 offen")
    a(f"v_mov_b32 v{vY}, {OOB:#x}")
    a(f"v_cmp_gt_u32 vcc, 32, v{vZ}")
    a(f"v_cndmask_b32 v{vY}, v{vY}, v{vX}, vcc")
    a(f"s_mul_i32 s3, s{sT}, {5*2048}")
    a(f"s_lshl_b32 s72, s{sS}, 9")
    a(f"s_add_u32 s3, s3, s72")
    a(f"s_add_u32 s3, s3, {WS_P}")
    for g in range(5):
        if g == 2: a("s_add_u32 s3, s3, 4096")
        if g == 4: a("s_add_u32 s3, s3, 4096")
        a(f"buffer_load_dwordx4 v[{vPB+4*g}:{vPB+4*g+3}], v{vY}, {B(S_WS)}, s3 offen offset:{(g%2)*2048}")
    a(f"v_and_b32 v{vY}, 31, v{vZ}")
    a(f"v_lshlrev_b32 v{vY}, 2, v{vY}")
    a(f"s_lshl_b32 s3, s{sS}, 7")
    a(f"s_add_u32 s3, s3, {WS_IMG + IMG_WDP}")
    a(f"buffer_load_dword v{vWD}, v{vY}, {B(S_WS)}, s3 offen")
    a(f"v_lshlrev_b32 v{vY}, 2, v0")
    a(f"s_mov_b32 s3, {WS_IMG + IMG_WXF}")
    a(f"buffer_load_dword v{vWXl}, v{vY}, {B(S_WS)}, s3 offen")
    srd(a, S_OUT, 70, 71, N * 262)
    srd(a, S_H, 64, 65, N * 256)
    a(f"s_mov_b32 s{sONE}, 1.0")
    a(f"s_mov_b32 s{sONE+1}, 1.0")
    a(f"s_mov_b32 s{sSLOW}, 0")
    a(f"s_mov_b32 s{sWSQ}, {WS_Q}")
    a(f"s_mul_i32 s{sT240}, s{sT}, 240")
    a(f"s_lshl_b32 s{sQB}, s{sW}, 11")
    a(f"s_add_u32 s{sQB}, s{sQB}, {L_QS}")
    a(f"s_mov_b32 s{sLN2}, {f2u(LN2):#x}")
    a(f"s_mov_b32 s{sLOG2E}, {f2u(LOG2E):#x}")
    a.label("K2_batch")
    a.clear_hist()
    a(f"v_lshlrev_b32 v{vZ}, 4, v0")
    for r in range(4): a(f"v_mov_b32 v{vZR+r}, 0")
    ZR = f"v[{vZR}:{vZR+3}]"
    nfull = (MAXT * TS) // 16384
    for i in range(3): a(f"ds_write_b128 v{vZ}, {ZR} offset:{L_T0+i*16384}")
    a(f"v_add_u32 v{vX}, 49152, v{vZ}")
    for i in range(3, nfull): a(f"ds_write_b128 v{vX}, {ZR} offset:{L_T0+i*16384-49152}")
    rem = MAXT * TS - nfull * 16384
    masked(a, f"v_cmp_gt_u32 vcc, {rem//16}, v0", "K2_zf", lambda: a(f"ds_write_b128 v{vX}, {ZR} offset:{L_T0+nfull*16384-49152}"))
    masked(a, "v_cmp_gt_u32 vcc, 6, v0", "K2_cz", lambda: a(f"ds_write_b128 v{vZ}, {ZR}"))
    a(f"v_mov_b32 v{vONE1}, 1")
    a(f"v_mov_b32 v{vK1}, 0x3f80")
    a(f"s_cmp_lg_u32 s{sSLOW}, 0")
    a("s_cbranch_scc1 K2_slowload")
    a("s_waitcnt lgkmcnt(0)")
    a("s_barrier")
    stamp(a, 2)
    a("s_waitcnt vmcnt(12)")
    stamp(a, 3)
    for r in (RS0, RS1):
        a(f"v_lshrrev_b32 v{r.eid}, 20, v{r.rec}")
        a(f"v_add_u32 v{r.eid}, v{r.eid}, v{vCB}")
    a.label("K2_sort")
    a.clear_hist()
    a(f"v_cmp_gt_u32 s[{sV0}:{sV0+1}], -2, v{RS0.rec}")
    a(f"v_cmp_gt_u32 s[{sV1}:{sV1+1}], -2, v{RS1.rec}")
    a(f"v_cmp_eq_u32 vcc, -2, v{RS1.rec}")
    a("s_cbranch_vccz K2_nomark")
    a(f"v_mov_b32 v{vX}, 0")
    a(f"v_mov_b32 v{vY}, 0x10000")
    a("s_mov_b64 exec, vcc")
    a(f"ds_add_u32 v{vX}, v{vY} offset:{L_CNT}")
    a("s_mov_b64 exec, -1")
    a.label("K2_nomark")
    a(f"s_mov_b64 exec, s[{sV0}:{sV0+1}]")
    a("s_cbranch_execz K2_p1a")
    phase1(a, RS0)
    a.label("K2_p1a")
    a(f"s_mov_b64 exec, s[{sV1}:{sV1+1}]")
    a("s_cbranch_execz K2_p1b")
    phase1(a, RS1)
    a.label("K2_p1b")
    a("s_mov_b64 exec, -1")
    a("s_waitcnt lgkmcnt(0)")
    a("s_barrier")
    stamp(a, 4)
    a(f"v_and_b32 v{vX}, 7, v0")
    a(f"v_lshlrev_b32 v{vX}, 2, v{vX}")
    a(f"ds_read_b32 v{vY}, v{vX} offset:{L_CNT}")
    a("s_waitcnt lgkmcnt(0)")
    a(f"v_add_u32 v{vT32}, 31, v{vY}")
    a(f"v_lshrrev_b32 v{vT32}, 5, v{vT32}")
    a(f"v_add_u32 v{vZ}, -1, v{vY}")
    a(f"v_and_b32 v{vZ}, 31, v{vZ}")
    a(f"v_cmp_gt_u32 s[{sHM}:{sHM+1}], 16, v{vZ}")
    a(f"v_mov_b32 v{vY}, v{vT32}")
    for sh in (1, 2, 4):
        a(f"v_add_u32_dpp v{vT32}, v{vT32}, v{vT32} row_shr:{sh} row_mask:0xf bank_mask:0xf bound_ctrl:0")
    for g in range(5):
        a(f"v_readlane_b32 s{sTG+g+1}, v{vT32}, {g}")
    a(f"s_mov_b32 s{sTG}, 0")
    a(f"v_sub_u32 v{vT32}, v{vT32}, v{vY}")
    a(f"v_lshlrev_b32 v{vT32}, 5, v{vT32}")
    a(f"s_cmp_lg_u32 s{sSLOW}, 0")
    a("s_cbranch_scc1 K2_go")
    a(f"s_cmp_gt_u32 s{sNT}, {MAXT}")
    a("s_cbranch_scc1 K2_toslow")
    a.label("K2_go")
    a(f"ds_bpermute_b32 v{RS0.x}, v{RS0.g}, v{vT32}")
    a(f"ds_bpermute_b32 v{RS1.x}, v{RS1.g}, v{vT32}")
    a("s_waitcnt lgkmcnt(0)")
    a(f"s_mov_b64 exec, s[{sV0}:{sV0+1}]")
    a("s_cbranch_execz K2_p1c")
    phase1b(a, RS0)
    a.label("K2_p1c")
    a(f"s_mov_b64 exec, s[{sV1}:{sV1+1}]")
    a("s_cbranch_execz K2_p1d")
    phase1b(a, RS1)
    a.label("K2_p1d")
    a("s_mov_b64 exec, -1")
    a(f"s_mul_i32 s{sA}, s{sQ}, s{sNT}")
    a(f"s_add_u32 s{sB}, s{sA}, s{sNT}")
    a(f"s_lshr_b32 s{sA}, s{sA}, 2")
    a(f"s_lshr_b32 s{sB}, s{sB}, 2")
    a(f"s_mul_i32 s3, s{sA}, {TS}")
    a(f"s_cmp_lg_u32 s{sSLOW}, 0")
    a("s_cbranch_scc1 K2_slowaddr")
    a("s_waitcnt vmcnt(6)")
    a.label("K2_addr")
    a(f"v_add_u32 v{vQ0}, s{sQB}, v{vTAB}")
    a(f"v_xor_b32 v{vQ1}, 32, v{vQ0}")
    a(f"v_mov_b32 v{vCQ}, v{vTAB+1}")
    a(f"v_add_u32 v{vSEL}, s3, v{vTAB+2}")
    a(f"v_add_u32 v{vEA}, s3, v{vTAB+3}")
    a(f"v_add_u32 v{vST}, s3, v{vTAB+4}")
    a(f"v_add_u32 v{vLS}, s3, v{vTAB+5}")
    a(f"s_mul_i32 s72, s{sQ}, {8*MBROW}")
    a(f"v_add_u32 v{vFM}, s72, v{vTAB+6}")
    a(f"s_lshl_b32 s72, s{sQ}, 10")
    a(f"v_add_u32 v{vFP}, s72, v{vTAB+7}")
    a("s_waitcnt lgkmcnt(0)")
    a("s_barrier")
    stamp(a, 5)
    a(f"s_cmp_ge_u32 s{sA}, s{sB}")
    a("s_cbranch_scc1 K2_noq0")
    a(f"ds_read2_b32 v[{vSN}:{vSN+1}], v{vLS} offset0:0 offset1:64")
    a("s_waitcnt lgkmcnt(0)")
    a(f"v_add_u32 v{vSN}, v{vSN}, v{vCQ}")
    a(f"v_add_u32 v{vSN+1}, v{vSN+1}, v{vCQ}")
    a(f"s_mov_b32 m0, s{sQB}")
    a(f"buffer_load_dwordx4 v{vSN}, {B(S_WS)}, s{sWSQ} offen lds")
    a(f"s_add_u32 m0, s{sQB}, 1024")
    a(f"buffer_load_dwordx4 v{vSN+1}, {B(S_WS)}, s{sWSQ} offen lds")
    a("s_waitcnt vmcnt(2)")
    a("s_branch K2_q0done")
    a.label("K2_noq0")
    a("s_waitcnt vmcnt(0)")
    a.label("K2_q0done")
    a.clear_hist()
    stamp(a, 6)
    a(f"v_add_u32 v{vLS}, {TS}, v{vLS}")
    a(f"s_mov_b64 exec, s[{sV0}:{sV0+1}]")
    a("s_cbranch_execz K2_p2a")
    phase2(a, RS0)
    a.label("K2_p2a")
    a(f"s_mov_b64 exec, s[{sV1}:{sV1+1}]")
    a("s_cbranch_execz K2_p2b")
    phase2(a, RS1)
    a.label("K2_p2b")
    a("s_mov_b64 exec, -1")
    a(f"s_cmp_gt_u32 s{sSLOW}, 1")
    a("s_cbranch_scc1 K2_nofirst")
    a("s_mov_b64 exec, 0")
    a("s_mov_b32 exec_hi, -1")
    for g in range(5): a(f"v_mov_b32 v{vPB+4*g}, v{vWD}")
    a("s_mov_b64 exec, -1")
    def wxw():
        a(f"v_lshlrev_b32 v{vX}, 2, v0")
        a(f"v_add_u32 v{vX}, {L_WX}, v{vX}")
        a(f"ds_write_b32 v{vX}, v{vWXl}")
    masked(a, "v_cmp_gt_u32 vcc, 128, v0", "K2_wx", wxw)
    a.label("K2_nofirst")
    a(f"s_mov_b32 s{sJ}, s{sA}")
    a("s_waitcnt lgkmcnt(0)")
    a("s_barrier")
    stamp(a, 7)
    for g in range(5):
        main_group(a, g)
    a.label("K2_mainend")
    a.clear_hist()
    stamp(a, 8)
    a(f"s_cmp_eq_u32 s{sSLOW}, 0")
    a("s_cbranch_scc1 K2_epi")
    a(f"s_add_u32 s{sSLOW}, s{sSLOW}, 1")
    a(f"s_cmp_gt_u32 s{sSLOW}, {SLOW_NBLK}")
    a("s_cbranch_scc1 K2_slowend")
    a("s_waitcnt vmcnt(0) lgkmcnt(0)")
    a("s_barrier")
    a("s_branch K2_batch")
    a.label("K2_epi")
    a.clear_hist()
    epilogue(a)
    a.label("K2_end")
    a("s_endpgm")
    slow_code(a)
    a.raw(".p2align 8")
    a.label("K2_table")
    td = table_data()
    for i in range(0, len(td), 8):
        a.raw("    .long " + ", ".join(f"{v:#x}" for v in td[i:i+8]))

def silu_half(a, h):
    r0 = 8 * h
    if "nosilu" in DBG: return
    for i in range(r0, r0 + 8): a(f"v_exp_f32 v{vT+i}, -v{vD1+i}")
    for i in range(r0, r0 + 8, 2): a(f"v_pk_add_f32 v[{vT+i}:{vT+i+1}], v[{vT+i}:{vT+i+1}], s[{sONE}:{sONE+1}]")
    for i in range(r0, r0 + 8): a(f"v_rcp_f32 v{vT+i}, v{vT+i}")
    for i in range(r0, r0 + 8, 2): a(f"v_pk_mul_f32 v[{vT+i}:{vT+i+1}], v[{vT+i}:{vT+i+1}], v[{vD1+i}:{vD1+i+1}]")
    for i in range(r0, r0 + 8, 2): a(f"v_cvt_pk_bf16_f32 v{vM+i//2}, v{vT+i}, v{vT+i+1}")

def main_group(a, g):
    L = f"K2_g{g}"
    pb = vPB + 4 * g
    D1 = f"v[{vD1}:{vD1+15}]"; ACC = f"v[{vACC}:{vACC+15}]"
    a.label(L)
    a.clear_hist()
    a(f"s_min_u32 s{sEND}, s{sB}, s{sTG+g+1}")
    a(f"s_cmp_ge_u32 s{sJ}, s{sEND}")
    a(f"s_cbranch_scc1 {L}_done")
    a(f"s_sub_u32 s{sHALF}, s{sTG+g+1}, 1")
    a(f"s_bitcmp1_b32 s{sHM}, {g}")
    a(f"s_cselect_b32 s{sHALF}, s{sHALF}, -1")
    a(f"s_mov_b32 s{sFIRST}, 1")
    a.label(f"{L}_loop")
    a.clear_hist()
    a(f"ds_read2_b32 v[{vSN}:{vSN+1}], v{vLS} offset0:0 offset1:64")
    a(f"ds_read_b128 v[{vA+8}:{vA+11}], v{vEA}")
    a(f"ds_read_b128 v[{vA+12}:{vA+15}], v{vSEL}")
    a("s_waitcnt vmcnt(0)")
    a(f"ds_read_b128 v[{vA}:{vA+3}], v{vQ0}")
    a(f"ds_read_b128 v[{vA+4}:{vA+7}], v{vQ1}")
    a("s_waitcnt lgkmcnt(2)")
    a(f"v_mfma_f32_32x32x16_bf16 {D1}, v[{vA+8}:{vA+11}], v[{vW4}:{vW4+3}], 0")
    a(f"v_mfma_f32_32x32x16_bf16 {D1}, v[{vA+12}:{vA+15}], v[{pb}:{pb+3}], {D1}")
    if "notr" not in DBG:
        for i in range(4):
            a(f"ds_read_b64_tr_b16 v[{vSB+2*i}:{vSB+2*i+1}], v{vST} offset:{512*i}")
        a("s_waitcnt lgkmcnt(4)")
    else:
        a("s_waitcnt lgkmcnt(0)")
    a(f"v_mfma_f32_32x32x16_bf16 {D1}, v[{vA}:{vA+3}], v[{vID}:{vID+3}], {D1}")
    a(f"v_mfma_f32_32x32x16_bf16 {D1}, v[{vA+4}:{vA+7}], v[{vID+4}:{vID+7}], {D1}")
    a(f"s_add_u32 s72, s{sJ}, 1")
    a(f"s_cmp_ge_u32 s72, s{sB}")
    if "nodma" in DBG: a(f"s_branch {L}_nodma")
    a(f"s_cbranch_scc1 {L}_nodma")
    a(f"v_add_u32 v{vSN}, v{vSN}, v{vCQ}")
    a(f"v_add_u32 v{vSN+1}, v{vSN+1}, v{vCQ}")
    a(f"s_mov_b32 m0, s{sQB}")
    a(f"buffer_load_dwordx4 v{vSN}, {B(S_WS)}, s{sWSQ} offen lds")
    a(f"s_add_u32 m0, s{sQB}, 1024")
    a(f"buffer_load_dwordx4 v{vSN+1}, {B(S_WS)}, s{sWSQ} offen lds")
    a.label(f"{L}_nodma")
    for r in (vLS, vEA, vSEL, vST):
        a(f"v_add_u32 v{r}, {TS}, v{r}")
    a("s_nop 7")
    a("s_nop 1")
    silu_half(a, 0)
    a("s_waitcnt lgkmcnt(0)")
    a(f"s_cmp_eq_u32 s{sFIRST}, 0")
    a(f"s_cbranch_scc1 {L}_acc")
    a(f"v_mfma_f32_32x32x16_bf16 {ACC}, v[{vM}:{vM+3}], v[{vSB}:{vSB+3}], 0")
    a(f"s_mov_b32 s{sFIRST}, 0")
    a(f"s_branch {L}_acc2")
    a.label(f"{L}_acc")
    a(f"v_mfma_f32_32x32x16_bf16 {ACC}, v[{vM}:{vM+3}], v[{vSB}:{vSB+3}], {ACC}")
    a.label(f"{L}_acc2")
    a(f"s_cmp_eq_u32 s{sJ}, s{sHALF}")
    a(f"s_cbranch_scc1 {L}_skip2")
    silu_half(a, 1)
    a(f"v_mfma_f32_32x32x16_bf16 {ACC}, v[{vM+4}:{vM+7}], v[{vSB+4}:{vSB+7}], {ACC}")
    a.label(f"{L}_skip2")
    a(f"s_add_u32 s{sJ}, s{sJ}, 1")
    a(f"s_cmp_lt_u32 s{sJ}, s{sEND}")
    a(f"s_cbranch_scc1 {L}_loop")
    a.clear_hist()
    if "noflush" in DBG: a(f"s_branch {L}_done")
    a(f"v_and_b32 v{vX}, 16, v{vFP}")
    a(f"s_lshl_b32 s72, s{sS}, 7")
    a(f"s_add_u32 s72, s72, {L_WX}")
    a(f"v_add_u32 v{vX}, s72, v{vX}")
    for q4 in range(4):
        a(f"ds_read_b128 v[{vT+4*q4}:{vT+4*q4+3}], v{vX} offset:{q4*32}")
    a(f"s_cmp_lg_u32 s{sSLOW}, 0")
    a(f"s_cbranch_scc1 {L}_sflush")
    a("s_nop 7")
    for p in range(8):
        a(f"v_cvt_pk_bf16_f32 v{vM+p}, v{vACC+2*p}, v{vACC+2*p+1}")
    a("s_mov_b32 exec_lo, 0xff")
    a("s_mov_b32 exec_hi, 0xff")
    for gm in range(4):
        a(f"ds_write_b64 v{vFM}, v[{vM+2*gm}:{vM+2*gm+1}] offset:{g*8*MBROW + gm*16}")
    a("s_mov_b64 exec, -1")
    a("s_waitcnt lgkmcnt(4)")
    a(f"v_pk_mul_f32 v[{vSB}:{vSB+1}], v[{vACC}:{vACC+1}], v[{vT}:{vT+1}]")
    for i in range(2, 16, 2):
        a(f"v_pk_fma_f32 v[{vSB}:{vSB+1}], v[{vACC+i}:{vACC+i+1}], v[{vT+i}:{vT+i+1}], v[{vSB}:{vSB+1}]")
    a(f"v_add_f32 v{vSB}, v{vSB}, v{vSB+1}")
    a(f"ds_write_b32 v{vFP}, v{vSB} offset:{g*1024}")
    a(f"s_cmp_lg_u32 s{sS}, 0")
    a(f"s_cbranch_scc1 {L}_done")
    a(f"s_lshl_b32 s72, s{sQ}, 2")
    a(f"v_mov_b32 v{vX}, s72")
    a(f"v_mov_b32 v{vY}, {g+1}")
    a("s_mov_b64 exec, 1")
    a(f"ds_write_b32 v{vX}, v{vY} offset:{L_OWN + 4*g}")
    a("s_mov_b64 exec, -1")
    a.label(f"{L}_done")

def epilogue(a):
    D0 = f"v[{vACC}:{vACC+15}]"
    vB = 56
    vAf = 88
    a(f"v_and_b32 v4, 63, v0")
    a(f"s_mul_i32 s73, s{sT}, {40*256}")
    a(f"s_cmp_ge_u32 s{sQ}, 2")
    a("s_cbranch_scc1 K2_e0")
    a(f"v_lshlrev_b32 v5, 4, v4")
    a(f"s_lshl_b32 s3, s{sS}, 13")
    a(f"s_add_u32 s3, s3, {WS_IMG + IMG_WH}")
    a(f"s_add_u32 s72, s3, 4096")
    for ks in range(8):
        so = "s3" if ks < 4 else "s72"
        a(f"buffer_load_dwordx4 v[{vB+4*ks}:{vB+4*ks+3}], v5, {B(S_WS)}, {so} offen offset:{(ks%4)*1024}")
    a.label("K2_e0")
    a(f"v_lshlrev_b32 v2, 4, v0")
    a(f"v_mov_b32 v3, {OOB:#x}")
    a("v_cmp_gt_u32 vcc, 640, v0")
    a("v_cndmask_b32 v2, v3, v2, vcc")
    a(f"buffer_load_dwordx4 v[28:31], v2, {B(S_H)}, s73 offen")
    a(f"s_add_u32 s72, s73, {WS_R}")
    a(f"buffer_load_dwordx4 v[32:35], v2, {B(S_WS)}, s72 offen")
    a("v_subrev_u32 v7, 640, v0")
    a("v_lshlrev_b32 v6, 1, v7")
    a("v_cmp_gt_u32 vcc, 120, v7")
    a("v_cndmask_b32 v6, v3, v6, vcc")
    a(f"buffer_load_ushort v36, v6, {B(S_POS)}, s{sT240} offen")
    a("s_waitcnt lgkmcnt(0)")
    a("s_barrier")
    stamp(a, 9)
    a(f"s_cmp_ge_u32 s{sQ}, 2")
    a("s_cbranch_scc1 K2_e1")
    a("v_and_b32 v8, 31, v4")
    a("v_lshrrev_b32 v9, 5, v4")
    a(f"v_mul_u32_u24 v10, {MBROW}, v8")
    a("v_lshl_add_u32 v10, v9, 4, v10")
    a(f"s_mul_i32 s3, s{sQ}, {32*MBROW}")
    a(f"s_add_u32 s3, s3, {L_MB}")
    a("v_add_u32 v10, s3, v10")
    for ks in range(8):
        a(f"ds_read_b128 v[{vAf+4*ks}:{vAf+4*ks+3}], v10 offset:{ks*32}")
    a(f"v_mul_u32_u24 v11, {4*PROW}, v9")
    a("v_lshl_add_u32 v11, v8, 2, v11")
    a(f"s_mul_i32 s3, s{sQ}, {32*PROW}")
    a(f"s_lshl_b32 s72, s{sS}, 7")
    a(f"s_add_u32 s3, s3, s72")
    a(f"s_add_u32 s3, s3, {L_T0}")
    a("v_add_u32 v11, s3, v11")
    a("s_waitcnt vmcnt(3) lgkmcnt(0)")
    for ks in range(8):
        c = "0" if ks == 0 else D0
        a(f"v_mfma_f32_32x32x16_bf16 {D0}, v[{vAf+4*ks}:{vAf+4*ks+3}], v[{vB+4*ks}:{vB+4*ks+3}], {c}")
    for r in range(16):
        a(f"ds_write_b32 v11, v{vACC+r} offset:{(8*(r//4)+r%4)*PROW}")
    a.label("K2_e1")
    a.clear_hist()
    a("s_waitcnt lgkmcnt(0)")
    a("s_barrier")
    stamp(a, 10)
    a(f"s_cmp_ge_u32 s{sW}, 12")
    a("s_cbranch_scc1 K2_end")
    a(f"s_cmp_ge_u32 s{sW}, 10")
    a("s_cbranch_scc1 K2_e_pos")
    a(f"s_lshr_b32 s3, s{sW}, 1")
    a(f"s_lshl_b32 s72, s3, 2")
    a("v_mov_b32 v8, s72")
    a(f"ds_read2_b32 v[10:11], v8 offset0:{L_OWN//4} offset1:{L_OWN//4+1}")
    a(f"ds_read2_b32 v[12:13], v8 offset0:{L_OWN//4+2} offset1:{L_OWN//4+3}")
    a("v_lshrrev_b32 v5, 4, v0")
    a("v_and_b32 v5, 7, v5")
    a("v_and_b32 v6, 15, v0")
    a(f"v_mul_u32_u24 v5, {PROW}, v5")
    a("v_lshl_add_u32 v5, v6, 5, v5")
    a(f"s_mul_i32 s72, s3, {8*PROW}")
    a(f"s_add_u32 s72, s72, {L_T0}")
    a("v_add_u32 v5, s72, v5")
    for r in range(8): a(f"v_mov_b32 v{40+r}, 0")
    a("s_add_u32 s3, s3, 1")
    a("s_waitcnt lgkmcnt(0)")
    for q in range(4):
        a(f"v_readfirstlane_b32 s72, v{10+q}")
        a(f"s_cmp_lg_u32 s72, s3")
        a(f"s_cbranch_scc1 K2_f{q}")
        a(f"ds_read_b128 v[48:51], v5 offset:{q*8*PROW}")
        a(f"ds_read_b128 v[52:55], v5 offset:{q*8*PROW+16}")
        a("s_waitcnt lgkmcnt(0)")
        for r in range(8): a(f"v_add_f32 v{40+r}, v{40+r}, v{48+r}")
        a.label(f"K2_f{q}")
        a.clear_hist()
    a("s_waitcnt vmcnt(0)")
    for p in range(4):
        a(f"v_lshlrev_b32 v{48+2*p}, 16, v{32+p}")
        a(f"v_and_b32 v{49+2*p}, 0xffff0000, v{32+p}")
    a(f"v_mov_b32 v56, s{sLN2}")
    a(f"v_mov_b32 v57, s{sLOG2E}")
    for r in range(8): a(f"v_fmac_f32 v{48+r}, v56, v{40+r}")
    for r in range(8): a(f"v_mul_f32 v{40+r}, v57, v{48+r}")
    for r in range(8): a(f"v_exp_f32 v{40+r}, -v{40+r}")
    for r in range(8): a(f"v_add_f32 v{40+r}, 1.0, v{40+r}")
    for r in range(8): a(f"v_rcp_f32 v{40+r}, v{40+r}")
    for r in range(8): a(f"v_mul_f32 v{40+r}, v{48+r}, v{40+r}")
    for p in range(4): a(f"v_cvt_pk_bf16_f32 v{48+p}, v{40+2*p}, v{41+2*p}")
    for p in range(4):
        a(f"v_lshlrev_b32 v{40+2*p}, 16, v{48+p}")
        a(f"v_and_b32 v{41+2*p}, 0xffff0000, v{48+p}")
        a(f"v_lshlrev_b32 v{56+2*p}, 16, v{28+p}")
        a(f"v_and_b32 v{57+2*p}, 0xffff0000, v{28+p}")
    for r in range(8): a(f"v_add_f32 v{40+r}, v{40+r}, v{56+r}")
    for p in range(4): a(f"v_cvt_pk_bf16_f32 v{48+p}, v{40+2*p}, v{41+2*p}")
    a(f"buffer_store_dwordx4 v[48:51], v2, {B(S_OUT)}, s73 offen")
    if PROF:
        a("s_waitcnt vmcnt(0)")
        stamp(a, 11)
        prof_out(a)
    if "clk2" in DBG:
        a("s_waitcnt vmcnt(0) lgkmcnt(0)")
        a("s_memtime s[90:91]")
        a("s_memrealtime s[92:93]")
        a("s_load_dwordx2 s[64:65], s[0:1], 72")
        a("s_waitcnt lgkmcnt(0)")
        a("s_sub_u32 s90, s90, s86")
        a("s_sub_u32 s92, s92, s88")
        a("s_mov_b32 s66, 256")
        a("s_mov_b32 s67, 0x20000")
        a("v_mov_b32 v100, s90")
        a("v_mov_b32 v101, s92")
        a(f"s_lshl_b32 s62, s{sT}, 3")
        a("v_mov_b32 v102, 0x7fffff00")
        a("v_cmp_eq_u32 vcc, 0, v0")
        a("v_cndmask_b32 v103, v102, v0, vcc")
        a("buffer_store_dwordx2 v[100:101], v103, s[64:67], s62 offen")
        a("s_waitcnt vmcnt(0)")
    if "rt" in DBG: rt_end(a, 84, 64, 1, sT, 100, "")
    a("s_endpgm")
    a.label("K2_e_pos")
    a.clear_hist()
    a("v_cmp_gt_u32 vcc, 120, v7")
    a("s_and_saveexec_b64 s[76:77], vcc")
    a("s_cbranch_execz K2_end")
    a("v_mul_u32_u24 v8, 43691, v7")
    a("v_lshrrev_b32 v8, 17, v8")
    a("v_mul_u32_u24 v9, 3, v8")
    a("v_sub_u32 v9, v7, v9")
    a("v_lshrrev_b32 v10, 3, v8")
    a("v_and_b32 v11, 7, v8")
    a("v_add_u32 v9, 1, v9")
    a("v_lshl_add_u32 v9, v9, 3, v11")
    a("v_lshlrev_b32 v9, 5, v9")
    a("v_lshl_add_u32 v9, v10, 10, v9")
    a(f"v_add_u32 v9, {L_POSP}, v9")
    a("v_lshlrev_b32 v12, 2, v10")
    a(f"v_add_u32 v12, {L_OWN}, v12")
    a("v_add_u32 v10, 1, v10")
    a("v_mov_b32 v13, 0")
    for q in range(4):
        a(f"ds_read_b32 v14, v12 offset:{4*q}")
        a(f"ds_read_b128 v[16:19], v9 offset:{q*1024}")
        a(f"ds_read_b128 v[20:23], v9 offset:{q*1024+16}")
        a("s_waitcnt lgkmcnt(0)")
        a("v_add_f32 v16, v16, v17"); a("v_add_f32 v18, v18, v19")
        a("v_add_f32 v20, v20, v21"); a("v_add_f32 v22, v22, v23")
        a("v_add_f32 v16, v16, v18"); a("v_add_f32 v20, v20, v22")
        a("v_add_f32 v16, v16, v20")
        a("v_cmp_eq_u32 vcc, v14, v10")
        a("v_cndmask_b32 v16, 0, v16, vcc")
        a("v_add_f32 v13, v13, v16")
    a("s_waitcnt vmcnt(0)")
    a("v_lshlrev_b32 v36, 16, v36")
    a("v_add_f32 v13, v13, v36")
    a("v_cvt_pk_bf16_f32 v13, v13, v13")
    a(f"s_add_u32 s3, s{sT240}, {N*256}")
    a(f"buffer_store_short v13, v6, {B(S_OUT)}, s3 offen")
    a("s_endpgm")

def prof_out(a):
    a(f"s_cmp_ge_u32 s{sT}, 4")
    a("s_cbranch_scc1 K2_sto")
    a(f"s_cmp_lg_u32 s{sW}, 0")
    a("s_cbranch_scc1 K2_sto")
    a(f"v_writelane_b32 v{vPR}, s{sNT}, 14")
    a("s_load_dwordx2 s[64:65], s[0:1], 72")
    a("s_waitcnt lgkmcnt(0)")
    a("s_mov_b32 s66, 256")
    a("s_mov_b32 s67, 0x20000")
    a(f"v_lshlrev_b32 v{vX}, 2, v0")
    a(f"v_mov_b32 v3, {OOB:#x}")
    a(f"v_cmp_gt_u32 vcc, 16, v0")
    a(f"v_cndmask_b32 v{vX}, v3, v{vX}, vcc")
    a(f"s_lshl_b32 s3, s{sT}, 6")
    a(f"buffer_store_dword v{vPR}, v{vX}, s[64:67], s3 offen")
    a("s_waitcnt vmcnt(0)")
    a.label("K2_sto")

def slow_code(a):
    a.label("K2_toslow")
    a.clear_hist()
    a(f"s_mov_b32 s{sSLOW}, 1")
    a("s_load_dwordx4 s[64:67], s[0:1], 24")
    a("s_waitcnt vmcnt(0) lgkmcnt(0)")
    srd(a, S_SRC, 64, 65, E * 4)
    srd(a, S_DST, 66, 67, E * 4)
    a("s_barrier")
    a(f"v_lshlrev_b32 v{vX}, 4, v0")
    a(f"v_add_u32 v{vX}, {L_MACC}, v{vX}")
    for r in range(4): a(f"v_mov_b32 v{vZR+r}, 0")
    a(f"ds_write_b128 v{vX}, v[{vZR}:{vZR+3}]")
    masked(a, f"v_cmp_gt_u32 vcc, {(40*MROW+640-16384)//16}, v0", "K2_sz", lambda: a(f"ds_write_b128 v{vX}, v[{vZR}:{vZR+3}] offset:16384"))
    a("s_waitcnt lgkmcnt(0)")
    a("s_barrier")
    a("s_branch K2_batch")
    a.label("K2_slowload")
    a.clear_hist()
    a(f"s_sub_u32 s3, s{sSLOW}, 1")
    a(f"s_mul_i32 s3, s3, {SLOW_BLK}")
    a(f"v_add_u32 v{RS0.eid}, s3, v0")
    a(f"v_lshlrev_b32 v{vX}, 2, v{RS0.eid}")
    a(f"v_mov_b32 v{vY}, {OOB:#x}")
    a(f"v_cmp_gt_u32 vcc, {SLOW_BLK}, v0")
    a(f"v_cndmask_b32 v{vX}, v{vY}, v{vX}, vcc")
    a(f"buffer_load_dword v{RS0.dl}, v{vX}, {B(S_DST)}, 0 offen")
    a(f"buffer_load_dword v{RS0.so}, v{vX}, {B(S_SRC)}, 0 offen")
    a(f"s_mul_i32 s3, s{sT}, 40")
    a(f"v_mov_b32 v{RS1.rec}, -1")
    a("s_waitcnt vmcnt(0) lgkmcnt(0)")
    a("s_barrier")
    a(f"v_subrev_u32 v{RS0.dl}, s3, v{RS0.dl}")
    a(f"v_lshl_or_b32 v{RS0.rec}, v{RS0.dl}, 14, v{RS0.so}")
    a(f"v_cmp_gt_u32 s[78:79], 40, v{RS0.dl}")
    a(f"s_and_b64 s[78:79], s[78:79], vcc")
    a(f"v_cndmask_b32 v{RS0.rec}, -1, v{RS0.rec}, s[78:79]")
    a("s_branch K2_sort")
    a.label("K2_slowaddr")
    a.clear_hist()
    a("s_getpc_b64 s[62:63]")
    a.label("K2_pc2")
    a(f"s_add_u32 s62, s62, K2_table-K2_pc2")
    a(f"s_addc_u32 s63, s63, 0")
    a(f"v_and_b32 v{vX}, 63, v0")
    a(f"v_lshlrev_b32 v{vX}, 4, v{vX}")
    a(f"s_lshl_b32 s72, s{sS}, 12")
    a(f"v_add_u32 v{vX}, s72, v{vX}")
    a(f"global_load_dwordx4 v[{vTAB}:{vTAB+3}], v{vX}, s[62:63] offset:2048")
    a(f"global_load_dwordx4 v[{vTAB+4}:{vTAB+7}], v{vX}, s[62:63] offset:3072")
    a("s_waitcnt vmcnt(0)")
    a("s_branch K2_addr")
    for g in range(5):
        L = f"K2_g{g}"
        a.label(f"{L}_sflush")
        a.clear_hist()
        a("s_waitcnt lgkmcnt(0)")
        a("s_nop 7")
        a(f"v_pk_mul_f32 v[{vSB}:{vSB+1}], v[{vACC}:{vACC+1}], v[{vT}:{vT+1}]")
        for i in range(2, 16, 2):
            a(f"v_pk_fma_f32 v[{vSB}:{vSB+1}], v[{vACC+i}:{vACC+i+1}], v[{vT+i}:{vT+i+1}], v[{vSB}:{vSB+1}]")
        a(f"v_add_f32 v{vSB}, v{vSB}, v{vSB+1}")
        a(f"v_and_b32 v{vX}, 63, v0")
        a(f"v_and_b32 v{vY}, 7, v{vX}")
        a(f"v_bfe_u32 v{vZ}, v{vX}, 3, 2")
        a(f"v_lshlrev_b32 v{vZ}, 2, v{vZ}")
        a(f"v_lshl_add_u32 v{vZ}, v{vY}, 4, v{vZ}")
        a(f"v_add_u32 v{vZ}, {L_POSACC + g*128}, v{vZ}")
        a(f"ds_add_f32 v{vZ}, v{vSB}")
        a(f"v_mul_u32_u24 v{vY}, {MROW}, v{vY}")
        a(f"v_lshrrev_b32 v{vX}, 5, v{vX}")
        a(f"v_lshl_add_u32 v{vY}, v{vX}, 4, v{vY}")
        a(f"s_lshl_b32 s72, s{sS}, 7")
        a(f"s_add_u32 s72, s72, {L_MACC}")
        a(f"v_add_u32 v{vY}, s72, v{vY}")
        a("s_mov_b32 exec_lo, 0xff")
        a("s_mov_b32 exec_hi, 0xff")
        for r in range(16):
            a(f"ds_add_f32 v{vY}, v{vACC+r} offset:{g*8*MROW + (8*(r//4)+r%4)*4}")
        a("s_mov_b64 exec, -1")
        a(f"s_branch {L}_done")
    a.label("K2_slowend")
    a.clear_hist()
    a("s_waitcnt vmcnt(0) lgkmcnt(0)")
    a("s_barrier")
    a("v_lshrrev_b32 v8, 4, v0")
    a("v_min_u32 v8, 39, v8")
    a("v_and_b32 v9, 15, v0")
    a(f"v_mul_u32_u24 v10, {MROW}, v8")
    a("v_lshl_add_u32 v10, v9, 5, v10")
    a(f"v_add_u32 v10, {L_MACC}, v10")
    a("ds_read_b128 v[16:19], v10")
    a("ds_read_b128 v[20:23], v10 offset:16")
    a("v_subrev_u32 v7, 640, v0")
    a("v_mul_u32_u24 v11, 43691, v7")
    a("v_lshrrev_b32 v11, 17, v11")
    a("v_min_u32 v11, 39, v11")
    a("v_add_u32 v12, v11, v7")
    a("v_and_b32 v12, 0xff, v12")
    a("v_lshlrev_b32 v12, 2, v12")
    a(f"v_add_u32 v12, {L_POSACC+4}, v12")
    a("ds_read_b32 v24, v12")
    a("s_waitcnt lgkmcnt(0)")
    a("s_barrier")
    def wm():
        for p in range(4): a(f"v_cvt_pk_bf16_f32 v{16+p}, v{16+2*p}, v{17+2*p}")
        a(f"v_mul_u32_u24 v10, {MBROW}, v8")
        a("v_lshl_add_u32 v10, v9, 4, v10")
        a(f"v_add_u32 v10, {L_MB}, v10")
        a("ds_write_b128 v10, v[16:19]")
    masked(a, "v_cmp_gt_u32 vcc, 640, v0", "K2_se1", wm)
    def wp():
        a("v_mul_u32_u24 v13, 3, v11")
        a("v_sub_u32 v13, v7, v13")
        a("v_add_u32 v13, 1, v13")
        a("v_and_b32 v14, 7, v11")
        a("v_lshl_add_u32 v13, v13, 3, v14")
        a("v_lshlrev_b32 v13, 5, v13")
        a("v_lshrrev_b32 v14, 3, v11")
        a("v_lshl_add_u32 v13, v14, 10, v13")
        a(f"v_add_u32 v13, {L_POSP}, v13")
        for r in range(25, 32): a(f"v_mov_b32 v{r}, 0")
        a("ds_write_b128 v13, v[24:27]")
        a("ds_write_b128 v13, v[28:31] offset:16")
    masked(a, "v_cmp_gt_u32 vcc, 120, v7", "K2_se2", wp)
    def wo():
        a("v_add_u32 v13, 1, v0")
        a("v_cmp_gt_u32 vcc, 5, v0")
        a("v_cndmask_b32 v13, 0, v13, vcc")
        a("v_lshlrev_b32 v14, 2, v0")
        a(f"v_add_u32 v14, {L_OWN}, v14")
        a("ds_write_b32 v14, v13")
    masked(a, "v_cmp_gt_u32 vcc, 12, v0", "K2_se3", wo)
    a("s_branch K2_epi")

K2_KD = f"""
.amdhsa_kernel {KNAME}_kernel
  .amdhsa_next_free_vgpr 128
  .amdhsa_next_free_sgpr 96
  .amdhsa_accum_offset 128
  .amdhsa_group_segment_fixed_size 0
  .amdhsa_kernarg_size 88
  .amdhsa_user_sgpr_count 2
  .amdhsa_user_sgpr_kernarg_segment_ptr 1
  .amdhsa_system_sgpr_workgroup_id_x 1
.end_amdhsa_kernel
"""
```

```python
import re

TRANS = ("v_exp_f32", "v_log_f32", "v_rcp_f32", "v_rsq_f32", "v_sqrt_f32", "v_sin_f32", "v_cos_f32",
         "v_rcp_iflag_f32", "v_exp_f16", "v_rcp_f16")

def parse_reg(tok):
    t = tok.strip()
    t = t.lstrip("-")
    m = re.match(r"^abs\((.*)\)$", t)
    if m: t = m.group(1)
    t = t.strip("|")
    if t == "vcc": return {("s", 106), ("s", 107)}
    if t == "vcc_lo": return {("s", 106)}
    if t == "vcc_hi": return {("s", 107)}
    if t == "exec": return {("s", 126), ("s", 127)}
    if t == "exec_lo": return {("s", 126)}
    if t == "exec_hi": return {("s", 127)}
    if t == "m0": return {("s", 124)}
    m = re.match(r"^([vsa])(\d+)$", t)
    if m: return {(m.group(1), int(m.group(2)))}
    m = re.match(r"^([vsa])\[(\d+):(\d+)\]$", t)
    if m: return {(m.group(1), i) for i in range(int(m.group(2)), int(m.group(3)) + 1)}
    return set()

def split_ops(rest):
    ops, depth, cur = [], 0, ""
    for ch in rest:
        if ch == "[": depth += 1
        if ch == "]": depth -= 1
        if ch == "," and depth == 0:
            ops.append(cur.strip()); cur = ""
        else:
            cur += ch
    if cur.strip(): ops.append(cur.strip())
    return ops

class Ins:
    __slots__ = ("text", "op", "kind", "wr", "rd", "srcc", "passes", "dpp", "ws", "lds_dma", "widestore", "sdata")
    def __init__(self, text):
        self.text = text
        t = text.split(";")[0].strip()
        parts = t.split(None, 1)
        self.op = parts[0]
        rest = parts[1] if len(parts) > 1 else ""
        op = self.op
        self.wr, self.rd, self.srcc = set(), set(), set()
        self.passes = 0
        self.dpp = ("row_" in rest) or ("quad_perm" in rest) or ("wave_" in rest) or ("_dpp" in op)
        self.ws = 1
        self.lds_dma = False
        self.widestore = False
        self.sdata = set()
        ops = split_ops(rest)
        mods = ""
        if ops:
            last = ops[-1].split()
            if len(last) > 1:
                ops[-1] = last[0]; mods = " ".join(last[1:])
        R = [parse_reg(o) for o in ops]
        if op == "s_nop":
            self.kind = "nop"; self.ws = int(ops[0], 0) + 1
        elif op.startswith("v_mfma"):
            self.kind = "mfma"
            self.wr = R[0]; self.rd = R[1] | R[2] | R[3]; self.srcc = R[3]
            self.passes = 8 if "32x32x16" in op else 4
        elif op.startswith("v_cmp"):
            self.kind = "valu"; self.wr = R[0]
            for r in R[1:]: self.rd |= r
        elif op in ("v_readfirstlane_b32", "v_readlane_b32"):
            self.kind = "valu"; self.wr = R[0]
            for r in R[1:]: self.rd |= r
        elif op.startswith("v_permlane"):
            self.kind = "valu"; self.wr = R[0] | R[1]; self.rd = R[0] | R[1]
        elif op.startswith("v_"):
            self.kind = "valu"; self.wr = set(R[0])
            k = 1
            if op.startswith(("v_add_co", "v_sub_co", "v_addc_co", "v_subb_co", "v_mad_u64", "v_div_scale")):
                self.wr |= R[1]; k = 2
            for r in R[k:]: self.rd |= r
            if op.startswith(("v_fmac", "v_pk_fmac", "v_mac", "v_writelane", "v_dot2c")) or "d16" in op or op.startswith(("v_fma_mix",)):
                self.rd |= R[0]
            if op.startswith("v_cndmask") and len(ops) == 3: self.rd |= parse_reg("vcc")
            if self.dpp: self.rd |= R[0]
        elif op.startswith("ds_"):
            self.kind = "ds"
            if op.startswith(("ds_read", "ds_bpermute", "ds_permute", "ds_swizzle")) or "_rtn" in op:
                self.wr = R[0]
                for r in R[1:]: self.rd |= r
            else:
                for r in R: self.rd |= r
        elif op.startswith(("buffer_", "global_")):
            self.kind = "vmem"
            allm = mods + " " + rest
            self.lds_dma = bool(re.search(r"\blds\b", allm)) or "load_lds" in op
            if "load" in op and not self.lds_dma:
                self.wr = R[0]
                for r in R[1:]: self.rd |= r
                if "d16" in op: self.rd |= R[0]
            elif "atomic" in op and ("sc0" in allm):
                self.wr = R[0]
                for r in R: self.rd |= r
            else:
                for r in R: self.rd |= r
                if "store" in op and ("x4" in op or "x3" in op):
                    self.widestore = True
                    self.sdata = R[0] if op.startswith("buffer_") else R[1]
            if self.lds_dma: self.rd |= parse_reg("m0")
        elif op.startswith("s_"):
            self.kind = "salu"
            if op.startswith(("s_cmp", "s_cbranch", "s_branch", "s_waitcnt", "s_barrier", "s_endpgm", "s_setprio", "s_sleep", "s_bitcmp")):
                for r in R: self.rd |= r
            else:
                self.wr = R[0] if R else set()
                for r in R[1:]: self.rd |= r
                if "saveexec" in op: self.wr |= parse_reg("exec")
        else:
            raise ValueError("unknown op " + text)

class Asm:
    def __init__(self):
        self.out = []
        self.hist = []
        self.nnop = 0
    def raw(self, s):
        self.out.append(s)
    def comment(self, s):
        self.out.append("    ; " + s)
    def label(self, name):
        self.out.append(name + ":")
    def clear_hist(self):
        self.hist = []
    def need(self, c):
        req = 0
        dist = 0
        for p in reversed(self.hist):
            n = 0
            vw = {r for r in p.wr if r[0] in "va"}
            sw = {r for r in p.wr if r[0] == "s"}
            crv = {r for r in c.rd if r[0] in "va"}
            cwv = {r for r in c.wr if r[0] in "va"}
            crs = {r for r in c.rd if r[0] == "s"}
            if p.kind == "valu":
                if vw & crv:
                    if c.kind == "mfma": n = max(n, 2)
                    if c.op in ("v_readfirstlane_b32", "v_readlane_b32"): n = max(n, 1)
                    if c.op.startswith("v_permlane") or (c.kind == "valu" and c.dpp): n = max(n, 2)
                    if p.op in TRANS and c.kind in ("valu", "mfma") : n = max(n, 1 if c.kind == "valu" else 2)
                    if "sdwa" in p.op or "op_sel" in p.text or "dst_sel" in p.text: n = max(n, 1)
                if c.op.startswith("v_permlane") and (vw & cwv): n = max(n, 2)
                if sw & crs:
                    if c.kind == "valu":
                        n = max(n, 4 if c.op in ("v_readlane_b32", "v_writelane_b32") else 2)
                    if c.kind == "vmem": n = max(n, 5)
                    if c.kind == "salu": n = max(n, 1)
            if p.kind == "mfma":
                big = 12 if p.passes == 8 else 8
                if c.kind == "mfma":
                    ab = c.rd - c.srcc
                    if p.wr & ab: n = max(n, big)
                    if (p.wr & c.srcc):
                        if p.wr == c.srcc and p.passes == c.passes: pass
                        else: n = max(n, 10 if p.passes == 8 else 6)
                    if (p.wr & c.wr) and not (p.wr == c.wr): n = max(n, big)
                elif c.kind in ("valu", "ds", "vmem"):
                    if p.wr & (crv | cwv): n = max(n, big)
                    if c.kind == "valu" and (p.srcc & cwv): n = max(n, 7 if p.passes == 8 else 3)
            if p.kind == "salu" and (("s", 124) in p.wr) and c.lds_dma: n = max(n, 1)
            if p.widestore and c.kind == "valu" and (p.sdata & cwv): n = max(n, 2)
            if p.widestore and c.kind in ("ds", "vmem") and (p.sdata & cwv): n = max(n, 1)
            if n > dist: req = max(req, n - dist)
            dist += p.ws
            if dist >= 16: break
        return req
    def __call__(self, text):
        c = Ins(text)
        req = self.need(c)
        while req > 0:
            k = min(req, 16)
            nop = Ins(f"s_nop {k-1}")
            self.out.append(f"    s_nop {k-1}")
            self.hist.append(nop); self.nnop += 1
            req -= k
        self.out.append("    " + text)
        self.hist.append(c)
        if len(self.hist) > 40: self.hist = self.hist[-40:]
    def nop(self, n):
        self(f"s_nop {n-1}")
    def text(self):
        return "\n".join(self.out) + "\n"

def vr(a, n=1):
    return f"v{a}" if n == 1 else f"v[{a}:{a+n-1}]"
def sr(a, n=1):
    return f"s{a}" if n == 1 else f"s[{a}:{a+n-1}]"


RT_OFF = 0xB00000
def rt_begin(a, sr_):
    a(f"s_memrealtime s[{sr_}:{sr_+1}]")
def rt_end(a, sr_, tmp, kern, wgreg, vt, lbl, anywave=False):
    a(f"s_waitcnt vmcnt(0) lgkmcnt(0)")
    a(f"s_memrealtime s[{tmp}:{tmp+1}]")
    a(f"s_load_dwordx2 s[{tmp+4}:{tmp+5}], s[0:1], 80")
    a(f"s_waitcnt lgkmcnt(0)")
    a(f"s_add_u32 s{tmp+4}, s{tmp+4}, {RT_OFF + kern*8192}")
    a(f"s_addc_u32 s{tmp+5}, s{tmp+5}, 0")
    a(f"s_mov_b32 s{tmp+6}, 8192")
    a(f"s_mov_b32 s{tmp+7}, 0x20000")
    a(f"v_mov_b32 v{vt}, s{sr_}")
    a(f"v_mov_b32 v{vt+1}, s{tmp}")
    a(f"s_lshl_b32 s{tmp+2}, s{wgreg}, 3")
    a(f"v_mov_b32 v{vt+2}, 0x7fffff00")
    if anywave:
        a(f"v_and_b32 v{vt+3}, 63, v0")
        a(f"v_cmp_eq_u32 vcc, 0, v{vt+3}")
        a(f"v_cndmask_b32 v{vt+3}, v{vt+2}, v{vt+3}, vcc")
    else:
        a(f"v_cmp_eq_u32 vcc, 0, v0")
        a(f"v_cndmask_b32 v{vt+3}, v{vt+2}, v0, vcc")
    a(f"buffer_store_dwordx2 v[{vt}:{vt+1}], v{vt+3}, s[{tmp+4}:{tmp+7}], s{tmp+2} offen")
    a(f"s_waitcnt vmcnt(0)")
```

```python
N = 10000; D = 128; E = 160000
NT_NODES = 40; T = 250; C = 64; CH = 2500
WS_CELLS = 0; CELLS_BYTES = T * C * 128
WS_Q = 0x200000; Q_BYTES = (N + 1) * 256
WS_P = 0x480000; P_BYTES = (N // 8) * 4 * 512
WS_R = 0x700000; R_BYTES = N * 256
WS_IMG = 0xA00000
IMG_WH = 0; IMG_W1 = 65536; IMG_WD16 = 98304; IMG_W4 = 100352; IMG_WXF = 104448; IMG_TAB = 104960; IMG_BYTES = IMG_TAB + 8192
WS_POS4 = 0xA20000; POS4_BYTES = N * 8
WS_END = WS_POS4 + POS4_BYTES
LOG2E = 1.4426950408889634
LN2 = 0.6931471805599453
import struct
def f2u(x): return struct.unpack("<I", struct.pack("<f", x))[0]
KNAME = "standalone__cheap_equivariant_egnn__graph"
```

```python
from asmlib import *
from consts import *

K1_GWG = 160
K1_IWG = 5
K1_GRID = 64 + K1_GWG + K1_IWG
L_W = 0; L_H = 32768; L_O = L_H + 128 * 256
K1_LDS = L_O + 128 * 272
DBG1 = set()
WT = " sc0 sc1"

def srd(a, base, lo, hi, size, add=0):
    if add:
        a(f"s_add_u32 s{base}, s{lo}, {add}")
        a(f"s_addc_u32 s{base+1}, s{hi}, 0")
    else:
        a(f"s_mov_b32 s{base}, s{lo}")
        a(f"s_mov_b32 s{base+1}, s{hi}")
    a(f"s_mov_b32 s{base+2}, {size}")
    a(f"s_mov_b32 s{base+3}, 0x20000")

def g1(a, k):
    if "g1" not in DBG1: return
    a("s_memtime s[68:69]")
    a("s_waitcnt lgkmcnt(0)")
    a(f"s_mov_b32 s{70+k}, s68")
def g1out(a):
    if "g1" not in DBG1: return
    a("s_waitcnt vmcnt(0) lgkmcnt(0)")
    g1(a, 7)
    a("s_and_b32 s50, s3, 7")
    a("s_cmp_lg_u32 s50, 0")
    a("s_cbranch_scc1 K1_g1done")
    a("s_cmp_lg_u32 s2, 10")
    a("s_cbranch_scc1 K1_g1done")
    a("s_lshl_b32 s51, s41, 7")
    a("s_lshl_b32 s50, s3, 3")
    a("s_add_u32 s51, s51, s50")
    a("s_load_dwordx2 s[64:65], s[0:1], 72")
    a("s_waitcnt lgkmcnt(0)")
    a("s_mov_b32 s66, 256")
    a("s_mov_b32 s67, 0x20000")
    for k in range(8): a(f"v_writelane_b32 v104, s{70+k}, {k}")
    a("v_and_b32 v105, 63, v0")
    a("v_lshlrev_b32 v105, 2, v105")
    a("v_mov_b32 v106, 0x7fffff00")
    a("v_cmp_gt_u32 vcc, 32, v105")
    a("v_cndmask_b32 v105, v106, v105, vcc")
    a("buffer_store_dword v104, v105, s[64:67], s51 offen")
    a("s_waitcnt vmcnt(0)")
    a.label("K1_g1done")

def gen_k1(a):
    a.raw(".p2align 8")
    a.raw(".type egnn_prep_kernel,@function")
    a.label("egnn_prep_kernel")
    a(f"s_cmp_ge_u32 s2, {K1_GRID}")
    a("s_cbranch_scc1 K1_end")
    RT = "rt" in DBG1
    if RT:
        rt_begin(a, 60)
        a("s_mov_b32 s62, s2")
    def fin():
        if RT: rt_end(a, 60, 64, 0, 62, 104, "")
        a("s_endpgm")
    a("s_cmp_ge_u32 s2, 64")
    a("s_cbranch_scc1 K1_q")
    a("s_load_dwordx4 s[8:11], s[0:1], 24")
    a("s_load_dwordx2 s[18:19], s[0:1], 80")
    a("s_load_dwordx2 s[4:5], s[0:1], 8")
    a("v_lshlrev_b32 v1, 4, v0")
    a(f"s_mul_i32 s3, s2, {CH*4}")
    a("v_cmp_gt_u32 vcc, 625, v0")
    a("v_mov_b32 v12, -1"); a("v_mov_b32 v13, -1"); a("v_mov_b32 v14, -1"); a("v_mov_b32 v15, -1")
    a("v_lshlrev_b32 v2, 2, v0")
    a("v_mov_b32 v3, 0")
    a("s_waitcnt lgkmcnt(0)")
    srd(a, 24, 10, 11, E * 4)
    srd(a, 20, 8, 9, E * 4)
    a("s_and_saveexec_b64 s[32:33], vcc")
    a("s_cbranch_execz K1_b1")
    a("buffer_load_dwordx4 v[4:7], v1, s[24:27], s3 offen")
    a("buffer_load_dwordx4 v[8:11], v1, s[20:23], s3 offen")
    a.label("K1_b1")
    a("s_mov_b64 exec, s[32:33]")
    a("v_lshrrev_b32 v40, 6, v0")
    a("v_readfirstlane_b32 s38, v40")
    a("s_sub_u32 s39, s38, 10")
    a("s_cmp_ge_u32 s39, 2")
    a("s_cbranch_scc1 K1_np4")
    srd(a, 40, 4, 5, N * 6)
    a("s_lshl_b32 s44, s2, 1")
    a("s_add_u32 s44, s44, s39")
    a("s_lshl_b32 s44, s44, 6")
    a("v_and_b32 v40, 63, v0")
    a("v_add_u32 v40, s44, v40")
    a("v_mul_u32_u24 v41, 12, v40")
    a("buffer_load_dwordx3 v[44:46], v41, s[40:43], 0 offen")
    a.label("K1_np4")
    a("ds_write_b128 v1, v[12:15]")
    a("ds_write_b128 v1, v[12:15] offset:16384")
    a("v_cmp_gt_u32 vcc, 256, v0")
    a("s_and_saveexec_b64 s[34:35], vcc")
    a("s_cbranch_execz K1_b2")
    a("ds_write_b32 v2, v3 offset:32768")
    a.label("K1_b2")
    a("s_mov_b64 exec, s[34:35]")
    srd(a, 28, 18, 19, CELLS_BYTES)
    a("v_lshlrev_b32 v16, 22, v0")
    a("v_mov_b32 v17, 1")
    a("v_mov_b32 v36, 33788")
    a("s_waitcnt lgkmcnt(0)")
    a("s_barrier")
    a("s_cmp_ge_u32 s39, 2")
    a("s_cbranch_scc1 K1_np4b")
    srd(a, 40, 18, 19, POS4_BYTES, add=WS_POS4)
    a("s_waitcnt vmcnt(0)")
    a("v_mov_b32 v48, v44")
    a("v_and_b32 v49, 0xffff, v45")
    a("v_alignbit_b32 v50, v46, v45, 16")
    a("v_lshrrev_b32 v51, 16, v46")
    a("v_lshlrev_b32 v41, 4, v40")
    a("buffer_store_dwordx4 v[48:51], v41, s[40:43], 0 offen" + WT)
    a.label("K1_np4b")
    a("v_cmp_gt_u32 vcc, 625, v0")
    a("s_and_saveexec_b64 s[32:33], vcc")
    a("s_cbranch_execz K1_b3")
    a("s_waitcnt vmcnt(0)")
    for k in range(4):
        a(f"v_mul_u32_u24 v{20+k}, 52429, v{4+k}")
        a(f"v_lshrrev_b32 v{20+k}, 21, v{20+k}")
        a(f"v_lshlrev_b32 v{28+k}, 2, v{20+k}")
        a(f"ds_add_rtn_u32 v{24+k}, v{28+k}, v17 offset:32768")
    for k in range(4):
        a(f"v_mul_u32_u24 v{32+k}, 40, v{20+k}")
        a(f"v_sub_u32 v{32+k}, v{4+k}, v{32+k}")
        a(f"v_lshl_or_b32 v{8+k}, v{32+k}, 14, v{8+k}")
        if k: a(f"v_add_u32 v{32+k}, {k<<20}, v16")
        a(f"v_or_b32 v{8+k}, v{8+k}, v{32+k if k else 16}")
        a(f"v_lshlrev_b32 v{20+k}, 7, v{20+k}")
    a("s_waitcnt lgkmcnt(0)")
    for k in range(4):
        a(f"v_lshl_add_u32 v{20+k}, v{24+k}, 2, v{20+k}")
        a(f"v_cmp_gt_u32 vcc, 32, v{24+k}")
        a(f"v_cndmask_b32 v{20+k}, v36, v{20+k}, vcc")
        a(f"ds_write_b32 v{20+k}, v{8+k}")
    a.label("K1_b3")
    a("s_mov_b64 exec, s[32:33]")
    a("s_lshl_b32 s3, s2, 7")
    a("v_lshrrev_b32 v2, 3, v0")
    a("v_and_b32 v3, 7, v0")
    a("v_lshlrev_b32 v4, 2, v2")
    a("v_lshlrev_b32 v7, 13, v2")
    a("v_lshl_add_u32 v7, v3, 4, v7")
    a(f"v_add_u32 v16, {128*8192}, v7")
    a("v_cmp_eq_u32 s[36:37], 7, v3")
    a("v_mov_b32 v17, -2")
    a("s_waitcnt lgkmcnt(0)")
    a("s_barrier")
    a("ds_read_b128 v[8:11], v1")
    a("ds_read_b128 v[12:15], v1 offset:16384")
    a("ds_read_b32 v5, v4 offset:32768")
    a(f"ds_read_b32 v6, v4 offset:{32768+512}")
    a("s_waitcnt lgkmcnt(0)")
    a("v_cmp_lt_u32 vcc, 32, v5")
    a("s_and_b64 vcc, vcc, s[36:37]")
    a("v_cndmask_b32 v11, v11, v17, vcc")
    a("v_cmp_lt_u32 vcc, 32, v6")
    a("s_and_b64 vcc, vcc, s[36:37]")
    a("v_cndmask_b32 v15, v15, v17, vcc")
    a("buffer_store_dwordx4 v[8:11], v7, s[28:31], s3 offen" + WT)
    a("buffer_store_dwordx4 v[12:15], v16, s[28:31], s3 offen" + WT)
    fin()
    a.label("K1_q")
    a.clear_hist()
    a(f"s_cmp_ge_u32 s2, {64 + K1_GWG}")
    a("s_cbranch_scc1 K1_img")
    g1(a, 0)
    a("s_load_dwordx2 s[4:5], s[0:1], 0")
    a("s_load_dwordx2 s[12:13], s[0:1], 40")
    a("s_load_dwordx2 s[18:19], s[0:1], 80")
    a("v_lshrrev_b32 v1, 6, v0")
    a("v_and_b32 v2, 63, v0")
    a("v_readfirstlane_b32 s3, v1")
    a("s_sub_u32 s2, s2, 64")
    a("s_bfe_u32 s41, s2, 0x10003")
    a("s_and_b32 s33, s2, 7")
    a("s_lshr_b32 s2, s2, 4")
    a("s_lshl_b32 s2, s2, 3")
    a("s_add_u32 s2, s2, s33")
    a(f"s_cmp_ge_u32 s2, 79")
    a("s_cbranch_scc1 K1_end")
    a("v_lshrrev_b32 v4, 4, v2")
    a("s_lshl_b32 s33, s3, 2")
    a("v_add_u32 v5, s33, v4")
    a("v_xor_b32 v6, v5, v2")
    a("v_and_b32 v6, 15, v6")
    a("v_lshlrev_b32 v5, 8, v5")
    a("v_lshl_add_u32 v5, v6, 4, v5")
    a("v_lshlrev_b32 v6, 2, v4")
    a("v_xor_b32 v6, v6, v2")
    a("v_and_b32 v6, 15, v6")
    a("v_lshlrev_b32 v3, 8, v4")
    a("v_lshl_add_u32 v3, v6, 4, v3")
    a(f"s_lshl_b32 s34, s2, 15")
    a("s_lshl_b32 s35, s3, 10")
    a("s_lshl_b32 s36, s3, 11")
    a("s_waitcnt lgkmcnt(0)")
    g1(a, 1)
    srd(a, 24, 4, 5, N * 256)
    srd(a, 20, 12, 13, 273 * 256)
    a("s_cmp_eq_u32 s41, 0")
    a("s_cselect_b32 s38, 32768, 0")
    for i in range(2):
        a(f"s_add_u32 m0, s36, {L_W + i*1024}")
        a(f"s_add_u32 s37, s36, {i*1024}")
        a("s_add_u32 s37, s37, s38")
        a("buffer_load_dwordx4 v3, s[20:23], s37 offen lds")
    for i in range(2):
        a(f"s_add_u32 m0, s35, {L_H + i*16384}")
        a(f"s_add_u32 s37, s34, {i*16384}")
        a("buffer_load_dwordx4 v5, s[24:27], s37 offen lds")
    a("s_and_b32 s35, s3, 3")
    a("s_lshr_b32 s36, s3, 2")
    a("v_and_b32 v4, 31, v2")
    a("v_lshrrev_b32 v5, 5, v2")
    a("v_and_b32 v6, 15, v4")
    a("v_xor_b32 v6, v6, v5")
    a("v_lshlrev_b32 v6, 4, v6")
    a("v_lshl_add_u32 v6, v4, 8, v6")
    a("s_lshl_b32 s37, s36, 13")
    a(f"s_add_u32 s37, s37, {L_H}")
    a("v_add_u32 v6, s37, v6")
    a("v_bfe_u32 v9, v2, 2, 2")
    a("v_bfe_u32 v10, v2, 4, 1")
    a("v_bfe_u32 v11, v2, 1, 1")
    a("v_lshl_add_u32 v10, v10, 1, v11")
    a("s_lshl_b32 s39, s35, 2")
    a("v_add_u32 v10, s39, v10")
    a("v_lshlrev_b32 v11, 2, v9")
    a("v_xor_b32 v10, v10, v11")
    a("v_lshl_add_u32 v9, v5, 3, v9")
    a("v_lshlrev_b32 v9, 8, v9")
    a("v_lshl_add_u32 v9, v10, 4, v9")
    a("v_and_b32 v10, 1, v2")
    a("v_lshl_add_u32 v9, v10, 3, v9")
    a("s_lshl_b32 s39, s35, 6")
    a(f"s_mov_b32 s40, {f2u(LOG2E):#x}")
    g1(a, 2)
    a("s_waitcnt vmcnt(0)")
    g1(a, 3)
    a("s_barrier")
    g1(a, 4)
    for ks in range(8):
        a(f"ds_read_b64_tr_b16 v[{48+4*ks}:{49+4*ks}], v9 offset:{ks*4096}")
        a(f"ds_read_b64_tr_b16 v[{50+4*ks}:{51+4*ks}], v9 offset:{ks*4096+1024}")
    a("v_mul_u32_u24 v12, 272, v4")
    a("v_lshl_add_u32 v12, v5, 3, v12")
    a("s_mul_i32 s37, s36, %d" % (32 * 272))
    a("s_add_u32 s37, s37, s39")
    a(f"s_add_u32 s37, s37, {L_O}")
    a("v_add_u32 v12, s37, v12")
    a("v_lshlrev_b32 v13, 4, v4")
    a("v_lshl_add_u32 v13, v5, 3, v13")
    a("s_lshl_b32 s38, s35, 9")
    a("v_add_u32 v13, s38, v13")
    srd(a, 28, 18, 19, P_BYTES, add=WS_P)
    a("s_lshl_b32 s42, s2, 4")
    a("s_lshl_b32 s43, s36, 2")
    a("s_add_u32 s42, s42, s43")
    a("s_lshl_b32 s42, s42, 11")
    for ks in range(8):
        a(f"v_xor_b32 v7, {ks*32}, v6" if ks else "v_mov_b32 v7, v6")
        a(f"ds_read_b128 v[{16+4*ks}:{19+4*ks}], v7")
    a("s_waitcnt lgkmcnt(0)")
    a("s_cmp_eq_u32 s41, 1")
    a("s_cbranch_scc1 K1_p")
    for ks in range(8):
        c = "0" if ks == 0 else "v[80:95]"
        a(f"v_mfma_f32_32x32x16_bf16 v[80:95], v[{48+4*ks}:{51+4*ks}], v[{16+4*ks}:{19+4*ks}], {c}")
    for r in range(16):
        a(f"v_mul_f32 v{80+r}, s40, v{80+r}")
    for p in range(8):
        a(f"v_cvt_pk_bf16_f32 v{96+p}, v{80+2*p}, v{81+2*p}")
    for g in range(4):
        a(f"ds_write_b64 v12, v[{96+2*g}:{97+2*g}] offset:{g*16}")
    a("s_branch K1_jd")
    a.label("K1_p")
    a.clear_hist()
    for ks in range(8):
        c = "0" if ks == 0 else "v[80:95]"
        a(f"v_mfma_f32_32x32x16_bf16 v[80:95], v[{16+4*ks}:{19+4*ks}], v[{48+4*ks}:{51+4*ks}], {c}")
    for r in range(16):
        a(f"v_mul_f32 v{80+r}, s40, v{80+r}")
    for p in range(8):
        a(f"v_cvt_pk_bf16_f32 v{96+p}, v{80+2*p}, v{81+2*p}")
    for g in range(4):
        a(f"s_add_u32 s43, s42, {g*2048}")
        a(f"buffer_store_dwordx2 v[{96+2*g}:{97+2*g}], v13, s[28:31], s43 offen" + WT)
    a("s_branch K1_gend")
    a.label("K1_jd")
    a.clear_hist()
    g1(a, 5)
    a("v_lshrrev_b32 v4, 4, v0")
    a("v_and_b32 v5, 15, v0")
    a("v_mul_u32_u24 v6, 272, v4")
    a("v_lshl_add_u32 v6, v5, 4, v6")
    a(f"v_add_u32 v6, {L_O}, v6")
    a("v_lshlrev_b32 v7, 4, v0")
    srd(a, 20, 18, 19, Q_BYTES, add=WS_Q)
    a("s_add_u32 s35, s34, 256")
    a("s_waitcnt lgkmcnt(0)")
    a("s_barrier")
    g1(a, 6)
    a("ds_read_b128 v[16:19], v6")
    a(f"ds_read_b128 v[20:23], v6 offset:{64*272}")
    a("s_add_u32 s36, s35, 16384")
    a("s_waitcnt lgkmcnt(1)")
    a("buffer_store_dwordx4 v[16:19], v7, s[20:23], s35 offen" + WT)
    a("s_waitcnt lgkmcnt(0)")
    a("buffer_store_dwordx4 v[20:23], v7, s[20:23], s36 offen" + WT)
    a("s_cmp_lg_u32 s2, 0")
    a("s_cbranch_scc1 K1_gend")
    a("v_cmp_gt_u32 vcc, 16, v0")
    a("s_and_saveexec_b64 s[32:33], vcc")
    a("s_cbranch_execz K1_gend")
    for r in range(4): a(f"v_mov_b32 v{28+r}, 0")
    a("buffer_store_dwordx4 v[28:31], v7, s[20:23], 0 offen" + WT)
    a.label("K1_gend")
    a.clear_hist()
    a("s_mov_b64 exec, -1")
    g1out(a)
    fin()
    a.label("K1_img")
    a.clear_hist()
    a("s_load_dwordx4 s[12:15], s[0:1], 40")
    a("s_load_dwordx2 s[16:17], s[0:1], 56")
    a("s_load_dwordx2 s[18:19], s[0:1], 80")
    a("v_lshrrev_b32 v1, 6, v0")
    a("v_and_b32 v2, 63, v0")
    a("v_readfirstlane_b32 s3, v1")
    a(f"s_sub_u32 s2, s2, {64 + K1_GWG}")
    a("s_lshl_b32 s33, s2, 4")
    a("s_add_u32 s33, s33, s3")
    a("s_add_u32 s62, s33, 300")
    def fin_img():
        if RT: rt_end(a, 60, 64, 0, 62, 104, "", anywave=True)
        a("s_endpgm")
    a("v_and_b32 v4, 31, v2")
    a("v_lshrrev_b32 v5, 5, v2")
    a("v_lshlrev_b32 v6, 11, v5")
    a("v_lshl_add_u32 v6, v4, 1, v6")
    a("v_lshlrev_b32 v3, 4, v2")
    a("s_waitcnt lgkmcnt(0)")
    srd(a, 28, 18, 19, IMG_BYTES, add=WS_IMG)
    srd(a, 20, 12, 13, 273 * 256)
    a("s_cmp_ge_u32 s33, 73")
    a("s_cbranch_scc1 K1_end")
    a("s_cmp_ge_u32 s33, 69")
    a("s_cbranch_scc1 K1_tab")
    a("s_cmp_ge_u32 s33, 68")
    a("s_cbranch_scc1 K1_wd")
    a("s_cmp_ge_u32 s33, 64")
    a("s_cbranch_scc1 K1_w4")
    srd(a, 24, 16, 17, 256 * 256)
    a("s_bfe_u32 s34, s33, 0x20003")
    a("s_and_b32 s35, s33, 7")
    a("s_lshl_b32 s35, s35, 12")
    a("s_lshl_b32 s34, s34, 6")
    a("s_add_u32 s34, s34, s35")
    a("s_lshr_b32 s35, s33, 5")
    a("s_lshl_b32 s35, s35, 15")
    a("s_add_u32 s34, s34, s35")
    a("s_lshl_b32 s36, s33, 10")
    for j in range(8):
        a(f"buffer_load_ushort v{16+j}, v6, s[24:27], s34 offen offset:{j*256}")
    a("s_waitcnt vmcnt(0)")
    for p in range(4):
        a(f"v_lshl_or_b32 v{24+p}, v{17+2*p}, 16, v{16+2*p}")
    a("buffer_store_dwordx4 v[24:27], v3, s[28:31], s36 offen" + WT)
    fin_img()
    a.label("K1_w4")
    a.clear_hist()
    a("s_sub_u32 s33, s33, 64")
    a("s_lshl_b32 s34, s33, 6")
    a(f"s_add_u32 s34, s34, {257*256}")
    a("s_lshl_b32 s36, s33, 10")
    a(f"s_add_u32 s36, s36, {IMG_W4}")
    for j in range(8):
        a(f"buffer_load_ushort v{16+j}, v6, s[20:23], s34 offen offset:{j*256}")
    a(f"s_mov_b32 s40, {f2u(LOG2E):#x}")
    a("s_waitcnt vmcnt(0)")
    for j in range(8):
        a(f"v_lshlrev_b32 v{16+j}, 16, v{16+j}")
        a(f"v_mul_f32 v{16+j}, s40, v{16+j}")
    for p in range(4):
        a(f"v_cvt_pk_bf16_f32 v{24+p}, v{16+2*p}, v{17+2*p}")
    a("buffer_store_dwordx4 v[24:27], v3, s[28:31], s36 offen" + WT)
    fin_img()
    a.label("K1_wd")
    a.clear_hist()
    srd(a, 24, 14, 15, 256)
    a("v_lshlrev_b32 v7, 1, v2")
    a(f"s_mov_b32 s34, {256*256}")
    a("buffer_load_ushort v16, v7, s[20:23], s34 offen")
    a("buffer_load_ushort v17, v7, s[20:23], s34 offen offset:128")
    a("buffer_load_ushort v18, v7, s[24:27], 0 offen")
    a("buffer_load_ushort v19, v7, s[24:27], 0 offen offset:128")
    a(f"s_mov_b32 s40, {f2u(LOG2E):#x}")
    a(f"s_mov_b32 s41, {f2u(LN2):#x}")
    a("v_lshlrev_b32 v8, 2, v2")
    for r in (25, 26, 27, 29, 30, 31): a(f"v_mov_b32 v{r}, 0")
    a("s_waitcnt vmcnt(0)")
    for k in range(2):
        d = 24 + 4 * k
        a(f"v_lshlrev_b32 v{16+k}, 16, v{16+k}")
        a(f"v_mul_f32 v{16+k}, s40, v{16+k}")
        a(f"v_cvt_pk_bf16_f32 v{20+k}, v{16+k}, v{16+k}")
        a(f"v_and_b32 v{22+k}, 0xffff0000, v{20+k}")
        a(f"v_sub_f32 v{22+k}, v{16+k}, v{22+k}")
        a(f"v_cvt_pk_bf16_f32 v{d}, v{16+k}, v{22+k}")
        a(f"v_lshlrev_b32 v{18+k}, 16, v{18+k}")
        a(f"v_mul_f32 v{18+k}, s41, v{18+k}")
    a(f"s_mov_b32 s34, {IMG_WD16}")
    a(f"s_mov_b32 s35, {IMG_WXF}")
    a("buffer_store_dwordx4 v[24:27], v3, s[28:31], s34 offen" + WT)
    a("buffer_store_dwordx4 v[28:31], v3, s[28:31], s34 offen offset:1024" + WT)
    a("buffer_store_dword v18, v8, s[28:31], s35 offen" + WT)
    a("buffer_store_dword v19, v8, s[28:31], s35 offen offset:256" + WT)
    fin_img()
    a.label("K1_tab")
    a.clear_hist()
    import gen_k2
    gen_k2.table_job(a, WT)
    fin_img()
    a.label("K1_end")
    a("s_endpgm")

K1_KD = f"""
.amdhsa_kernel egnn_prep_kernel
  .amdhsa_next_free_vgpr 112
  .amdhsa_next_free_sgpr 80
  .amdhsa_accum_offset 112
  .amdhsa_group_segment_fixed_size 0
  .amdhsa_kernarg_size 88
  .amdhsa_user_sgpr_count 2
  .amdhsa_user_sgpr_kernarg_segment_ptr 1
  .amdhsa_system_sgpr_workgroup_id_x 1
.end_amdhsa_kernel
"""
```

```python
from asmlib import *
from consts import *
from gen_k1 import srd

MAXT = 28
TS = 2560
O_D2 = 2048
L_CNT = 0
L_OWN = 32
L_WX = 128
L_PD = 640
L_T0 = 1024
L_QS = L_T0 + MAXT * TS
QSW = 3072
L_MB = L_QS + 16 * QSW
MBROW = 272
L_POSP = L_MB + 64 * MBROW
L_PST = L_POSP + 8192
O_WD = 10240; O_W4 = 12288
K2_LDS = L_PST + 16384
assert K2_LDS <= 163840, K2_LDS
assert L_POSP % 32 == 0 and L_QS % 256 == 0
L_MACC = L_MB; MROW = 528; L_POSACC = L_MACC + 40 * MROW
assert L_POSACC + 640 <= L_PST
PROW = 528
assert 104 * PROW <= MAXT * TS
OOB = 0x7FFFFF00
SLOW_BLK = 640
SLOW_NBLK = E // SLOW_BLK

S_WS, S_EA, S_OUT, S_H, S_SRC, S_DST = 8, 12, 16, 20, 24, 28
S_POS = 32
sW, sS, sQ, sT = 36, 37, 38, 39
sONE = 40
sSLOW, sQB, sWSQ, sT240 = 42, 43, 44, 45
sTG = 46
sNT = sTG + 5
sHM = 52
sA, sB, sJ, sEND, sFIRST, sHALF = 54, 55, 56, 57, 58, 59
sLN2, sLOG2E = 60, 61
sWSP4 = 62
sV0, sV1 = 80, 82
sQB1, sQB2 = 84, 85
vQ1 = 1
vQ0, vEA, vEO, vSEL = 4, 5, 6, 7
vST, vLS, vLE, vPBs = 8, 9, 10, 11
vCQ, vPBb, vFM, vFP = 12, 13, 14, 15
vPB = 16
vSN, vSE = 20, 22
vX, vY, vZ = 23, 24, 25
vW4 = 28; vID = 32; vACC = 40; vD1 = 56
vA = 72; vT = 88; vM = 104; vSB = 112
vPR = 127

PROF = False
DBG = set()
def stamp(a, k):
    if not PROF: return
    a("s_memtime s[74:75]")
    a("s_waitcnt lgkmcnt(0)")
    a(f"v_writelane_b32 v{vPR}, s74, {k}")

def B(r): return f"s[{r}:{r+3}]"

def masked(a, cmp, label, body, sv=76):
    a(cmp)
    a(f"s_and_saveexec_b64 s[{sv}:{sv+1}], vcc")
    a(f"s_cbranch_execz {label}")
    body()
    a.label(label)
    a(f"s_mov_b64 exec, s[{sv}:{sv+1}]")

class RS:
    def __init__(self, base):
        self.rec = base; self.g = base + 1; self.dl = base + 2; self.so = base + 3
        self.rk = base + 4; self.tb = base + 5; self.e = base + 6; self.x = base + 7
        self.ps = base + 8; self.pd = base + 10; self.eid = base + 12
        self.c4 = base + 12
RS0, RS1 = RS(56), RS(72)
vCB, vONE1, vK1, vT32 = 100, 101, 102, 103
vZR = 104
vL = 108

def phase1(a, r):
    a(f"v_and_b32 v{r.so}, 0x3fff, v{r.rec}")
    a(f"v_lshlrev_b32 v{r.x}, 3, v{r.so}")
    a(f"buffer_load_dwordx2 v[{r.ps}:{r.ps+1}], v{r.x}, {B(S_WS)}, s{sWSP4} offen")
    a(f"v_bfe_u32 v{r.dl}, v{r.rec}, 14, 6")
    a(f"v_lshrrev_b32 v{r.g}, 1, v{r.dl}")
    a(f"v_and_b32 v{r.g}, 28, v{r.g}")
    a(f"ds_add_rtn_u32 v{r.rk}, v{r.g}, v{vONE1} offset:{L_CNT}")
    a(f"v_lshlrev_b32 v{r.tb}, 3, v{r.dl}")
    a(f"ds_read_b64 v[{r.pd}:{r.pd+1}], v{r.tb} offset:{L_PD}")
    a(f"v_lshlrev_b32 v{r.so}, 8, v{r.so}")
    a(f"v_add_u32 v{r.so}, 256, v{r.so}")

def phase1b(a, r):
    a(f"v_add_u32 v{r.rk}, v{r.rk}, v{r.x}")
    a(f"v_lshrrev_b32 v{r.tb}, 5, v{r.rk}")
    a(f"v_mul_u32_u24 v{r.tb}, {TS}, v{r.tb}")
    a(f"v_and_b32 v{r.e}, 31, v{r.rk}")
    a(f"v_lshl_add_u32 v{r.x}, v{r.e}, 4, v{r.tb}")
    a(f"v_lshlrev_b32 v{r.eid}, 8, v{r.eid}")
    a(f"ds_write_b32 v{r.x}, v{r.so} offset:{L_T0+O_D2+4}")
    a(f"ds_write_b32 v{r.x}, v{r.eid} offset:{L_T0+O_D2+8}")

def phase2(a, r):
    t0, t1, t2 = vX, vY, vZ
    a(f"v_lshlrev_b32 v{t0}, 16, v{r.ps}")
    a(f"v_lshlrev_b32 v{t1}, 16, v{r.pd}")
    a(f"v_sub_f32 v{t0}, v{t1}, v{t0}")
    a(f"v_and_b32 v{r.ps}, 0xffff0000, v{r.ps}")
    a(f"v_and_b32 v{r.pd}, 0xffff0000, v{r.pd}")
    a(f"v_sub_f32 v{t1}, v{r.pd}, v{r.ps}")
    a(f"v_lshlrev_b32 v{r.ps+1}, 16, v{r.ps+1}")
    a(f"v_lshlrev_b32 v{r.pd+1}, 16, v{r.pd+1}")
    a(f"v_sub_f32 v{t2}, v{r.pd+1}, v{r.ps+1}")
    a(f"v_cvt_pk_bf16_f32 v{r.ps}, v{t0}, v{t1}")
    a(f"v_cvt_pk_bf16_f32 v{r.ps+1}, v{t2}, v{t2}")
    a(f"v_and_b32 v{t2}, 7, v{r.dl}")
    a(f"v_lshl_add_u32 v{r.rk}, v{r.e}, 6, v{r.tb}")
    a(f"v_lshl_add_u32 v{r.rk}, v{t2}, 1, v{r.rk}")
    a(f"ds_write_b16 v{r.rk}, v{vK1} offset:{L_T0}")
    a(f"ds_write_b16 v{r.rk}, v{r.ps} offset:{L_T0+16}")
    a(f"ds_write_b16_d16_hi v{r.rk}, v{r.ps} offset:{L_T0+32}")
    a(f"ds_write_b16 v{r.rk}, v{r.ps+1} offset:{L_T0+48}")
    a(f"v_lshlrev_b32 v{t0}, 16, v{r.ps}")
    a(f"v_and_b32 v{t1}, 0xffff0000, v{r.ps}")
    a(f"v_and_b32 v{t2}, 0xffff0000, v{r.ps+1}")
    a(f"v_mul_f32 v{t0}, v{t0}, v{t0}")
    a(f"v_mul_f32 v{t1}, v{t1}, v{t1}")
    a(f"v_mul_f32 v{t2}, v{t2}, v{t2}")
    a(f"v_cvt_pk_bf16_f32 v{t0}, v{t0}, v{t1}")
    a(f"v_cvt_pk_bf16_f32 v{t2}, v{t2}, v{t2}")
    a(f"v_and_b32 v{t1}, 0xffff0000, v{t0}")
    a(f"v_lshlrev_b32 v{t0}, 16, v{t0}")
    a(f"v_and_b32 v{t2}, 0xffff0000, v{t2}")
    a(f"v_add_f32 v{t0}, v{t0}, v{t1}")
    a(f"v_add_f32 v{t0}, v{t0}, v{t2}")
    a(f"v_cvt_pk_bf16_f32 v{t0}, v{t0}, v{t0}")
    a(f"ds_write_b32 v{r.x}, v{t0} offset:{L_T0+O_D2}")

def issue_dma(a):
    a(f"v_add_u32 v{vSN}, v{vSN}, v{vCQ}")
    a(f"v_add_u32 v{vSN+1}, v{vSN+1}, v{vCQ}")
    a(f"s_mov_b32 m0, s{sQB}")
    a(f"v_lshrrev_b32 v{vSE}, 3, v{vSE}")
    a(f"buffer_load_dwordx4 v{vSN}, {B(S_WS)}, s{sWSQ} offen lds")
    a(f"s_mov_b32 m0, s{sQB1}")
    a(f"v_add_u32 v{vSE}, v{vSE}, v{vEO}")
    a(f"buffer_load_dwordx4 v{vSN+1}, {B(S_WS)}, s{sWSQ} offen lds")
    a(f"s_mov_b32 m0, s{sQB2}")
    a(f"buffer_load_dwordx4 v{vSE}, {B(S_EA)}, 0 offen lds")

def lane_consts_run(a):
    e, hh, f, t, u = 92, 93, 94, 95, 96
    a(f"v_and_b32 v{e}, 31, v{vL}")
    a(f"v_lshrrev_b32 v{hh}, 5, v{vL}")
    a(f"v_lshlrev_b32 v{t}, 6, v{e}")
    a(f"v_lshlrev_b32 v{u}, 4, v{e}")
    a(f"v_add_u32 v{u}, {O_D2}, v{u}")
    a(f"v_cmp_eq_u32 vcc, 0, v{hh}")
    a(f"v_cndmask_b32 v{t}, v{u}, v{t}, vcc")
    a(f"v_add_u32 v{vSEL}, {L_T0}, v{t}")
    a(f"v_bfe_u32 v{t}, v{vL}, 2, 2")
    a(f"v_lshlrev_b32 v{t}, 6, v{t}")
    a(f"v_lshl_add_u32 v{t}, v{hh}, 8, v{t}")
    a(f"v_and_b32 v{u}, 16, v{vL}")
    a(f"v_lshl_add_u32 v{t}, v{u}, 1, v{t}")
    a(f"v_and_b32 v{u}, 3, v{vL}")
    a(f"v_lshl_add_u32 v{t}, v{u}, 3, v{t}")
    a(f"v_add_u32 v{vST}, {L_T0}, v{t}")
    a(f"v_lshrrev_b32 v{t}, 2, v{vL}")
    a(f"v_lshlrev_b32 v{t}, 4, v{t}")
    a(f"v_add_u32 v{vLS}, {L_T0+O_D2+4}, v{t}")
    a(f"v_lshrrev_b32 v{t}, 1, v{vL}")
    a(f"v_lshlrev_b32 v{t}, 4, v{t}")
    a(f"v_add_u32 v{vLE}, {L_T0+O_D2+8}, v{t}")

def table_job(a, WT):
    L = 2
    e, hh, f, t, u = 16, 17, 18, 19, 20
    a("s_sub_u32 s33, s33, 69")
    a(f"v_and_b32 v{e}, 31, v{L}")
    a(f"v_lshrrev_b32 v{hh}, 5, v{L}")
    a(f"v_lshrrev_b32 v{t}, 4, v{L}")
    a(f"v_xor_b32 v{t}, v{t}, v{L}")
    a(f"v_and_b32 v{t}, 3, v{t}")
    a(f"v_lshlrev_b32 v{t}, 4, v{t}")
    a("s_lshl_b32 s34, s33, 6")
    a(f"v_add_u32 v24, s34, v{t}")
    a(f"v_lshlrev_b32 v{t}, 4, v{e}")
    a("s_lshl_b32 s34, s33, 9")
    a(f"s_add_u32 s34, s34, {L_PST}")
    a(f"v_add_u32 v{t}, s34, v{t}")
    a(f"v_add_u32 v{u}, {O_WD}, v{t}")
    a(f"v_cmp_eq_u32 vcc, 0, v{hh}")
    a(f"v_cndmask_b32 v25, v{u}, v{t}, vcc")
    a(f"v_and_b32 v{t}, 7, v{e}")
    a(f"v_mul_u32_u24 v{t}, {MBROW}, v{t}")
    a(f"v_lshl_add_u32 v{t}, v{hh}, 3, v{t}")
    a("s_lshl_b32 s34, s33, 6")
    a(f"s_add_u32 s34, s34, {L_MB}")
    a(f"v_add_u32 v26, s34, v{t}")
    a(f"v_lshlrev_b32 v{t}, 5, v{e}")
    a(f"v_lshl_add_u32 v{t}, v{hh}, 4, v{t}")
    a("s_lshl_b32 s34, s33, 2")
    a(f"s_add_u32 s34, s34, {L_POSP}")
    a(f"v_add_u32 v27, s34, v{t}")
    a("s_lshl_b32 s35, s33, 10")
    a(f"s_add_u32 s35, s35, {IMG_TAB + 4096}")
    a("buffer_store_dwordx4 v[24:27], v3, s[28:31], s35 offen" + WT)
    a("s_cmp_lg_u32 s33, 0")
    a("s_cbranch_scc1 K1_tabd")
    a(f"v_bfe_u32 v{f}, v{e}, 2, 2")
    a(f"v_xor_b32 v{t}, v{hh}, v{f}")
    a(f"v_lshlrev_b32 v{t}, 4, v{t}")
    a(f"v_lshl_add_u32 v28, v{e}, 6, v{t}")
    a(f"v_lshlrev_b32 v{t}, 4, v{hh}")
    a(f"v_lshl_add_u32 v29, v{e}, 5, v{t}")
    a(f"v_and_b32 v{u}, 1, v{L}")
    a(f"v_lshlrev_b32 v30, 4, v{u}")
    a(f"v_lshlrev_b32 v{t}, 6, v{e}")
    a(f"v_lshlrev_b32 v{u}, 4, v{e}")
    a(f"v_add_u32 v{u}, {O_D2}, v{u}")
    a(f"v_cndmask_b32 v{t}, v{u}, v{t}, vcc")
    a(f"v_add_u32 v31, {L_T0}, v{t}")
    a(f"v_bfe_u32 v{t}, v{L}, 2, 2")
    a(f"v_lshlrev_b32 v{t}, 6, v{t}")
    a(f"v_lshl_add_u32 v{t}, v{hh}, 8, v{t}")
    a(f"v_and_b32 v{u}, 16, v{L}")
    a(f"v_lshl_add_u32 v{t}, v{u}, 1, v{t}")
    a(f"v_and_b32 v{u}, 3, v{L}")
    a(f"v_lshl_add_u32 v{t}, v{u}, 3, v{t}")
    a(f"v_add_u32 v32, {L_T0}, v{t}")
    a(f"v_lshrrev_b32 v{t}, 2, v{L}")
    a(f"v_lshlrev_b32 v{t}, 4, v{t}")
    a(f"v_add_u32 v33, {L_T0+O_D2+4}, v{t}")
    a(f"v_lshrrev_b32 v{t}, 1, v{L}")
    a(f"v_lshlrev_b32 v{t}, 4, v{t}")
    a(f"v_add_u32 v34, {L_T0+O_D2+8}, v{t}")
    a(f"v_mov_b32 v{u}, 2048")
    a(f"v_cndmask_b32 v35, 0, v{u}, vcc")
    a(f"v_and_b32 v{t}, 15, v{e}")
    a(f"v_lshlrev_b32 v{u}, 3, v{hh}")
    a(f"v_sub_u32 v{t}, v{t}, v{u}")
    a(f"v_and_b32 v{u}, 1, v{t}")
    a(f"v_lshlrev_b32 v{u}, 4, v{u}")
    a(f"v_mov_b32 v{f}, 0x3f80")
    a(f"v_lshlrev_b32 v{u}, v{u}, v{f}")
    a(f"v_cmp_gt_u32 vcc, 8, v{t}")
    a(f"v_cndmask_b32 v{u}, 0, v{u}, vcc")
    a(f"v_bfe_u32 v{t}, v{t}, 1, 2")
    a(f"v_lshrrev_b32 v{f}, 4, v{e}")
    a(f"v_lshl_add_u32 v{t}, v{f}, 2, v{t}")
    for d in range(8):
        a(f"v_cmp_eq_u32 vcc, {d}, v{t}")
        a(f"v_cndmask_b32 v{36+d}, 0, v{u}, vcc")
    a(f"s_mov_b32 s35, {IMG_TAB}")
    a("buffer_store_dwordx4 v[36:39], v3, s[28:31], s35 offen" + WT)
    a("buffer_store_dwordx4 v[40:43], v3, s[28:31], s35 offen offset:1024" + WT)
    a("buffer_store_dwordx4 v[28:31], v3, s[28:31], s35 offen offset:2048" + WT)
    a("buffer_store_dwordx4 v[32:35], v3, s[28:31], s35 offen offset:3072" + WT)
    a.label("K1_tabd")
    a.clear_hist()

def gen_k2(a):
    a(f"s_cmp_ge_u32 s2, {T}")
    a("s_cbranch_scc1 K2_end")
    stamp(a, 0)
    if "rt" in DBG: rt_begin(a, 86)
    if "clk2" in DBG:
        a("s_memtime s[88:89]")
        a("s_memrealtime s[90:91]")
    a("s_load_dwordx2 s[4:5], s[0:1], 80")
    a("s_load_dwordx4 s[64:67], s[0:1], 0")
    a("s_load_dwordx2 s[68:69], s[0:1], 16")
    a("s_load_dwordx2 s[70:71], s[0:1], 64")
    a(f"s_mov_b32 s{sT}, s2")
    a(f"v_lshrrev_b32 v{vX}, 4, v0")
    a(f"v_lshlrev_b32 v{vY}, 6, v{vX}")
    a(f"v_lshl_add_u32 v{vY}, v0, 2, v{vY}")
    a(f"v_mul_u32_u24 v{vCB}, {CH}, v{vX}")
    a(f"v_lshrrev_b32 v{vX}, 6, v0")
    a(f"v_readfirstlane_b32 s{sW}, v{vX}")
    a(f"v_and_b32 v{vL}, 63, v0")
    a(f"s_lshl_b32 s3, s{sT}, 13")
    a(f"v_lshlrev_b32 v{vX}, 4, v{vL}")
    a(f"s_and_b32 s{sS}, s{sW}, 3")
    a(f"s_lshr_b32 s{sQ}, s{sW}, 2")
    a(f"s_mul_i32 s{sQB}, s{sW}, {QSW}")
    a(f"s_add_u32 s{sQB}, s{sQB}, {L_QS}")
    a(f"s_add_u32 s{sQB1}, s{sQB}, 1024")
    a(f"s_add_u32 s{sQB2}, s{sQB}, 2048")
    a(f"s_mul_i32 s63, s{sT}, 10240")
    a(f"s_add_u32 s63, s63, {WS_P}")
    a(f"s_cmp_ge_u32 s{sW}, 10")
    a(f"s_cselect_b32 s63, {WS_IMG + IMG_WD16 - 10240}, s63")
    a(f"s_lshl_b32 s72, s{sW}, 10")
    a(f"s_add_u32 s63, s63, s72")
    a(f"s_add_u32 s72, s72, {L_PST}")
    a("s_waitcnt lgkmcnt(0)")
    stamp(a, 1)
    srd(a, S_WS, 4, 5, WS_END)
    a(f"buffer_load_dword v{RS0.rec}, v{vY}, {B(S_WS)}, s3 offen")
    a(f"buffer_load_dword v{RS1.rec}, v{vY}, {B(S_WS)}, s3 offen offset:64")
    a("s_mov_b32 m0, s72")
    a(f"s_mov_b32 s{sWSP4}, {WS_POS4}")
    a(f"buffer_load_dwordx4 v{vX}, {B(S_WS)}, s63 offen lds")
    a(f"s_cmp_ge_u32 s{sW}, 10")
    a("s_cbranch_scc1 K2_nx")
    a(f"s_cmp_ge_u32 s{sW}, 8")
    a("s_cbranch_scc1 K2_x8")
    a(f"s_lshl_b32 s3, s{sW}, 10")
    a(f"s_add_u32 m0, s3, {L_QS}")
    a(f"s_add_u32 s3, s3, {WS_IMG + IMG_TAB}")
    a(f"buffer_load_dwordx4 v{vX}, {B(S_WS)}, s3 offen lds")
    a("s_branch K2_nx")
    a.label("K2_x8")
    a(f"s_cmp_eq_u32 s{sW}, 9")
    a("s_cbranch_scc1 K2_x9")
    a(f"s_mul_i32 s3, s{sT}, 320")
    a(f"s_add_u32 s3, s3, {WS_POS4}")
    a(f"s_mov_b32 m0, {L_PD}")
    a("s_mov_b64 exec, 0xfffff")
    a(f"buffer_load_dwordx4 v{vX}, {B(S_WS)}, s3 offen lds")
    a("s_mov_b64 exec, -1")
    a("s_branch K2_nx")
    a.label("K2_x9")
    a(f"s_mov_b32 s3, {WS_IMG + IMG_WXF}")
    a(f"s_mov_b32 m0, {L_WX}")
    a("s_mov_b32 exec_hi, 0")
    a(f"buffer_load_dwordx4 v{vX}, {B(S_WS)}, s3 offen lds")
    a("s_mov_b64 exec, -1")
    a.label("K2_nx")
    a.clear_hist()
    srd(a, S_EA, 68, 69, E * 32)
    srd(a, S_OUT, 70, 71, N * 262)
    srd(a, S_H, 64, 65, N * 256)
    srd(a, S_POS, 66, 67, N * 6)
    a(f"s_mov_b32 s{sONE}, 1.0")
    a(f"s_mov_b32 s{sONE+1}, 1.0")
    a(f"s_mov_b32 s{sSLOW}, 0")
    a(f"s_mov_b32 s{sWSQ}, {WS_Q}")
    a(f"s_mul_i32 s{sT240}, s{sT}, 240")
    a(f"s_mov_b32 s{sLN2}, {f2u(LN2):#x}")
    a(f"s_mov_b32 s{sLOG2E}, {f2u(LOG2E):#x}")
    a.label("K2_batch")
    a.clear_hist()
    a(f"v_lshlrev_b32 v{vZ}, 4, v0")
    for r in range(4): a(f"v_mov_b32 v{vZR+r}, 0")
    ZR = f"v[{vZR}:{vZR+3}]"
    nfull = (MAXT * TS) // 16384
    for i in range(nfull):
        if i == 3: a(f"v_add_u32 v{vX}, 49152, v{vZ}")
        a(f"ds_write_b128 v{vZ if i < 3 else vX}, {ZR} offset:{L_T0 + i*16384 - (49152 if i >= 3 else 0)}")
    rem = MAXT * TS - nfull * 16384
    masked(a, f"v_cmp_gt_u32 vcc, {rem//16}, v0", "K2_zf", lambda: a(f"ds_write_b128 v{vX}, {ZR} offset:{L_T0+nfull*16384-49152}"))
    masked(a, "v_cmp_gt_u32 vcc, 6, v0", "K2_cz", lambda: a(f"ds_write_b128 v{vZ}, {ZR}"))
    a(f"v_mov_b32 v{vONE1}, 1")
    a(f"v_mov_b32 v{vK1}, 0x3f80")
    a(f"s_cmp_lg_u32 s{sSLOW}, 0")
    a("s_cbranch_scc1 K2_slowload")
    a("s_waitcnt vmcnt(0) lgkmcnt(0)")
    a("s_barrier")
    a(f"v_lshlrev_b32 v{vX}, 4, v{vL}")
    a(f"v_add_u32 v{vX}, {L_QS}, v{vX}")
    a(f"s_lshl_b32 s3, s{sS}, 10")
    a(f"v_add_u32 v{vY}, s3, v{vX}")
    a(f"ds_read_b128 v[{vQ0}:{vQ0+3}], v{vX} offset:2048")
    a(f"ds_read_b128 v[{vST}:{vST+3}], v{vX} offset:3072")
    a(f"ds_read_b128 v[{vCQ}:{vCQ+3}], v{vY} offset:4096")
    a(f"ds_read_b128 v[{vID}:{vID+3}], v{vX}")
    a(f"ds_read_b128 v[{vID+4}:{vID+7}], v{vX} offset:1024")
    stamp(a, 2)
    stamp(a, 3)
    for r in (RS0, RS1):
        a(f"v_lshrrev_b32 v{r.eid}, 20, v{r.rec}")
        a(f"v_add_u32 v{r.eid}, v{r.eid}, v{vCB}")
    a.label("K2_sort")
    a.clear_hist()
    a(f"v_cmp_gt_u32 s[{sV0}:{sV0+1}], -2, v{RS0.rec}")
    a(f"v_cmp_gt_u32 s[{sV1}:{sV1+1}], -2, v{RS1.rec}")
    a(f"v_cmp_eq_u32 vcc, -2, v{RS1.rec}")
    a("s_cbranch_vccz K2_nomark")
    a(f"v_mov_b32 v{vX}, 0")
    a(f"v_mov_b32 v{vY}, 0x10000")
    a("s_mov_b64 exec, vcc")
    a(f"ds_add_u32 v{vX}, v{vY} offset:{L_CNT}")
    a("s_mov_b64 exec, -1")
    a.label("K2_nomark")
    a(f"s_mov_b64 exec, s[{sV0}:{sV0+1}]")
    a("s_cbranch_execz K2_p1a")
    phase1(a, RS0)
    a.label("K2_p1a")
    a(f"s_mov_b64 exec, s[{sV1}:{sV1+1}]")
    a("s_cbranch_execz K2_p1b")
    phase1(a, RS1)
    a.label("K2_p1b")
    a("s_mov_b64 exec, -1")
    a("s_waitcnt lgkmcnt(0)")
    a("s_barrier")
    stamp(a, 4)
    a(f"s_cmp_lg_u32 s{sSLOW}, 0")
    a("s_cbranch_scc1 K2_cdone")
    a(f"v_add_u32 v{vQ0}, s{sQB}, v{vQ0}")
    a(f"v_xor_b32 v{vQ1}, 32, v{vQ0}")
    a(f"v_add_u32 v{vEA}, s{sQB2}, v{vEA}")
    a(f"s_mul_i32 s3, s{sQ}, {8*MBROW}")
    a(f"v_add_u32 v{vFM}, s3, v{vFM}")
    a(f"s_lshl_b32 s3, s{sQ}, 10")
    a(f"v_add_u32 v{vFP}, s3, v{vFP}")
    a.label("K2_cdone")
    a(f"v_and_b32 v{vX}, 7, v0")
    a(f"v_lshlrev_b32 v{vX}, 2, v{vX}")
    a(f"ds_read_b32 v{vY}, v{vX} offset:{L_CNT}")
    a("s_waitcnt lgkmcnt(0)")
    a(f"v_add_u32 v{vT32}, 31, v{vY}")
    a(f"v_lshrrev_b32 v{vT32}, 5, v{vT32}")
    a(f"v_add_u32 v{vZ}, -1, v{vY}")
    a(f"v_and_b32 v{vZ}, 31, v{vZ}")
    a(f"v_cmp_gt_u32 s[{sHM}:{sHM+1}], 16, v{vZ}")
    a(f"v_mov_b32 v{vY}, v{vT32}")
    for sh in (1, 2, 4):
        a(f"v_add_u32_dpp v{vT32}, v{vT32}, v{vT32} row_shr:{sh} row_mask:0xf bank_mask:0xf bound_ctrl:0")
    for g in range(5):
        a(f"v_readlane_b32 s{sTG+g+1}, v{vT32}, {g}")
    a(f"s_mov_b32 s{sTG}, 0")
    a(f"v_sub_u32 v{vT32}, v{vT32}, v{vY}")
    a(f"v_lshlrev_b32 v{vT32}, 5, v{vT32}")
    a(f"s_cmp_lg_u32 s{sSLOW}, 0")
    a("s_cbranch_scc1 K2_go")
    a(f"s_cmp_gt_u32 s{sNT}, {MAXT}")
    a("s_cbranch_scc1 K2_toslow")
    a.label("K2_go")
    a(f"ds_bpermute_b32 v{RS0.x}, v{RS0.g}, v{vT32}")
    a(f"ds_bpermute_b32 v{RS1.x}, v{RS1.g}, v{vT32}")
    a(f"s_mul_i32 s{sA}, s{sQ}, s{sNT}")
    a(f"s_add_u32 s{sB}, s{sA}, s{sNT}")
    a(f"s_lshr_b32 s{sA}, s{sA}, 2")
    a(f"s_lshr_b32 s{sB}, s{sB}, 2")
    a("s_waitcnt lgkmcnt(0)")
    a(f"s_mov_b64 exec, s[{sV0}:{sV0+1}]")
    a("s_cbranch_execz K2_p1c")
    phase1b(a, RS0)
    a.label("K2_p1c")
    a(f"s_mov_b64 exec, s[{sV1}:{sV1+1}]")
    a("s_cbranch_execz K2_p1d")
    phase1b(a, RS1)
    a.label("K2_p1d")
    a("s_mov_b64 exec, -1")
    a(f"s_cmp_lg_u32 s{sSLOW}, 0")
    a("s_cbranch_scc1 K2_slowaddr")
    a.label("K2_addr")
    a(f"s_mul_i32 s3, s{sA}, {TS}")
    for r in (vSEL, vST, vLS, vLE):
        a(f"v_add_u32 v{r}, s3, v{r}")
    a("s_waitcnt lgkmcnt(0)")
    a("s_barrier")
    stamp(a, 5)
    a(f"s_cmp_ge_u32 s{sA}, s{sB}")
    a("s_cbranch_scc1 K2_noq0")
    a(f"ds_read2_b32 v[{vSN}:{vSN+1}], v{vLS} offset0:0 offset1:64")
    a(f"ds_read_b32 v{vSE}, v{vLE}")
    a("s_waitcnt lgkmcnt(0)")
    issue_dma(a)
    a("s_waitcnt vmcnt(3)")
    a("s_branch K2_q0done")
    a.label("K2_noq0")
    a("s_waitcnt vmcnt(0)")
    a.label("K2_q0done")
    a.clear_hist()
    stamp(a, 6)
    a(f"v_add_u32 v{vLS}, {TS}, v{vLS}")
    a(f"v_add_u32 v{vLE}, {TS}, v{vLE}")
    a(f"s_mov_b64 exec, s[{sV0}:{sV0+1}]")
    a("s_cbranch_execz K2_p2a")
    phase2(a, RS0)
    a.label("K2_p2a")
    a(f"s_mov_b64 exec, s[{sV1}:{sV1+1}]")
    a("s_cbranch_execz K2_p2b")
    phase2(a, RS1)
    a.label("K2_p2b")
    a("s_mov_b64 exec, -1")
    a(f"s_mov_b32 s{sJ}, s{sA}")
    a("s_waitcnt lgkmcnt(0)")
    a("s_barrier")
    a(f"v_and_b32 v{vX}, 63, v0")
    a(f"v_lshlrev_b32 v{vX}, 4, v{vX}")
    a(f"s_lshl_b32 s3, s{sS}, 10")
    a(f"s_add_u32 s3, s3, {L_PST + O_W4}")
    a(f"v_add_u32 v{vX}, s3, v{vX}")
    a(f"ds_read_b128 v[{vW4}:{vW4+3}], v{vX}")
    stamp(a, 7)
    for g in range(5):
        main_group(a, g)
    a.label("K2_mainend")
    a.clear_hist()
    a("s_setprio 0")
    stamp(a, 8)
    a(f"s_cmp_eq_u32 s{sSLOW}, 0")
    a("s_cbranch_scc1 K2_epi")
    a(f"s_add_u32 s{sSLOW}, s{sSLOW}, 1")
    a(f"s_cmp_gt_u32 s{sSLOW}, {SLOW_NBLK}")
    a("s_cbranch_scc1 K2_slowend")
    a("s_waitcnt vmcnt(0) lgkmcnt(0)")
    a("s_barrier")
    a("s_branch K2_batch")
    a.label("K2_epi")
    a.clear_hist()
    epilogue(a)
    a.label("K2_end")
    a("s_endpgm")
    slow_code(a)

def silu_part(a, r0, n):
    if "nosilu" in DBG: return
    for i in range(r0, r0 + n): a(f"v_exp_f32 v{vT+i}, -v{vD1+i}")
    for i in range(r0, r0 + n, 2): a(f"v_pk_add_f32 v[{vT+i}:{vT+i+1}], v[{vT+i}:{vT+i+1}], s[{sONE}:{sONE+1}]")
    for i in range(r0, r0 + n): a(f"v_rcp_f32 v{vT+i}, v{vT+i}")
    for i in range(r0, r0 + n, 2): a(f"v_pk_mul_f32 v[{vT+i}:{vT+i+1}], v[{vT+i}:{vT+i+1}], v[{vD1+i}:{vD1+i+1}]")
    for i in range(r0, r0 + n, 2): a(f"v_cvt_pk_bf16_f32 v{vM+i//2}, v{vT+i}, v{vT+i+1}")

def main_group(a, g):
    L = f"K2_g{g}"
    D1 = f"v[{vD1}:{vD1+15}]"; ACC = f"v[{vACC}:{vACC+15}]"
    a.label(L)
    a.clear_hist()
    a(f"s_min_u32 s{sEND}, s{sB}, s{sTG+g+1}")
    a(f"s_cmp_ge_u32 s{sJ}, s{sEND}")
    a(f"s_cbranch_scc1 {L}_done")
    if g: a(f"v_mad_u32_u24 v{vX}, v{vPBs}, {g}, v{vPBb}")
    a(f"ds_read_b128 v[{vPB}:{vPB+3}], v{vX if g else vPBb}")
    a(f"s_sub_u32 s{sHALF}, s{sTG+g+1}, 1")
    a(f"s_bitcmp1_b32 s{sHM}, {g}")
    a(f"s_cselect_b32 s{sHALF}, s{sHALF}, -1")
    a(f"s_mov_b32 s{sFIRST}, 1")
    a.label(f"{L}_loop")
    a.clear_hist()
    if "nofair" not in DBG:
        a(f"s_sub_u32 s72, s{sB}, s{sJ}")
        a(f"s_cmp_ge_u32 s72, 4")
        a(f"s_cbranch_scc1 {L}_p3")
        a(f"s_cmp_ge_u32 s72, 3")
        a(f"s_cbranch_scc1 {L}_p2")
        a(f"s_cmp_ge_u32 s72, 2")
        a(f"s_cbranch_scc1 {L}_p1")
        a("s_setprio 0")
        a(f"s_branch {L}_pd")
        a.label(f"{L}_p1"); a("s_setprio 1"); a(f"s_branch {L}_pd")
        a.label(f"{L}_p2"); a("s_setprio 2"); a(f"s_branch {L}_pd")
        a.label(f"{L}_p3"); a("s_setprio 3")
        a.label(f"{L}_pd")
    a(f"ds_read2_b32 v[{vSN}:{vSN+1}], v{vLS} offset0:0 offset1:64")
    a(f"ds_read_b32 v{vSE}, v{vLE}")
    a(f"ds_read_b128 v[{vA+12}:{vA+15}], v{vSEL}")
    a("s_waitcnt vmcnt(0)")
    a(f"ds_read_b128 v[{vA+8}:{vA+11}], v{vEA}")
    a(f"ds_read_b128 v[{vA}:{vA+3}], v{vQ0}")
    a(f"ds_read_b128 v[{vA+4}:{vA+7}], v{vQ1}")
    a("s_waitcnt lgkmcnt(3)")
    a(f"v_mfma_f32_32x32x16_bf16 {D1}, v[{vA+12}:{vA+15}], v[{vPB}:{vPB+3}], 0")
    for i in range(4):
        a(f"ds_read_b64_tr_b16 v[{vSB+2*i}:{vSB+2*i+1}], v{vST} offset:{512*i}")
    a("s_waitcnt lgkmcnt(6)")
    a(f"v_mfma_f32_32x32x16_bf16 {D1}, v[{vA+8}:{vA+11}], v[{vW4}:{vW4+3}], {D1}")
    a("s_waitcnt lgkmcnt(4)")
    a(f"v_mfma_f32_32x32x16_bf16 {D1}, v[{vA}:{vA+3}], v[{vID}:{vID+3}], {D1}")
    a(f"v_mfma_f32_32x32x16_bf16 {D1}, v[{vA+4}:{vA+7}], v[{vID+4}:{vID+7}], {D1}")
    a(f"s_add_u32 s72, s{sJ}, 1")
    a(f"s_cmp_ge_u32 s72, s{sB}")
    if "nodma" in DBG: a(f"s_branch {L}_nodma")
    a(f"s_cbranch_scc1 {L}_nodma")
    issue_dma(a)
    a.label(f"{L}_nodma")
    for r in (vLS, vLE, vSEL, vST):
        a(f"v_add_u32 v{r}, {TS}, v{r}")
    a("s_nop 7")
    a("s_nop 1")
    silu_part(a, 0, 8)
    a("s_waitcnt lgkmcnt(0)")
    a(f"s_cmp_eq_u32 s{sFIRST}, 0")
    a(f"s_cbranch_scc1 {L}_acc")
    a(f"v_mfma_f32_32x32x16_bf16 {ACC}, v[{vM}:{vM+3}], v[{vSB}:{vSB+3}], 0")
    a(f"s_mov_b32 s{sFIRST}, 0")
    a(f"s_branch {L}_acc2")
    a.label(f"{L}_acc")
    a(f"v_mfma_f32_32x32x16_bf16 {ACC}, v[{vM}:{vM+3}], v[{vSB}:{vSB+3}], {ACC}")
    a.label(f"{L}_acc2")
    a(f"s_cmp_eq_u32 s{sJ}, s{sHALF}")
    a(f"s_cbranch_scc1 {L}_skip2")
    silu_part(a, 8, 8)
    a(f"v_mfma_f32_32x32x16_bf16 {ACC}, v[{vM+4}:{vM+7}], v[{vSB+4}:{vSB+7}], {ACC}")
    a.label(f"{L}_skip2")
    a(f"s_add_u32 s{sJ}, s{sJ}, 1")
    a(f"s_cmp_lt_u32 s{sJ}, s{sEND}")
    a(f"s_cbranch_scc1 {L}_loop")
    a.clear_hist()
    if "noflush" in DBG: a(f"s_branch {L}_done")
    a(f"v_and_b32 v{vX}, 16, v{vFP}")
    a(f"s_lshl_b32 s72, s{sS}, 7")
    a(f"s_add_u32 s72, s72, {L_WX}")
    a(f"v_add_u32 v{vX}, s72, v{vX}")
    for q4 in range(4):
        a(f"ds_read_b128 v[{vT+4*q4}:{vT+4*q4+3}], v{vX} offset:{q4*32}")
    a(f"s_cmp_lg_u32 s{sSLOW}, 0")
    a(f"s_cbranch_scc1 {L}_sflush")
    a("s_nop 7")
    for p in range(8):
        a(f"v_cvt_pk_bf16_f32 v{vM+p}, v{vACC+2*p}, v{vACC+2*p+1}")
    a("s_mov_b32 exec_lo, 0xff")
    a("s_mov_b32 exec_hi, 0xff")
    for gm in range(4):
        a(f"ds_write_b64 v{vFM}, v[{vM+2*gm}:{vM+2*gm+1}] offset:{g*8*MBROW + gm*16}")
    a("s_mov_b64 exec, -1")
    a("s_waitcnt lgkmcnt(4)")
    a(f"v_pk_mul_f32 v[{vSB}:{vSB+1}], v[{vACC}:{vACC+1}], v[{vT}:{vT+1}]")
    for i in range(2, 16, 2):
        a(f"v_pk_fma_f32 v[{vSB}:{vSB+1}], v[{vACC+i}:{vACC+i+1}], v[{vT+i}:{vT+i+1}], v[{vSB}:{vSB+1}]")
    a(f"v_add_f32 v{vSB}, v{vSB}, v{vSB+1}")
    a(f"ds_write_b32 v{vFP}, v{vSB} offset:{g*1024}")
    a(f"s_cmp_lg_u32 s{sS}, 0")
    a(f"s_cbranch_scc1 {L}_done")
    a(f"s_lshl_b32 s72, s{sQ}, 2")
    a(f"v_mov_b32 v{vX}, s72")
    a(f"v_mov_b32 v{vY}, {g+1}")
    a("s_mov_b64 exec, 1")
    a(f"ds_write_b32 v{vX}, v{vY} offset:{L_OWN + 4*g}")
    a("s_mov_b64 exec, -1")
    a.label(f"{L}_done")

def epilogue(a):
    D0 = f"v[{vACC}:{vACC+15}]"
    vB = 56
    vAf = 88
    PH = 64
    a(f"v_and_b32 v4, 63, v0")
    a(f"s_mul_i32 s73, s{sT}, {40*256}")
    a(f"s_cmp_ge_u32 s{sW}, 10")
    a("s_cbranch_scc1 K2_eh")
    a("v_lshrrev_b32 v5, 4, v4")
    a(f"s_lshl_b32 s3, s{sW}, 2")
    a("v_add_u32 v5, s3, v5")
    a("v_xor_b32 v6, v5, v4")
    a("v_and_b32 v6, 15, v6")
    a("v_lshlrev_b32 v5, 8, v5")
    a("v_lshl_add_u32 v5, v6, 4, v5")
    a(f"s_mov_b32 m0, s{sQB}")
    a(f"buffer_load_dwordx4 v5, {B(S_H)}, s73 offen lds")
    a.label("K2_eh")
    a.clear_hist()
    a(f"s_cmp_ge_u32 s{sQ}, 2")
    a("s_cbranch_scc1 K2_e0")
    a(f"v_lshlrev_b32 v5, 4, v4")
    a(f"s_lshl_b32 s3, s{sS}, 13")
    a(f"s_xor_b32 s72, s{sQ}, 1")
    a(f"s_lshl_b32 s72, s72, 15")
    a(f"s_add_u32 s3, s3, s72")
    a(f"s_add_u32 s3, s3, {WS_IMG + IMG_WH}")
    a(f"s_add_u32 s72, s3, 4096")
    for ks in range(8):
        so = "s3" if ks < 4 else "s72"
        a(f"buffer_load_dwordx4 v[{vB+4*ks}:{vB+4*ks+3}], v5, {B(S_WS)}, {so} offen offset:{(ks%4)*1024}")
    a.label("K2_e0")
    a.clear_hist()
    a(f"v_lshlrev_b32 v2, 4, v0")
    a(f"v_mov_b32 v3, {OOB:#x}")
    a("v_cmp_gt_u32 vcc, 640, v0")
    a("v_cndmask_b32 v2, v3, v2, vcc")
    a("v_subrev_u32 v7, 640, v0")
    a("v_lshlrev_b32 v6, 1, v7")
    a("v_cmp_gt_u32 vcc, 120, v7")
    a("v_cndmask_b32 v6, v3, v6, vcc")
    a(f"s_cmp_ge_u32 s{sW}, 12")
    a("s_cbranch_scc1 K2_e00")
    a(f"buffer_load_dwordx4 v[28:31], v2, {B(S_H)}, s73 offen")
    a(f"buffer_load_ushort v36, v6, {B(S_POS)}, s{sT240} offen")
    a.label("K2_e00")
    a.clear_hist()
    a(f"s_cmp_ge_u32 s{sW}, 8")
    a("s_cbranch_scc1 K2_ew2")
    a("s_waitcnt vmcnt(10) lgkmcnt(0)")
    a("s_branch K2_ew3")
    a.label("K2_ew2")
    a("s_waitcnt vmcnt(2) lgkmcnt(0)")
    a.label("K2_ew3")
    a("s_barrier")
    stamp(a, 9)
    a(f"s_cmp_ge_u32 s{sQ}, 2")
    a("s_cbranch_scc1 K2_e1")
    a("v_and_b32 v8, 31, v4")
    a("v_lshrrev_b32 v9, 5, v4")
    a(f"v_mul_u32_u24 v11, {4*PROW}, v9")
    a("v_lshl_add_u32 v11, v8, 2, v11")
    a(f"s_lshl_b32 s72, s{sS}, 7")
    a(f"s_add_u32 s3, s72, {L_T0}")
    a(f"s_cmp_eq_u32 s{sQ}, 1")
    a("s_cbranch_scc1 K2_ehp")
    a("v_add_u32 v11, s3, v11")
    a(f"v_mul_u32_u24 v10, {MBROW}, v8")
    a("v_lshl_add_u32 v10, v9, 4, v10")
    a(f"v_add_u32 v10, {L_MB}, v10")
    for mt in range(2):
        for ks in range(8):
            a(f"ds_read_b128 v[{vAf+4*ks}:{vAf+4*ks+3}], v10 offset:{mt*32*MBROW + ks*32}")
        a("s_waitcnt vmcnt(2) lgkmcnt(0)")
        for ks in range(8):
            c = "0" if ks == 0 else D0
            a(f"v_mfma_f32_32x32x16_bf16 {D0}, v[{vAf+4*ks}:{vAf+4*ks+3}], v[{vB+4*ks}:{vB+4*ks+3}], {c}")
        for r in range(16):
            a(f"ds_write_b32 v11, v{vACC+r} offset:{(32*mt + 8*(r//4)+r%4)*PROW}")
    a("s_branch K2_e1")
    a.label("K2_ehp")
    a.clear_hist()
    a(f"s_add_u32 s3, s3, {PH*PROW}")
    a("v_add_u32 v11, s3, v11")
    for mt in range(2):
        if mt == 0: a("v_mov_b32 v12, v8")
        else:
            a("v_add_u32 v12, 32, v8")
            a("v_min_u32 v12, 39, v12")
        a("v_lshrrev_b32 v13, 2, v12")
        a(f"v_mul_u32_u24 v13, {QSW}, v13")
        a("v_and_b32 v10, 3, v12")
        a("v_lshl_add_u32 v13, v10, 8, v13")
        a("v_and_b32 v10, 15, v12")
        a("v_xor_b32 v10, v10, v9")
        a("v_lshl_add_u32 v13, v10, 4, v13")
        a(f"v_add_u32 v13, {L_QS}, v13")
        for ks in range(8):
            a(f"v_xor_b32 v10, {ks*32}, v13" if ks else "v_mov_b32 v10, v13")
            a(f"ds_read_b128 v[{vAf+4*ks}:{vAf+4*ks+3}], v10")
        a("s_waitcnt vmcnt(2) lgkmcnt(0)")
        for ks in range(8):
            c = "0" if ks == 0 else D0
            a(f"v_mfma_f32_32x32x16_bf16 {D0}, v[{vAf+4*ks}:{vAf+4*ks+3}], v[{vB+4*ks}:{vB+4*ks+3}], {c}")
        for r in range(16 if mt == 0 else 4):
            a(f"ds_write_b32 v11, v{vACC+r} offset:{(32*mt + 8*(r//4)+r%4)*PROW}")
    a.label("K2_e1")
    a.clear_hist()
    a("s_waitcnt lgkmcnt(0)")
    a("s_barrier")
    stamp(a, 10)
    a(f"s_cmp_ge_u32 s{sW}, 12")
    a("s_cbranch_scc1 K2_end")
    a(f"s_cmp_ge_u32 s{sW}, 10")
    a("s_cbranch_scc1 K2_e_pos")
    a(f"s_lshr_b32 s3, s{sW}, 1")
    a(f"s_lshl_b32 s72, s3, 2")
    a("v_mov_b32 v8, s72")
    a(f"ds_read2_b32 v[10:11], v8 offset0:{L_OWN//4} offset1:{L_OWN//4+1}")
    a(f"ds_read2_b32 v[12:13], v8 offset0:{L_OWN//4+2} offset1:{L_OWN//4+3}")
    a("v_lshrrev_b32 v5, 4, v0")
    a("v_and_b32 v5, 7, v5")
    a("v_and_b32 v6, 15, v0")
    a(f"v_mul_u32_u24 v5, {PROW}, v5")
    a("v_lshl_add_u32 v5, v6, 5, v5")
    a(f"s_mul_i32 s72, s3, {8*PROW}")
    a(f"s_add_u32 s72, s72, {L_T0}")
    a("v_add_u32 v5, s72, v5")
    a("v_lshrrev_b32 v14, 4, v0")
    a(f"v_mul_u32_u24 v14, {PROW}, v14")
    a("v_lshl_add_u32 v14, v6, 5, v14")
    a(f"v_add_u32 v14, {L_T0 + 64*PROW}, v14")
    a("ds_read_b128 v[56:59], v14")
    a("ds_read_b128 v[60:63], v14 offset:16")
    for r in range(8): a(f"v_mov_b32 v{40+r}, 0")
    a("s_add_u32 s3, s3, 1")
    a("s_waitcnt lgkmcnt(0)")
    for q in range(4):
        a(f"v_readfirstlane_b32 s72, v{10+q}")
        a(f"s_cmp_lg_u32 s72, s3")
        a(f"s_cbranch_scc1 K2_f{q}")
        a(f"ds_read_b128 v[48:51], v5 offset:{q*8*PROW}")
        a(f"ds_read_b128 v[52:55], v5 offset:{q*8*PROW+16}")
        a("s_waitcnt lgkmcnt(0)")
        for r in range(8): a(f"v_add_f32 v{40+r}, v{40+r}, v{48+r}")
        a.label(f"K2_f{q}")
        a.clear_hist()
    a("s_waitcnt vmcnt(0)")
    a(f"v_mov_b32 v48, s{sLN2}")
    a(f"v_mov_b32 v49, s{sLOG2E}")
    for r in range(8): a(f"v_fmac_f32 v{56+r}, v48, v{40+r}")
    for r in range(8): a(f"v_mul_f32 v{40+r}, v49, v{56+r}")
    for r in range(8): a(f"v_exp_f32 v{40+r}, -v{40+r}")
    for r in range(8): a(f"v_add_f32 v{40+r}, 1.0, v{40+r}")
    for r in range(8): a(f"v_rcp_f32 v{40+r}, v{40+r}")
    for r in range(8): a(f"v_mul_f32 v{40+r}, v{56+r}, v{40+r}")
    for p in range(4): a(f"v_cvt_pk_bf16_f32 v{48+p}, v{40+2*p}, v{41+2*p}")
    for p in range(4):
        a(f"v_lshlrev_b32 v{40+2*p}, 16, v{48+p}")
        a(f"v_and_b32 v{41+2*p}, 0xffff0000, v{48+p}")
        a(f"v_lshlrev_b32 v{56+2*p}, 16, v{28+p}")
        a(f"v_and_b32 v{57+2*p}, 0xffff0000, v{28+p}")
    for r in range(8): a(f"v_add_f32 v{40+r}, v{40+r}, v{56+r}")
    for p in range(4): a(f"v_cvt_pk_bf16_f32 v{48+p}, v{40+2*p}, v{41+2*p}")
    a(f"buffer_store_dwordx4 v[48:51], v2, {B(S_OUT)}, s73 offen")
    if PROF:
        a("s_waitcnt vmcnt(0)")
        stamp(a, 11)
        prof_out(a)
    if "clk2" in DBG:
        a("s_waitcnt vmcnt(0) lgkmcnt(0)")
        a("s_memtime s[92:93]")
        a("s_memrealtime s[94:95]")
        a("s_load_dwordx2 s[64:65], s[0:1], 72")
        a("s_waitcnt lgkmcnt(0)")
        a("s_sub_u32 s92, s92, s88")
        a("s_sub_u32 s94, s94, s90")
        a("s_mov_b32 s66, 256")
        a("s_mov_b32 s67, 0x20000")
        a("v_mov_b32 v100, s92")
        a("v_mov_b32 v101, s94")
        a(f"s_lshl_b32 s62, s{sT}, 3")
        a("v_mov_b32 v102, 0x7fffff00")
        a("v_cmp_eq_u32 vcc, 0, v0")
        a("v_cndmask_b32 v103, v102, v0, vcc")
        a("buffer_store_dwordx2 v[100:101], v103, s[64:67], s62 offen")
        a("s_waitcnt vmcnt(0)")
    if "rt" in DBG: rt_end(a, 86, 64, 1, sT, 100, "")
    a("s_endpgm")
    a.label("K2_e_pos")
    a.clear_hist()
    a("v_cmp_gt_u32 vcc, 120, v7")
    a("s_and_saveexec_b64 s[76:77], vcc")
    a("s_cbranch_execz K2_end")
    a("v_mul_u32_u24 v8, 43691, v7")
    a("v_lshrrev_b32 v8, 17, v8")
    a("v_mul_u32_u24 v9, 3, v8")
    a("v_sub_u32 v9, v7, v9")
    a("v_lshrrev_b32 v10, 3, v8")
    a("v_and_b32 v11, 7, v8")
    a("v_add_u32 v9, 1, v9")
    a("v_lshl_add_u32 v9, v9, 3, v11")
    a("v_lshlrev_b32 v9, 5, v9")
    a("v_lshl_add_u32 v9, v10, 10, v9")
    a(f"v_add_u32 v9, {L_POSP}, v9")
    a("v_lshlrev_b32 v12, 2, v10")
    a("v_add_u32 v10, 1, v10")
    a("v_mov_b32 v13, 0")
    for q in range(4):
        a(f"ds_read_b32 v14, v12 offset:{L_OWN + 4*q}")
        a(f"ds_read_b128 v[16:19], v9 offset:{q*1024}")
        a(f"ds_read_b128 v[20:23], v9 offset:{q*1024+16}")
        a("s_waitcnt lgkmcnt(0)")
        a("v_add_f32 v16, v16, v17"); a("v_add_f32 v18, v18, v19")
        a("v_add_f32 v20, v20, v21"); a("v_add_f32 v22, v22, v23")
        a("v_add_f32 v16, v16, v18"); a("v_add_f32 v20, v20, v22")
        a("v_add_f32 v16, v16, v20")
        a("v_cmp_eq_u32 vcc, v14, v10")
        a("v_cndmask_b32 v16, 0, v16, vcc")
        a("v_add_f32 v13, v13, v16")
    a("s_waitcnt vmcnt(0)")
    a("v_lshlrev_b32 v36, 16, v36")
    a("v_add_f32 v13, v13, v36")
    a("v_cvt_pk_bf16_f32 v13, v13, v13")
    a(f"s_add_u32 s3, s{sT240}, {N*256}")
    a(f"buffer_store_short v13, v6, {B(S_OUT)}, s3 offen")
    a("s_endpgm")

def prof_out(a):
    a(f"s_cmp_ge_u32 s{sT}, 4")
    a("s_cbranch_scc1 K2_sto")
    a(f"s_cmp_lg_u32 s{sW}, 0")
    a("s_cbranch_scc1 K2_sto")
    a(f"v_writelane_b32 v{vPR}, s{sNT}, 14")
    a("s_load_dwordx2 s[64:65], s[0:1], 72")
    a("s_waitcnt lgkmcnt(0)")
    a("s_mov_b32 s66, 256")
    a("s_mov_b32 s67, 0x20000")
    a(f"v_lshlrev_b32 v{vX}, 2, v0")
    a(f"v_mov_b32 v3, {OOB:#x}")
    a(f"v_cmp_gt_u32 vcc, 16, v0")
    a(f"v_cndmask_b32 v{vX}, v3, v{vX}, vcc")
    a(f"s_lshl_b32 s3, s{sT}, 6")
    a(f"buffer_store_dword v{vPR}, v{vX}, s[64:67], s3 offen")
    a("s_waitcnt vmcnt(0)")
    a.label("K2_sto")

def slow_code(a):
    a.label("K2_toslow")
    a.clear_hist()
    a(f"s_mov_b32 s{sSLOW}, 1")
    a("s_load_dwordx4 s[64:67], s[0:1], 24")
    a("s_waitcnt vmcnt(0) lgkmcnt(0)")
    srd(a, S_SRC, 64, 65, E * 4)
    srd(a, S_DST, 66, 67, E * 4)
    a("s_barrier")
    a(f"v_lshlrev_b32 v{vX}, 4, v0")
    a(f"v_add_u32 v{vX}, {L_MACC}, v{vX}")
    for r in range(4): a(f"v_mov_b32 v{vZR+r}, 0")
    a(f"ds_write_b128 v{vX}, v[{vZR}:{vZR+3}]")
    masked(a, f"v_cmp_gt_u32 vcc, {(40*MROW+640-16384)//16}, v0", "K2_sz", lambda: a(f"ds_write_b128 v{vX}, v[{vZR}:{vZR+3}] offset:16384"))
    a("s_waitcnt lgkmcnt(0)")
    a("s_barrier")
    a("s_branch K2_batch")
    a.label("K2_slowload")
    a.clear_hist()
    a(f"s_sub_u32 s3, s{sSLOW}, 1")
    a(f"s_mul_i32 s3, s3, {SLOW_BLK}")
    a(f"v_add_u32 v{RS0.eid}, s3, v0")
    a(f"v_lshlrev_b32 v{vX}, 2, v{RS0.eid}")
    a(f"v_mov_b32 v{vY}, {OOB:#x}")
    a(f"v_cmp_gt_u32 vcc, {SLOW_BLK}, v0")
    a(f"v_cndmask_b32 v{vX}, v{vY}, v{vX}, vcc")
    a(f"buffer_load_dword v{RS0.dl}, v{vX}, {B(S_DST)}, 0 offen")
    a(f"buffer_load_dword v{RS0.so}, v{vX}, {B(S_SRC)}, 0 offen")
    a(f"s_mul_i32 s3, s{sT}, 40")
    a(f"v_mov_b32 v{RS1.rec}, -1")
    a("s_waitcnt vmcnt(0) lgkmcnt(0)")
    a("s_barrier")
    a(f"v_subrev_u32 v{RS0.dl}, s3, v{RS0.dl}")
    a(f"v_lshl_or_b32 v{RS0.rec}, v{RS0.dl}, 14, v{RS0.so}")
    a(f"v_cmp_gt_u32 s[78:79], 40, v{RS0.dl}")
    a(f"s_and_b64 s[78:79], s[78:79], vcc")
    a(f"v_cndmask_b32 v{RS0.rec}, -1, v{RS0.rec}, s[78:79]")
    a("s_branch K2_sort")
    a.label("K2_slowaddr")
    a.clear_hist()
    a(f"v_and_b32 v{vL}, 63, v0")
    lane_consts_run(a)
    a("s_branch K2_addr")
    for g in range(5):
        L = f"K2_g{g}"
        a.label(f"{L}_sflush")
        a.clear_hist()
        a("s_waitcnt lgkmcnt(0)")
        a("s_nop 7")
        a(f"v_pk_mul_f32 v[{vSB}:{vSB+1}], v[{vACC}:{vACC+1}], v[{vT}:{vT+1}]")
        for i in range(2, 16, 2):
            a(f"v_pk_fma_f32 v[{vSB}:{vSB+1}], v[{vACC+i}:{vACC+i+1}], v[{vT+i}:{vT+i+1}], v[{vSB}:{vSB+1}]")
        a(f"v_add_f32 v{vSB}, v{vSB}, v{vSB+1}")
        a(f"v_and_b32 v{vX}, 63, v0")
        a(f"v_and_b32 v{vY}, 7, v{vX}")
        a(f"v_bfe_u32 v{vZ}, v{vX}, 3, 2")
        a(f"v_lshlrev_b32 v{vZ}, 2, v{vZ}")
        a(f"v_lshl_add_u32 v{vZ}, v{vY}, 4, v{vZ}")
        a(f"v_add_u32 v{vZ}, {L_POSACC + g*128}, v{vZ}")
        a(f"ds_add_f32 v{vZ}, v{vSB}")
        a(f"v_mul_u32_u24 v{vY}, {MROW}, v{vY}")
        a(f"v_lshrrev_b32 v{vX}, 5, v{vX}")
        a(f"v_lshl_add_u32 v{vY}, v{vX}, 4, v{vY}")
        a(f"s_lshl_b32 s72, s{sS}, 7")
        a(f"s_add_u32 s72, s72, {L_MACC}")
        a(f"v_add_u32 v{vY}, s72, v{vY}")
        a("s_mov_b32 exec_lo, 0xff")
        a("s_mov_b32 exec_hi, 0xff")
        for r in range(16):
            a(f"ds_add_f32 v{vY}, v{vACC+r} offset:{g*8*MROW + (8*(r//4)+r%4)*4}")
        a("s_mov_b64 exec, -1")
        a(f"s_branch {L}_done")
    a.label("K2_slowend")
    a.clear_hist()
    a("s_waitcnt vmcnt(0) lgkmcnt(0)")
    a("s_barrier")
    a("v_lshrrev_b32 v8, 4, v0")
    a("v_min_u32 v8, 39, v8")
    a("v_and_b32 v9, 15, v0")
    a(f"v_mul_u32_u24 v10, {MROW}, v8")
    a("v_lshl_add_u32 v10, v9, 5, v10")
    a(f"v_add_u32 v10, {L_MACC}, v10")
    a("ds_read_b128 v[24:27], v10")
    a("ds_read_b128 v[28:31], v10 offset:16")
    a("v_subrev_u32 v7, 640, v0")
    a("v_mul_u32_u24 v11, 43691, v7")
    a("v_lshrrev_b32 v11, 17, v11")
    a("v_min_u32 v11, 39, v11")
    a("v_add_u32 v12, v11, v7")
    a("v_and_b32 v12, 0xff, v12")
    a("v_lshlrev_b32 v12, 2, v12")
    a(f"v_add_u32 v12, {L_POSACC+4}, v12")
    a("ds_read_b32 v32, v12")
    a("s_waitcnt lgkmcnt(0)")
    a("s_barrier")
    def wm():
        for p in range(4): a(f"v_cvt_pk_bf16_f32 v{24+p}, v{24+2*p}, v{25+2*p}")
        a(f"v_mul_u32_u24 v10, {MBROW}, v8")
        a("v_lshl_add_u32 v10, v9, 4, v10")
        a(f"v_add_u32 v10, {L_MB}, v10")
        a("ds_write_b128 v10, v[24:27]")
    masked(a, "v_cmp_gt_u32 vcc, 640, v0", "K2_se1", wm)
    def wp():
        a("v_mul_u32_u24 v13, 3, v11")
        a("v_sub_u32 v13, v7, v13")
        a("v_add_u32 v13, 1, v13")
        a("v_and_b32 v14, 7, v11")
        a("v_lshl_add_u32 v13, v13, 3, v14")
        a("v_lshlrev_b32 v13, 5, v13")
        a("v_lshrrev_b32 v14, 3, v11")
        a("v_lshl_add_u32 v13, v14, 10, v13")
        a(f"v_add_u32 v13, {L_POSP}, v13")
        for r in range(33, 40): a(f"v_mov_b32 v{r}, 0")
        a("ds_write_b128 v13, v[32:35]")
        a("ds_write_b128 v13, v[36:39] offset:16")
    masked(a, "v_cmp_gt_u32 vcc, 120, v7", "K2_se2", wp)
    def wo():
        a("v_add_u32 v13, 1, v0")
        a("v_cmp_gt_u32 vcc, 5, v0")
        a("v_cndmask_b32 v13, 0, v13, vcc")
        a("v_lshlrev_b32 v14, 2, v0")
        a(f"ds_write_b32 v14, v13 offset:{L_OWN}")
    masked(a, "v_cmp_gt_u32 vcc, 12, v0", "K2_se3", wo)
    a("s_branch K2_epi")

K2_KD = f"""
.amdhsa_kernel {KNAME}_kernel
  .amdhsa_next_free_vgpr 128
  .amdhsa_next_free_sgpr 96
  .amdhsa_accum_offset 128
  .amdhsa_group_segment_fixed_size 0
  .amdhsa_kernarg_size 88
  .amdhsa_user_sgpr_count 2
  .amdhsa_user_sgpr_kernarg_segment_ptr 1
  .amdhsa_system_sgpr_workgroup_id_x 1
.end_amdhsa_kernel
"""
```

```python
from asmlib import *
from consts import *

K1_GWG = 157
K1_IWG = 7
K1_GRID = 64 + K1_GWG + K1_IWG
L_W = 0; L_H = 32768; L_O = L_H + 64 * 256
K1_LDS = L_O + 64 * 272
DBG1 = set()
WT = " sc0 sc1"

def srd(a, base, lo, hi, size, add=0):
    if add:
        a(f"s_add_u32 s{base}, s{lo}, {add}")
        a(f"s_addc_u32 s{base+1}, s{hi}, 0")
    else:
        a(f"s_mov_b32 s{base}, s{lo}")
        a(f"s_mov_b32 s{base+1}, s{hi}")
    a(f"s_mov_b32 s{base+2}, {size}")
    a(f"s_mov_b32 s{base+3}, 0x20000")

def g1(a, k):
    if "g1" not in DBG1: return
    a("s_memtime s[68:69]")
    a("s_waitcnt lgkmcnt(0)")
    a(f"s_mov_b32 s{70+k}, s68")
def g1out(a):
    if "g1" not in DBG1: return
    a("s_waitcnt vmcnt(0) lgkmcnt(0)")
    g1(a, 7)
    a("s_and_b32 s50, s3, 7")
    a("s_cmp_lg_u32 s50, 0")
    a("s_cbranch_scc1 K1_g1done")
    a("s_cmp_lg_u32 s2, 10")
    a("s_cbranch_scc1 K1_g1done")
    a("s_mov_b32 s51, 0")
    a("s_lshl_b32 s50, s3, 3")
    a("s_add_u32 s51, s51, s50")
    a("s_load_dwordx2 s[64:65], s[0:1], 72")
    a("s_waitcnt lgkmcnt(0)")
    a("s_mov_b32 s66, 256")
    a("s_mov_b32 s67, 0x20000")
    for k in range(8): a(f"v_writelane_b32 v104, s{70+k}, {k}")
    a("v_and_b32 v105, 63, v0")
    a("v_lshlrev_b32 v105, 2, v105")
    a("v_mov_b32 v106, 0x7fffff00")
    a("v_cmp_gt_u32 vcc, 32, v105")
    a("v_cndmask_b32 v105, v106, v105, vcc")
    a("buffer_store_dword v104, v105, s[64:67], s51 offen")
    a("s_waitcnt vmcnt(0)")
    a.label("K1_g1done")

def gen_k1(a):
    a.raw(".p2align 8")
    a.raw(".type egnn_prep_kernel,@function")
    a.label("egnn_prep_kernel")
    a(f"s_cmp_ge_u32 s2, {K1_GRID}")
    a("s_cbranch_scc1 K1_end")
    RT = "rt" in DBG1
    if RT:
        rt_begin(a, 60)
        a("s_mov_b32 s62, s2")
    def fin():
        if RT: rt_end(a, 60, 64, 0, 62, 104, "")
        a("s_endpgm")
    a("s_cmp_ge_u32 s2, 64")
    a("s_cbranch_scc1 K1_q")
    a("s_load_dwordx4 s[8:11], s[0:1], 24")
    a("s_load_dwordx2 s[18:19], s[0:1], 80")
    a("s_load_dwordx2 s[4:5], s[0:1], 8")
    a("v_lshlrev_b32 v1, 4, v0")
    a(f"s_mul_i32 s3, s2, {CH*4}")
    a("v_cmp_gt_u32 vcc, 625, v0")
    a("v_mov_b32 v12, -1"); a("v_mov_b32 v13, -1"); a("v_mov_b32 v14, -1"); a("v_mov_b32 v15, -1")
    a("v_lshlrev_b32 v2, 2, v0")
    a("v_mov_b32 v3, 0")
    a("s_waitcnt lgkmcnt(0)")
    srd(a, 24, 10, 11, E * 4)
    srd(a, 20, 8, 9, E * 4)
    a("s_and_saveexec_b64 s[32:33], vcc")
    a("s_cbranch_execz K1_b1")
    a("buffer_load_dwordx4 v[4:7], v1, s[24:27], s3 offen")
    a("buffer_load_dwordx4 v[8:11], v1, s[20:23], s3 offen")
    a.label("K1_b1")
    a("s_mov_b64 exec, s[32:33]")
    a("v_lshrrev_b32 v40, 6, v0")
    a("v_readfirstlane_b32 s38, v40")
    a("s_sub_u32 s39, s38, 10")
    a("s_cmp_ge_u32 s39, 2")
    a("s_cbranch_scc1 K1_np4")
    srd(a, 40, 4, 5, N * 6)
    a("s_lshl_b32 s44, s2, 1")
    a("s_add_u32 s44, s44, s39")
    a("s_lshl_b32 s44, s44, 6")
    a("v_and_b32 v40, 63, v0")
    a("v_add_u32 v40, s44, v40")
    a("v_mul_u32_u24 v41, 12, v40")
    a("buffer_load_dwordx3 v[44:46], v41, s[40:43], 0 offen")
    a.label("K1_np4")
    a("ds_write_b128 v1, v[12:15]")
    a("ds_write_b128 v1, v[12:15] offset:16384")
    a("v_cmp_gt_u32 vcc, 256, v0")
    a("s_and_saveexec_b64 s[34:35], vcc")
    a("s_cbranch_execz K1_b2")
    a("ds_write_b32 v2, v3 offset:32768")
    a.label("K1_b2")
    a("s_mov_b64 exec, s[34:35]")
    srd(a, 28, 18, 19, CELLS_BYTES)
    a("v_lshlrev_b32 v16, 22, v0")
    a("v_mov_b32 v17, 1")
    a("v_mov_b32 v36, 33788")
    a("s_waitcnt lgkmcnt(0)")
    a("s_barrier")
    a("s_cmp_ge_u32 s39, 2")
    a("s_cbranch_scc1 K1_np4b")
    srd(a, 40, 18, 19, POS4_BYTES, add=WS_POS4)
    a("s_waitcnt vmcnt(0)")
    a("v_mov_b32 v48, v44")
    a("v_and_b32 v49, 0xffff, v45")
    a("v_alignbit_b32 v50, v46, v45, 16")
    a("v_lshrrev_b32 v51, 16, v46")
    a("v_lshlrev_b32 v41, 4, v40")
    a("buffer_store_dwordx4 v[48:51], v41, s[40:43], 0 offen" + WT)
    a.label("K1_np4b")
    a("v_cmp_gt_u32 vcc, 625, v0")
    a("s_and_saveexec_b64 s[32:33], vcc")
    a("s_cbranch_execz K1_b3")
    a("s_waitcnt vmcnt(0)")
    for k in range(4):
        a(f"v_mul_u32_u24 v{20+k}, 52429, v{4+k}")
        a(f"v_lshrrev_b32 v{20+k}, 21, v{20+k}")
        a(f"v_lshlrev_b32 v{28+k}, 2, v{20+k}")
        a(f"ds_add_rtn_u32 v{24+k}, v{28+k}, v17 offset:32768")
    for k in range(4):
        a(f"v_mul_u32_u24 v{32+k}, 40, v{20+k}")
        a(f"v_sub_u32 v{32+k}, v{4+k}, v{32+k}")
        a(f"v_lshl_or_b32 v{8+k}, v{32+k}, 14, v{8+k}")
        if k: a(f"v_add_u32 v{32+k}, {k<<20}, v16")
        a(f"v_or_b32 v{8+k}, v{8+k}, v{32+k if k else 16}")
        a(f"v_lshlrev_b32 v{20+k}, 7, v{20+k}")
    a("s_waitcnt lgkmcnt(0)")
    for k in range(4):
        a(f"v_lshl_add_u32 v{20+k}, v{24+k}, 2, v{20+k}")
        a(f"v_cmp_gt_u32 vcc, 32, v{24+k}")
        a(f"v_cndmask_b32 v{20+k}, v36, v{20+k}, vcc")
        a(f"ds_write_b32 v{20+k}, v{8+k}")
    a.label("K1_b3")
    a("s_mov_b64 exec, s[32:33]")
    a("s_lshl_b32 s3, s2, 7")
    a("v_lshrrev_b32 v2, 3, v0")
    a("v_and_b32 v3, 7, v0")
    a("v_lshlrev_b32 v4, 2, v2")
    a("v_lshlrev_b32 v7, 13, v2")
    a("v_lshl_add_u32 v7, v3, 4, v7")
    a(f"v_add_u32 v16, {128*8192}, v7")
    a("v_cmp_eq_u32 s[36:37], 7, v3")
    a("v_mov_b32 v17, -2")
    a("s_waitcnt lgkmcnt(0)")
    a("s_barrier")
    a("ds_read_b128 v[8:11], v1")
    a("ds_read_b128 v[12:15], v1 offset:16384")
    a("ds_read_b32 v5, v4 offset:32768")
    a(f"ds_read_b32 v6, v4 offset:{32768+512}")
    a("s_waitcnt lgkmcnt(0)")
    a("v_cmp_lt_u32 vcc, 32, v5")
    a("s_and_b64 vcc, vcc, s[36:37]")
    a("v_cndmask_b32 v11, v11, v17, vcc")
    a("v_cmp_lt_u32 vcc, 32, v6")
    a("s_and_b64 vcc, vcc, s[36:37]")
    a("v_cndmask_b32 v15, v15, v17, vcc")
    a("buffer_store_dwordx4 v[8:11], v7, s[28:31], s3 offen" + WT)
    a("buffer_store_dwordx4 v[12:15], v16, s[28:31], s3 offen" + WT)
    fin()
    a.label("K1_q")
    a.clear_hist()
    a(f"s_cmp_ge_u32 s2, {64 + K1_GWG}")
    a("s_cbranch_scc1 K1_img")
    g1(a, 0)
    a("s_load_dwordx2 s[4:5], s[0:1], 0")
    a("s_load_dwordx2 s[12:13], s[0:1], 40")
    a("s_load_dwordx2 s[18:19], s[0:1], 80")
    a("v_lshrrev_b32 v1, 6, v0")
    a("v_and_b32 v2, 63, v0")
    a("v_readfirstlane_b32 s3, v1")
    a("s_sub_u32 s2, s2, 64")
    a("v_lshrrev_b32 v4, 4, v2")
    a("s_lshl_b32 s33, s3, 2")
    a("v_add_u32 v5, s33, v4")
    a("v_xor_b32 v6, v5, v2")
    a("v_and_b32 v6, 15, v6")
    a("v_lshlrev_b32 v5, 8, v5")
    a("v_lshl_add_u32 v5, v6, 4, v5")
    a("v_lshlrev_b32 v6, 2, v4")
    a("v_xor_b32 v6, v6, v2")
    a("v_and_b32 v6, 15, v6")
    a("v_lshlrev_b32 v3, 8, v4")
    a("v_lshl_add_u32 v3, v6, 4, v3")
    a(f"s_lshl_b32 s34, s2, 14")
    a("s_lshl_b32 s35, s3, 10")
    a("s_lshl_b32 s36, s3, 11")
    a("s_waitcnt lgkmcnt(0)")
    g1(a, 1)
    srd(a, 24, 4, 5, N * 256)
    srd(a, 20, 12, 13, 273 * 256)
    a("s_mov_b32 s38, 32768")
    a(f"s_add_u32 m0, s35, {L_H}")
    a("s_nop 0")
    a("buffer_load_dwordx4 v5, s[24:27], s34 offen lds")
    a("s_mul_i32 s45, s2, 5120")
    for i in range(2):
        a(f"s_add_u32 s37, s36, {i*1024}")
        if "norot" not in DBG1:
            a("s_add_u32 s37, s37, s45")
            a("s_and_b32 s37, s37, 0x7fff")
        a(f"s_add_u32 m0, s37, {L_W}")
        a("s_add_u32 s37, s37, s38")
        if "g1now" not in DBG1: a("buffer_load_dwordx4 v3, s[20:23], s37 offen lds")
    a("s_and_b32 s35, s3, 3")
    a("s_bfe_u32 s36, s3, 0x10002")
    a("v_and_b32 v4, 31, v2")
    a("v_lshrrev_b32 v5, 5, v2")
    a("v_and_b32 v6, 15, v4")
    a("v_xor_b32 v6, v6, v5")
    a("v_lshlrev_b32 v6, 4, v6")
    a("v_lshl_add_u32 v6, v4, 8, v6")
    a("s_lshl_b32 s37, s36, 13")
    a(f"s_add_u32 s37, s37, {L_H}")
    a("v_add_u32 v6, s37, v6")
    a("v_bfe_u32 v9, v2, 2, 2")
    a("v_bfe_u32 v10, v2, 4, 1")
    a("v_bfe_u32 v11, v2, 1, 1")
    a("v_lshl_add_u32 v10, v10, 1, v11")
    a("s_lshl_b32 s39, s35, 2")
    a("v_add_u32 v10, s39, v10")
    a("v_lshlrev_b32 v11, 2, v9")
    a("v_xor_b32 v10, v10, v11")
    a("v_lshl_add_u32 v9, v5, 3, v9")
    a("v_lshlrev_b32 v9, 8, v9")
    a("v_lshl_add_u32 v9, v10, 4, v9")
    a("v_and_b32 v10, 1, v2")
    a("v_lshl_add_u32 v9, v10, 3, v9")
    a("s_lshl_b32 s39, s35, 6")
    a(f"s_mov_b32 s40, {f2u(LOG2E):#x}")
    g1(a, 2)
    a("s_waitcnt vmcnt(0)")
    g1(a, 3)
    a("s_barrier")
    g1(a, 4)
    a("s_cmp_ge_u32 s3, 8")
    a("s_cbranch_scc1 K1_jd")
    for ks in range(8):
        a(f"ds_read_b64_tr_b16 v[{48+4*ks}:{49+4*ks}], v9 offset:{ks*4096}")
        a(f"ds_read_b64_tr_b16 v[{50+4*ks}:{51+4*ks}], v9 offset:{ks*4096+1024}")
    a("v_mul_u32_u24 v12, 272, v4")
    a("v_lshl_add_u32 v12, v5, 3, v12")
    a("s_mul_i32 s37, s36, %d" % (32 * 272))
    a("s_add_u32 s37, s37, s39")
    a(f"s_add_u32 s37, s37, {L_O}")
    a("v_add_u32 v12, s37, v12")
    for ks in range(8):
        a(f"v_xor_b32 v7, {ks*32}, v6" if ks else "v_mov_b32 v7, v6")
        a(f"ds_read_b128 v[{16+4*ks}:{19+4*ks}], v7")
    a("s_waitcnt lgkmcnt(0)")
    for ks in range(8):
        c = "0" if ks == 0 else "v[80:95]"
        a(f"v_mfma_f32_32x32x16_bf16 v[80:95], v[{48+4*ks}:{51+4*ks}], v[{16+4*ks}:{19+4*ks}], {c}")
    for r in range(16):
        a(f"v_mul_f32 v{80+r}, s40, v{80+r}")
    for p in range(8):
        a(f"v_cvt_pk_bf16_f32 v{96+p}, v{80+2*p}, v{81+2*p}")
    for g in range(4):
        a(f"ds_write_b64 v12, v[{96+2*g}:{97+2*g}] offset:{g*16}")
    a.label("K1_jd")
    a.clear_hist()
    g1(a, 5)
    a("v_lshrrev_b32 v4, 4, v0")
    a("v_and_b32 v5, 15, v0")
    a("v_mul_u32_u24 v6, 272, v4")
    a("v_lshl_add_u32 v6, v5, 4, v6")
    a(f"v_add_u32 v6, {L_O}, v6")
    a("v_lshlrev_b32 v7, 4, v0")
    srd(a, 20, 18, 19, Q_BYTES, add=WS_Q)
    a("s_add_u32 s35, s34, 256")
    a("s_waitcnt lgkmcnt(0)")
    a("s_barrier")
    g1(a, 6)
    a("ds_read_b128 v[16:19], v6")
    a("s_waitcnt lgkmcnt(0)")
    a("buffer_store_dwordx4 v[16:19], v7, s[20:23], s35 offen" + WT)
    a("s_cmp_lg_u32 s2, 0")
    a("s_cbranch_scc1 K1_gend")
    a("v_cmp_gt_u32 vcc, 16, v0")
    a("s_and_saveexec_b64 s[32:33], vcc")
    a("s_cbranch_execz K1_gend")
    for r in range(4): a(f"v_mov_b32 v{28+r}, 0")
    a("buffer_store_dwordx4 v[28:31], v7, s[20:23], 0 offen" + WT)
    a.label("K1_gend")
    a.clear_hist()
    a("s_mov_b64 exec, -1")
    g1out(a)
    fin()
    a.label("K1_img")
    a.clear_hist()
    a("s_load_dwordx4 s[12:15], s[0:1], 40")
    a("s_load_dwordx2 s[16:17], s[0:1], 56")
    a("s_load_dwordx2 s[18:19], s[0:1], 80")
    a("v_lshrrev_b32 v1, 6, v0")
    a("v_and_b32 v2, 63, v0")
    a("v_readfirstlane_b32 s3, v1")
    a(f"s_sub_u32 s2, s2, {64 + K1_GWG}")
    a("s_lshl_b32 s33, s2, 4")
    a("s_add_u32 s33, s33, s3")
    a("s_add_u32 s62, s33, 300")
    def fin_img():
        if RT: rt_end(a, 60, 64, 0, 62, 104, "", anywave=True)
        a("s_endpgm")
    a("v_and_b32 v4, 31, v2")
    a("v_lshrrev_b32 v5, 5, v2")
    a("v_lshlrev_b32 v6, 11, v5")
    a("v_lshl_add_u32 v6, v4, 1, v6")
    a("v_lshlrev_b32 v3, 4, v2")
    a("s_waitcnt lgkmcnt(0)")
    srd(a, 28, 18, 19, IMG_BYTES, add=WS_IMG)
    srd(a, 20, 12, 13, 273 * 256)
    a("s_cmp_ge_u32 s33, 105")
    a("s_cbranch_scc1 K1_end")
    a("s_cmp_ge_u32 s33, 101")
    a("s_cbranch_scc1 K1_tab")
    a("s_cmp_ge_u32 s33, 100")
    a("s_cbranch_scc1 K1_wd")
    a("s_cmp_ge_u32 s33, 96")
    a("s_cbranch_scc1 K1_w4")
    a("s_cmp_ge_u32 s33, 64")
    a("s_cbranch_scc1 K1_w1")
    srd(a, 24, 16, 17, 256 * 256)
    a("s_lshr_b32 s35, s33, 5")
    a("s_lshl_b32 s37, s35, 15")
    a("s_branch K1_wf")
    a.label("K1_w1")
    srd(a, 24, 12, 13, 273 * 256)
    a("s_mov_b32 s37, 0")
    a.label("K1_wf")
    a.clear_hist()
    a("s_bfe_u32 s34, s33, 0x20003")
    a("s_and_b32 s35, s33, 7")
    a("s_lshl_b32 s35, s35, 12")
    a("s_lshl_b32 s34, s34, 6")
    a("s_add_u32 s34, s34, s35")
    a("s_add_u32 s34, s34, s37")
    a("s_lshl_b32 s36, s33, 10")
    for j in range(8):
        a(f"buffer_load_ushort v{16+j}, v6, s[24:27], s34 offen offset:{j*256}")
    a("s_waitcnt vmcnt(0)")
    for p in range(4):
        a(f"v_lshl_or_b32 v{24+p}, v{17+2*p}, 16, v{16+2*p}")
    a("buffer_store_dwordx4 v[24:27], v3, s[28:31], s36 offen" + WT)
    fin_img()
    a.label("K1_w4")
    a.clear_hist()
    a("s_sub_u32 s33, s33, 96")
    a("s_lshl_b32 s34, s33, 6")
    a(f"s_add_u32 s34, s34, {257*256}")
    a("s_lshl_b32 s36, s33, 10")
    a(f"s_add_u32 s36, s36, {IMG_W4}")
    for j in range(8):
        a(f"buffer_load_ushort v{16+j}, v6, s[20:23], s34 offen offset:{j*256}")
    a(f"s_mov_b32 s40, {f2u(LOG2E):#x}")
    a("s_waitcnt vmcnt(0)")
    for j in range(8):
        a(f"v_lshlrev_b32 v{16+j}, 16, v{16+j}")
        a(f"v_mul_f32 v{16+j}, s40, v{16+j}")
    for p in range(4):
        a(f"v_cvt_pk_bf16_f32 v{24+p}, v{16+2*p}, v{17+2*p}")
    a("buffer_store_dwordx4 v[24:27], v3, s[28:31], s36 offen" + WT)
    fin_img()
    a.label("K1_wd")
    a.clear_hist()
    srd(a, 24, 14, 15, 256)
    a("v_lshlrev_b32 v7, 1, v2")
    a(f"s_mov_b32 s34, {256*256}")
    a("buffer_load_ushort v16, v7, s[20:23], s34 offen")
    a("buffer_load_ushort v17, v7, s[20:23], s34 offen offset:128")
    a("buffer_load_ushort v18, v7, s[24:27], 0 offen")
    a("buffer_load_ushort v19, v7, s[24:27], 0 offen offset:128")
    a(f"s_mov_b32 s40, {f2u(LOG2E):#x}")
    a(f"s_mov_b32 s41, {f2u(LN2):#x}")
    a("v_lshlrev_b32 v8, 2, v2")
    for r in (25, 26, 27, 29, 30, 31): a(f"v_mov_b32 v{r}, 0")
    a("s_waitcnt vmcnt(0)")
    for k in range(2):
        d = 24 + 4 * k
        a(f"v_lshlrev_b32 v{16+k}, 16, v{16+k}")
        a(f"v_mul_f32 v{16+k}, s40, v{16+k}")
        a(f"v_cvt_pk_bf16_f32 v{20+k}, v{16+k}, v{16+k}")
        a(f"v_and_b32 v{22+k}, 0xffff0000, v{20+k}")
        a(f"v_sub_f32 v{22+k}, v{16+k}, v{22+k}")
        a(f"v_cvt_pk_bf16_f32 v{d}, v{16+k}, v{22+k}")
        a(f"v_lshlrev_b32 v{18+k}, 16, v{18+k}")
        a(f"v_mul_f32 v{18+k}, s41, v{18+k}")
    a(f"s_mov_b32 s34, {IMG_WD16}")
    a(f"s_mov_b32 s35, {IMG_WXF}")
    a("buffer_store_dwordx4 v[24:27], v3, s[28:31], s34 offen" + WT)
    a("buffer_store_dwordx4 v[28:31], v3, s[28:31], s34 offen offset:1024" + WT)
    a("buffer_store_dword v18, v8, s[28:31], s35 offen" + WT)
    a("buffer_store_dword v19, v8, s[28:31], s35 offen offset:256" + WT)
    fin_img()
    a.label("K1_tab")
    a.clear_hist()
    import gen_k2
    gen_k2.table_job(a, WT)
    fin_img()
    a.label("K1_end")
    a("s_endpgm")

K1_KD = f"""
.amdhsa_kernel egnn_prep_kernel
  .amdhsa_next_free_vgpr 112
  .amdhsa_next_free_sgpr 80
  .amdhsa_accum_offset 112
  .amdhsa_group_segment_fixed_size 0
  .amdhsa_kernarg_size 88
  .amdhsa_user_sgpr_count 2
  .amdhsa_user_sgpr_kernarg_segment_ptr 1
  .amdhsa_system_sgpr_workgroup_id_x 1
.end_amdhsa_kernel
"""
```

```python
from asmlib import *
from consts import *
from gen_k1 import srd

MAXT = 28
TS = 2560
O_D2 = 2048
L_CNT = 0
L_OWN = 32
L_WX = 128
L_PD = 640
L_T0 = 1024
L_QS = L_T0 + MAXT * TS
QSW = 3072
L_MB = L_QS + 16 * QSW
MBROW = 272
L_POSP = L_MB + 64 * MBROW
L_PST = L_POSP + 8192
O_WD = 10240; O_W4 = 12288
K2_LDS = L_PST + 16384
assert K2_LDS <= 163840, K2_LDS
assert L_POSP % 32 == 0 and L_QS % 256 == 0
L_MACC = L_MB; MROW = 528; L_POSACC = L_MACC + 40 * MROW
assert L_POSACC + 640 <= L_PST
PROW = 528
assert 104 * PROW <= MAXT * TS
OOB = 0x7FFFFF00
SLOW_BLK = 640
SLOW_NBLK = E // SLOW_BLK

S_WS, S_EA, S_OUT, S_H, S_SRC, S_DST = 8, 12, 16, 20, 24, 28
S_POS = 32
sW, sS, sQ, sT = 36, 37, 38, 39
sONE = 40
sSLOW, sQB, sWSQ, sT240 = 42, 43, 44, 45
sTG = 46
sNT = sTG + 5
sHM = 52
sA, sB, sJ, sEND, sFIRST, sHALF = 54, 55, 56, 57, 58, 59
sLN2, sLOG2E = 60, 61
sWSP4 = 62
sV0, sV1 = 80, 82
sQB1, sQB2 = 84, 85
sSTS, sSTD, sHD, sT10K, sCD, sWHT, sPD = 90, 91, 92, 93, 94, 89, 88
vHO = 2
vQ1 = 1
vQ0, vEA, vEO, vSEL = 4, 5, 6, 7
vST, vLS, vLE, vPBs = 8, 9, 10, 11
vCQ, vPBb, vFM, vFP = 12, 13, 14, 15
vPB = 16
vSN, vSE = 20, 22
vX, vY, vZ = 23, 24, 25
vW4 = 28; vID = 32; vACC = 40; vD1 = 56
vA = 72; vT = 88; vM = 104; vSB = 112
vPR = 127

PROF = False
DBG = set()
def stamp(a, k):
    if not PROF: return
    a("s_memtime s[74:75]")
    a("s_waitcnt lgkmcnt(0)")
    a(f"v_writelane_b32 v{vPR}, s74, {k}")

def B(r): return f"s[{r}:{r+3}]"

def masked(a, cmp, label, body, sv=76):
    a(cmp)
    a(f"s_and_saveexec_b64 s[{sv}:{sv+1}], vcc")
    a(f"s_cbranch_execz {label}")
    body()
    a.label(label)
    a(f"s_mov_b64 exec, s[{sv}:{sv+1}]")

class RS:
    def __init__(self, base):
        self.rec = base; self.g = base + 1; self.dl = base + 2; self.so = base + 3
        self.rk = base + 4; self.tb = base + 5; self.e = base + 6; self.x = base + 7
        self.ps = base + 8; self.pd = base + 10; self.eid = base + 12
        self.c4 = base + 12
RS0, RS1 = RS(56), RS(72)
vCB, vONE1, vK1, vT32 = 100, 101, 3, 27
vZR = 88
vL = 124

def phase1(a, r):
    a(f"v_and_b32 v{r.so}, 0x3fff, v{r.rec}")
    a(f"v_lshlrev_b32 v{r.x}, 3, v{r.so}")
    a(f"buffer_load_dwordx2 v[{r.ps}:{r.ps+1}], v{r.x}, {B(S_WS)}, s{sWSP4} offen")
    a(f"v_bfe_u32 v{r.dl}, v{r.rec}, 14, 6")
    a(f"v_lshrrev_b32 v{r.g}, 1, v{r.dl}")
    a(f"v_and_b32 v{r.g}, 28, v{r.g}")
    a(f"ds_add_rtn_u32 v{r.rk}, v{r.g}, v{vONE1} offset:{L_CNT}")
    a(f"v_lshlrev_b32 v{r.tb}, 3, v{r.dl}")
    a(f"ds_read_b64 v[{r.pd}:{r.pd+1}], v{r.tb} offset:{L_PD}")
    a(f"v_lshlrev_b32 v{r.so}, 8, v{r.so}")
    a(f"v_add_u32 v{r.so}, 256, v{r.so}")

def phase1b(a, r):
    a(f"v_add_u32 v{r.rk}, v{r.rk}, v{r.x}")
    a(f"v_lshrrev_b32 v{r.tb}, 5, v{r.rk}")
    a(f"v_mul_u32_u24 v{r.tb}, {TS}, v{r.tb}")
    a(f"v_and_b32 v{r.e}, 31, v{r.rk}")
    a(f"v_lshl_add_u32 v{r.x}, v{r.e}, 4, v{r.tb}")
    a(f"v_lshlrev_b32 v{r.eid}, 8, v{r.eid}")
    a(f"ds_write_b32 v{r.x}, v{r.so} offset:{L_T0+O_D2+4}")
    a(f"ds_write_b32 v{r.x}, v{r.eid} offset:{L_T0+O_D2+8}")

def phase2(a, r):
    t0, t1, t2 = vX, vY, vZ
    a(f"v_lshlrev_b32 v{t0}, 16, v{r.ps}")
    a(f"v_lshlrev_b32 v{t1}, 16, v{r.pd}")
    a(f"v_sub_f32 v{t0}, v{t1}, v{t0}")
    a(f"v_and_b32 v{r.ps}, 0xffff0000, v{r.ps}")
    a(f"v_and_b32 v{r.pd}, 0xffff0000, v{r.pd}")
    a(f"v_sub_f32 v{t1}, v{r.pd}, v{r.ps}")
    a(f"v_lshlrev_b32 v{r.ps+1}, 16, v{r.ps+1}")
    a(f"v_lshlrev_b32 v{r.pd+1}, 16, v{r.pd+1}")
    a(f"v_sub_f32 v{t2}, v{r.pd+1}, v{r.ps+1}")
    a(f"v_cvt_pk_bf16_f32 v{r.ps}, v{t0}, v{t1}")
    a(f"v_cvt_pk_bf16_f32 v{r.ps+1}, v{t2}, v{t2}")
    a(f"v_and_b32 v{t2}, 7, v{r.dl}")
    a(f"v_lshl_add_u32 v{r.rk}, v{r.e}, 6, v{r.tb}")
    a(f"v_lshl_add_u32 v{r.rk}, v{t2}, 1, v{r.rk}")
    a(f"ds_write_b16 v{r.rk}, v{vK1} offset:{L_T0}")
    a(f"ds_write_b16 v{r.rk}, v{r.ps} offset:{L_T0+16}")
    a(f"ds_write_b16_d16_hi v{r.rk}, v{r.ps} offset:{L_T0+32}")
    a(f"ds_write_b16 v{r.rk}, v{r.ps+1} offset:{L_T0+48}")
    a(f"v_lshlrev_b32 v{t0}, 16, v{r.ps}")
    a(f"v_and_b32 v{t1}, 0xffff0000, v{r.ps}")
    a(f"v_and_b32 v{t2}, 0xffff0000, v{r.ps+1}")
    a(f"v_mul_f32 v{t0}, v{t0}, v{t0}")
    a(f"v_mul_f32 v{t1}, v{t1}, v{t1}")
    a(f"v_mul_f32 v{t2}, v{t2}, v{t2}")
    a(f"v_cvt_pk_bf16_f32 v{t0}, v{t0}, v{t1}")
    a(f"v_cvt_pk_bf16_f32 v{t2}, v{t2}, v{t2}")
    a(f"v_and_b32 v{t1}, 0xffff0000, v{t0}")
    a(f"v_lshlrev_b32 v{t0}, 16, v{t0}")
    a(f"v_and_b32 v{t2}, 0xffff0000, v{t2}")
    a(f"v_add_f32 v{t0}, v{t0}, v{t1}")
    a(f"v_add_f32 v{t0}, v{t0}, v{t2}")
    a(f"v_cvt_pk_bf16_f32 v{t0}, v{t0}, v{t0}")
    a(f"ds_write_b32 v{r.x}, v{t0} offset:{L_T0+O_D2}")

def issue_dma(a):
    if "noq" in DBG:
        a(f"v_and_b32 v{vSN}, 0x3f00, v{vSN}")
        a(f"v_and_b32 v{vSN+1}, 0x3f00, v{vSN+1}")
    a(f"v_add_u32 v{vSN}, v{vSN}, v{vCQ}")
    a(f"v_add_u32 v{vSN+1}, v{vSN+1}, v{vCQ}")
    a(f"s_mov_b32 m0, s{sQB}")
    a(f"v_lshrrev_b32 v{vSE}, 3, v{vSE}")
    a(f"buffer_load_dwordx4 v{vSN}, {B(S_WS)}, s{sWSQ} offen lds")
    a(f"s_mov_b32 m0, s{sQB1}")
    a(f"v_add_u32 v{vSE}, v{vSE}, v{vEO}")
    a(f"buffer_load_dwordx4 v{vSN+1}, {B(S_WS)}, s{sWSQ} offen lds")
    a(f"s_mov_b32 m0, s{sQB2}")
    if "noea" in DBG:
        a(f"v_and_b32 v{vSE}, 0x3ff, v{vSE}")
    if "noq" in DBG:
        a(f"s_nop 0")
    a(f"buffer_load_dwordx4 v{vSE}, {B(S_EA)}, 0 offen lds")

def lane_consts_run(a):
    e, hh, f, t, u = 92, 93, 94, 95, 96
    a(f"v_and_b32 v{e}, 31, v{vL}")
    a(f"v_lshrrev_b32 v{hh}, 5, v{vL}")
    a(f"v_lshlrev_b32 v{t}, 6, v{e}")
    a(f"v_lshlrev_b32 v{u}, 4, v{e}")
    a(f"v_add_u32 v{u}, {O_D2}, v{u}")
    a(f"v_cmp_eq_u32 vcc, 0, v{hh}")
    a(f"v_cndmask_b32 v{t}, v{u}, v{t}, vcc")
    a(f"v_add_u32 v{vSEL}, {L_T0}, v{t}")
    a(f"v_bfe_u32 v{t}, v{vL}, 2, 2")
    a(f"v_lshlrev_b32 v{t}, 6, v{t}")
    a(f"v_lshl_add_u32 v{t}, v{hh}, 8, v{t}")
    a(f"v_and_b32 v{u}, 16, v{vL}")
    a(f"v_lshl_add_u32 v{t}, v{u}, 1, v{t}")
    a(f"v_and_b32 v{u}, 3, v{vL}")
    a(f"v_lshl_add_u32 v{t}, v{u}, 3, v{t}")
    a(f"v_add_u32 v{vST}, {L_T0}, v{t}")
    a(f"v_lshrrev_b32 v{t}, 2, v{vL}")
    a(f"v_lshlrev_b32 v{t}, 4, v{t}")
    a(f"v_add_u32 v{vLS}, {L_T0+O_D2+4}, v{t}")
    a(f"v_lshrrev_b32 v{t}, 1, v{vL}")
    a(f"v_lshlrev_b32 v{t}, 4, v{t}")
    a(f"v_add_u32 v{vLE}, {L_T0+O_D2+8}, v{t}")

def table_job(a, WT):
    L = 2
    e, hh, f, t, u = 16, 17, 18, 19, 20
    a("s_sub_u32 s33, s33, 101")
    a(f"v_and_b32 v{e}, 31, v{L}")
    a(f"v_lshrrev_b32 v{hh}, 5, v{L}")
    a(f"v_lshrrev_b32 v{t}, 4, v{L}")
    a(f"v_xor_b32 v{t}, v{t}, v{L}")
    a(f"v_and_b32 v{t}, 3, v{t}")
    a(f"v_lshlrev_b32 v{t}, 4, v{t}")
    a("s_lshl_b32 s34, s33, 6")
    a(f"v_add_u32 v24, s34, v{t}")
    a(f"v_lshlrev_b32 v{t}, 4, v{e}")
    a("s_lshl_b32 s34, s33, 9")
    a(f"s_add_u32 s34, s34, {L_PST}")
    a(f"v_add_u32 v{t}, s34, v{t}")
    a(f"v_add_u32 v{u}, {O_WD}, v{t}")
    a(f"v_cmp_eq_u32 vcc, 0, v{hh}")
    a(f"v_cndmask_b32 v25, v{u}, v{t}, vcc")
    a(f"v_and_b32 v{t}, 7, v{e}")
    a(f"v_mul_u32_u24 v{t}, {MBROW}, v{t}")
    a(f"v_lshl_add_u32 v{t}, v{hh}, 3, v{t}")
    a("s_lshl_b32 s34, s33, 6")
    a(f"s_add_u32 s34, s34, {L_MB}")
    a(f"v_add_u32 v26, s34, v{t}")
    a(f"v_lshlrev_b32 v{t}, 5, v{e}")
    a(f"v_lshl_add_u32 v{t}, v{hh}, 4, v{t}")
    a("s_lshl_b32 s34, s33, 2")
    a(f"s_add_u32 s34, s34, {L_POSP}")
    a(f"v_add_u32 v27, s34, v{t}")
    a("s_lshl_b32 s35, s33, 10")
    a(f"s_add_u32 s35, s35, {IMG_TAB + 4096}")
    a("buffer_store_dwordx4 v[24:27], v3, s[28:31], s35 offen" + WT)
    a("s_cmp_lg_u32 s33, 0")
    a("s_cbranch_scc1 K1_tabd")
    a(f"v_bfe_u32 v{f}, v{e}, 2, 2")
    a(f"v_xor_b32 v{t}, v{hh}, v{f}")
    a(f"v_lshlrev_b32 v{t}, 4, v{t}")
    a(f"v_lshl_add_u32 v28, v{e}, 6, v{t}")
    a(f"v_lshlrev_b32 v{t}, 4, v{hh}")
    a(f"v_lshl_add_u32 v29, v{e}, 5, v{t}")
    a(f"v_and_b32 v{u}, 1, v{L}")
    a(f"v_lshlrev_b32 v30, 4, v{u}")
    a(f"v_lshlrev_b32 v{t}, 6, v{e}")
    a(f"v_lshlrev_b32 v{u}, 4, v{e}")
    a(f"v_add_u32 v{u}, {O_D2}, v{u}")
    a(f"v_cndmask_b32 v{t}, v{u}, v{t}, vcc")
    a(f"v_add_u32 v31, {L_T0}, v{t}")
    a(f"v_bfe_u32 v{t}, v{L}, 2, 2")
    a(f"v_lshlrev_b32 v{t}, 6, v{t}")
    a(f"v_lshl_add_u32 v{t}, v{hh}, 8, v{t}")
    a(f"v_and_b32 v{u}, 16, v{L}")
    a(f"v_lshl_add_u32 v{t}, v{u}, 1, v{t}")
    a(f"v_and_b32 v{u}, 3, v{L}")
    a(f"v_lshl_add_u32 v{t}, v{u}, 3, v{t}")
    a(f"v_add_u32 v32, {L_T0}, v{t}")
    a(f"v_lshrrev_b32 v{t}, 2, v{L}")
    a(f"v_lshlrev_b32 v{t}, 4, v{t}")
    a(f"v_add_u32 v33, {L_T0+O_D2+4}, v{t}")
    a(f"v_lshrrev_b32 v{t}, 1, v{L}")
    a(f"v_lshlrev_b32 v{t}, 4, v{t}")
    a(f"v_add_u32 v34, {L_T0+O_D2+8}, v{t}")
    a(f"v_mov_b32 v{u}, 2048")
    a(f"v_cndmask_b32 v35, 0, v{u}, vcc")
    a(f"v_and_b32 v{t}, 15, v{e}")
    a(f"v_lshlrev_b32 v{u}, 3, v{hh}")
    a(f"v_sub_u32 v{t}, v{t}, v{u}")
    a(f"v_and_b32 v{u}, 1, v{t}")
    a(f"v_lshlrev_b32 v{u}, 4, v{u}")
    a(f"v_mov_b32 v{f}, 0x3f80")
    a(f"v_lshlrev_b32 v{u}, v{u}, v{f}")
    a(f"v_cmp_gt_u32 vcc, 8, v{t}")
    a(f"v_cndmask_b32 v{u}, 0, v{u}, vcc")
    a(f"v_bfe_u32 v{t}, v{t}, 1, 2")
    a(f"v_lshrrev_b32 v{f}, 4, v{e}")
    a(f"v_lshl_add_u32 v{t}, v{f}, 2, v{t}")
    for d in range(8):
        a(f"v_cmp_eq_u32 vcc, {d}, v{t}")
        a(f"v_cndmask_b32 v{36+d}, 0, v{u}, vcc")
    a(f"s_mov_b32 s35, {IMG_TAB}")
    a("buffer_store_dwordx4 v[36:39], v3, s[28:31], s35 offen" + WT)
    a("buffer_store_dwordx4 v[40:43], v3, s[28:31], s35 offen offset:1024" + WT)
    a("buffer_store_dwordx4 v[28:31], v3, s[28:31], s35 offen offset:2048" + WT)
    a("buffer_store_dwordx4 v[32:35], v3, s[28:31], s35 offen offset:3072" + WT)
    a.label("K1_tabd")
    a.clear_hist()

def gen_k2(a):
    a(f"s_cmp_ge_u32 s2, {T}")
    a("s_cbranch_scc1 K2_end")
    stamp(a, 0)
    if "rt" in DBG: rt_begin(a, 86)
    if "clk2" in DBG:
        a("s_memtime s[96:97]")
        a("s_memrealtime s[98:99]")
    a("s_load_dwordx2 s[4:5], s[0:1], 80")
    a("s_load_dwordx4 s[64:67], s[0:1], 0")
    a("s_load_dwordx2 s[68:69], s[0:1], 16")
    a("s_load_dwordx2 s[70:71], s[0:1], 64")
    a(f"s_mov_b32 s{sT}, s2")
    a(f"v_lshrrev_b32 v{vX}, 4, v0")
    a(f"v_lshlrev_b32 v{vY}, 6, v{vX}")
    a(f"v_lshl_add_u32 v{vY}, v0, 2, v{vY}")
    a(f"v_mul_u32_u24 v{vCB}, {CH}, v{vX}")
    a(f"v_lshrrev_b32 v{vX}, 6, v0")
    a(f"v_readfirstlane_b32 s{sW}, v{vX}")
    a(f"v_and_b32 v{vL}, 63, v0")
    a(f"s_lshl_b32 s3, s{sT}, 13")
    a(f"v_lshlrev_b32 v{vX}, 4, v{vL}")
    a(f"s_and_b32 s{sS}, s{sW}, 3")
    a(f"s_lshr_b32 s{sQ}, s{sW}, 2")
    a(f"s_mul_i32 s{sQB}, s{sW}, {QSW}")
    a(f"s_add_u32 s{sQB}, s{sQB}, {L_QS}")
    a(f"s_add_u32 s{sQB1}, s{sQB}, 1024")
    a(f"s_add_u32 s{sQB2}, s{sQB}, 2048")
    a(f"s_lshl_b32 s72, s{sW}, 10")
    a(f"s_add_u32 s63, s72, {WS_IMG + IMG_WD16 - 10240}")
    a(f"s_add_u32 s72, s72, {L_PST}")
    a(f"v_lshrrev_b32 v{vZ}, 4, v{vL}")
    a(f"s_lshl_b32 s73, s{sW}, 2")
    a(f"v_add_u32 v{vZ}, s73, v{vZ}")
    a(f"v_xor_b32 v{vHO}, v{vZ}, v{vL}")
    a(f"v_and_b32 v{vHO}, 15, v{vHO}")
    a(f"v_lshlrev_b32 v{vZ}, 8, v{vZ}")
    a(f"v_lshl_add_u32 v{vHO}, v{vHO}, 4, v{vZ}")
    a(f"s_mul_i32 s{sT10K}, s{sT}, {40*256}")
    a("s_waitcnt lgkmcnt(0)")
    stamp(a, 1)
    srd(a, S_WS, 4, 5, WS_END)
    a(f"buffer_load_dword v{RS0.rec}, v{vY}, {B(S_WS)}, s3 offen")
    a(f"buffer_load_dword v{RS1.rec}, v{vY}, {B(S_WS)}, s3 offen offset:64")
    a(f"s_mov_b32 s{sWSP4}, {WS_POS4}")
    a(f"s_mov_b32 s{sSTS}, s63")
    a(f"s_mov_b32 s{sSTD}, s72")
    a(f"s_cmp_ge_u32 s{sW}, 10")
    a("s_cbranch_scc1 K2_nx")
    a(f"s_cmp_ge_u32 s{sW}, 8")
    a("s_cbranch_scc1 K2_x8")
    a(f"s_lshl_b32 s3, s{sW}, 10")
    a(f"s_add_u32 m0, s3, {L_QS}")
    a(f"s_add_u32 s3, s3, {WS_IMG + IMG_TAB}")
    a(f"buffer_load_dwordx4 v{vX}, {B(S_WS)}, s3 offen lds")
    a("s_branch K2_xh")
    a.label("K2_x8")
    a(f"s_cmp_eq_u32 s{sW}, 9")
    a("s_cbranch_scc1 K2_x9")
    a(f"s_mul_i32 s3, s{sT}, 320")
    a(f"s_add_u32 s3, s3, {WS_POS4}")
    a(f"s_mov_b32 m0, {L_PD}")
    a("s_mov_b64 exec, 0xfffff")
    a(f"buffer_load_dwordx4 v{vX}, {B(S_WS)}, s3 offen lds")
    a("s_mov_b64 exec, -1")
    a("s_branch K2_xh")
    a.label("K2_x9")
    a(f"s_mov_b32 s3, {WS_IMG + IMG_WXF}")
    a(f"s_mov_b32 m0, {L_WX}")
    a("s_mov_b32 exec_hi, 0")
    a(f"buffer_load_dwordx4 v{vX}, {B(S_WS)}, s3 offen lds")
    a("s_mov_b64 exec, -1")
    a.label("K2_xh")
    a.clear_hist()
    srd(a, S_H, 64, 65, N * 256)
    a(f"s_lshl_b32 s3, s{sW}, 10")
    a(f"s_add_u32 m0, s3, {L_MB}")
    a("s_nop 0")
    a(f"buffer_load_dwordx4 v{vHO}, {B(S_H)}, s{sT10K} offen lds")
    a.label("K2_nx")
    a.clear_hist()
    a(f"s_cmp_lt_u32 s{sQ}, 3")
    a("s_cbranch_scc1 K2_nw1")
    a(f"s_lshl_b32 s3, s{sS}, 13")
    a(f"s_add_u32 s3, s3, {WS_IMG + IMG_W1}")
    a(f"s_add_u32 s72, s3, 4096")
    for ks in range(8):
        so = "s3" if ks < 4 else "s72"
        dst = 40 + 4 * ks if ks < 4 else 104 + 4 * (ks - 4)
        a(f"buffer_load_dwordx4 v[{dst}:{dst+3}], v{vX}, {B(S_WS)}, {so} offen offset:{(ks%4)*1024}")
    a.label("K2_nw1")
    a.clear_hist()
    srd(a, S_EA, 68, 69, E * 32)
    srd(a, S_OUT, 70, 71, N * 262)
    srd(a, S_H, 64, 65, N * 256)
    srd(a, S_POS, 66, 67, N * 6)
    a(f"s_mov_b32 s{sONE}, 1.0")
    a(f"s_mov_b32 s{sONE+1}, 1.0")
    a(f"s_mov_b32 s{sSLOW}, 0")
    a(f"s_mov_b32 s{sCD}, 0")
    a(f"s_mov_b32 s{sPD}, 0")
    a(f"s_mov_b32 s{sWHT}, {WS_IMG}")
    a(f"s_mov_b32 s{sWSQ}, {WS_Q}")
    a(f"s_mul_i32 s{sT240}, s{sT}, 240")
    a(f"s_mov_b32 s{sLN2}, {f2u(LN2):#x}")
    a(f"s_mov_b32 s{sLOG2E}, {f2u(LOG2E):#x}")
    a.label("K2_batch")
    a.clear_hist()
    a(f"v_lshlrev_b32 v{vZ}, 4, v0")
    for r in range(4): a(f"v_mov_b32 v{vZR+r}, 0")
    ZR = f"v[{vZR}:{vZR+3}]"
    a(f"s_cmp_ge_u32 s{sW}, 8")
    a("s_cbranch_scc1 K2_zfd")
    nfull = (MAXT * TS) // 8192
    for i in range(nfull):
        if i == 7: a(f"v_add_u32 v{vY}, 57344, v{vZ}")
        a(f"ds_write_b128 v{vZ if i < 7 else vY}, {ZR} offset:{L_T0 + i*8192 - (57344 if i >= 7 else 0)}")
    rem = MAXT * TS - nfull * 8192
    if nfull <= 7: a(f"v_add_u32 v{vY}, 57344, v{vZ}")
    masked(a, f"v_cmp_gt_u32 vcc, {rem//16}, v0", "K2_zf", lambda: a(f"ds_write_b128 v{vY}, {ZR} offset:{L_T0+nfull*8192-57344}"))
    masked(a, "v_cmp_gt_u32 vcc, 6, v0", "K2_cz", lambda: a(f"ds_write_b128 v{vZ}, {ZR}"))
    a.label("K2_zfd")
    a.clear_hist()
    a(f"v_mov_b32 v{vONE1}, 1")
    a(f"v_mov_b32 v{vK1}, 0x3f80")
    a(f"s_cmp_lg_u32 s{sSLOW}, 0")
    a("s_cbranch_scc1 K2_slowload")
    a(f"s_cmp_lt_u32 s{sW}, 10")
    a("s_cbranch_scc1 K2_zw1")
    a(f"s_cmp_lt_u32 s{sW}, 12")
    a("s_cbranch_scc1 K2_zw0")
    a("s_waitcnt vmcnt(8) lgkmcnt(0)")
    a("s_branch K2_z")
    a.label("K2_zw0")
    a("s_waitcnt vmcnt(0) lgkmcnt(0)")
    a("s_branch K2_z")
    a.label("K2_zw1")
    a("s_waitcnt vmcnt(1) lgkmcnt(0)")
    a.label("K2_z")
    a.clear_hist()
    a("s_barrier")
    a(f"v_lshlrev_b32 v{vX}, 4, v{vL}")
    a(f"v_add_u32 v{vX}, {L_QS}, v{vX}")
    a(f"s_lshl_b32 s3, s{sS}, 10")
    a(f"v_add_u32 v{vY}, s3, v{vX}")
    a(f"ds_read_b128 v[{vQ0}:{vQ0+3}], v{vX} offset:2048")
    a(f"ds_read_b128 v[{vST}:{vST+3}], v{vX} offset:3072")
    a(f"ds_read_b128 v[{vCQ}:{vCQ+3}], v{vY} offset:4096")
    a(f"ds_read_b128 v[{vID}:{vID+3}], v{vX}")
    a(f"ds_read_b128 v[{vID+4}:{vID+7}], v{vX} offset:1024")
    stamp(a, 2)
    stamp(a, 3)
    for r in (RS0, RS1):
        a(f"v_lshrrev_b32 v{r.eid}, 20, v{r.rec}")
        a(f"v_add_u32 v{r.eid}, v{r.eid}, v{vCB}")
    a.label("K2_sort")
    a.clear_hist()
    a(f"v_cmp_gt_u32 s[{sV0}:{sV0+1}], -2, v{RS0.rec}")
    a(f"v_cmp_gt_u32 s[{sV1}:{sV1+1}], -2, v{RS1.rec}")
    a(f"v_cmp_eq_u32 vcc, -2, v{RS1.rec}")
    a("s_cbranch_vccz K2_nomark")
    a(f"v_mov_b32 v{vX}, 0")
    a(f"v_mov_b32 v{vY}, 0x10000")
    a("s_mov_b64 exec, vcc")
    a(f"ds_add_u32 v{vX}, v{vY} offset:{L_CNT}")
    a("s_mov_b64 exec, -1")
    a.label("K2_nomark")
    a(f"s_mov_b64 exec, s[{sV0}:{sV0+1}]")
    a("s_cbranch_execz K2_p1a")
    phase1(a, RS0)
    a.label("K2_p1a")
    a(f"s_mov_b64 exec, s[{sV1}:{sV1+1}]")
    a("s_cbranch_execz K2_p1b")
    phase1(a, RS1)
    a.label("K2_p1b")
    a("s_mov_b64 exec, -1")
    a(f"s_cmp_lg_u32 s{sSLOW}, 0")
    a("s_cbranch_scc1 K2_nstg")
    a(f"v_lshlrev_b32 v{vX}, 4, v{vL}")
    a(f"s_cmp_lt_u32 s{sW}, 10")
    a("s_cbranch_scc1 K2_nst1")
    a(f"s_mov_b32 m0, s{sSTD}")
    a("s_nop 0")
    a(f"buffer_load_dwordx4 v{vX}, {B(S_WS)}, s{sSTS} offen lds")
    a.label("K2_nst1")
    a.label("K2_nstg")
    stamp(a, 12)
    a("s_waitcnt lgkmcnt(0)")
    a("s_barrier")
    stamp(a, 4)
    a(f"v_and_b32 v{vX}, 7, v0")
    a(f"v_lshlrev_b32 v{vX}, 2, v{vX}")
    a(f"ds_read_b32 v{vY}, v{vX} offset:{L_CNT}")
    a("s_waitcnt lgkmcnt(0)")
    a(f"v_add_u32 v{vT32}, 31, v{vY}")
    a(f"v_lshrrev_b32 v{vZ}, 5, v{vT32}")
    a(f"v_mov_b32 v{vT32}, v{vZ}")
    for sh in (1, 2, 4):
        a(f"v_add_u32_dpp v{vT32}, v{vT32}, v{vT32} row_shr:{sh} row_mask:0xf bank_mask:0xf bound_ctrl:0")
    a(f"v_readlane_b32 s{sNT}, v{vT32}, 4")
    a(f"v_sub_u32 v{vZ}, v{vT32}, v{vZ}")
    a(f"v_lshlrev_b32 v{vZ}, 5, v{vZ}")
    a(f"s_cmp_lg_u32 s{sSLOW}, 0")
    a("s_cbranch_scc1 K2_go")
    a(f"s_cmp_gt_u32 s{sNT}, {MAXT}")
    a("s_cbranch_scc1 K2_toslow")
    a.label("K2_go")
    a(f"ds_bpermute_b32 v{RS0.x}, v{RS0.g}, v{vZ}")
    a(f"ds_bpermute_b32 v{RS1.x}, v{RS1.g}, v{vZ}")
    a("s_waitcnt lgkmcnt(0)")
    a(f"s_mov_b64 exec, s[{sV0}:{sV0+1}]")
    a("s_cbranch_execz K2_p1c")
    phase1b(a, RS0)
    a.label("K2_p1c")
    a(f"s_mov_b64 exec, s[{sV1}:{sV1+1}]")
    a("s_cbranch_execz K2_p1d")
    phase1b(a, RS1)
    a.label("K2_p1d")
    a("s_mov_b64 exec, -1")
    a(f"s_mul_i32 s{sA}, s{sQ}, s{sNT}")
    a(f"s_add_u32 s{sB}, s{sA}, s{sNT}")
    a(f"s_lshr_b32 s{sA}, s{sA}, 2")
    a(f"s_lshr_b32 s{sB}, s{sB}, 2")
    a(f"s_cmp_lg_u32 s{sSLOW}, 0")
    a("s_cbranch_scc1 K2_slowaddr")
    a.label("K2_addr")
    a(f"s_mul_i32 s3, s{sA}, {TS}")
    a(f"v_add_u32 v{vLS}, s3, v{vLS}")
    a(f"v_add_u32 v{vLE}, s3, v{vLE}")
    a("s_waitcnt lgkmcnt(0)")
    a(f"s_cmp_ge_u32 s{sW}, 10")
    a("s_cbranch_scc1 K2_aw3")
    a("s_waitcnt vmcnt(2)")
    a.label("K2_aw3")
    a.clear_hist()
    a("s_barrier")
    stamp(a, 5)
    def first_dma(lbl):
        a(f"s_cmp_ge_u32 s{sA}, s{sB}")
        a(f"s_cbranch_scc1 {lbl}")
        a(f"ds_read2_b32 v[{vSN}:{vSN+1}], v{vLS} offset0:0 offset1:64")
        a(f"ds_read_b32 v{vSE}, v{vLE}")
        a("s_waitcnt lgkmcnt(0)")
        issue_dma(a)
    a(f"s_cmp_lg_u32 s{sCD}, 0")
    a("s_cbranch_scc1 K2_cdone")
    a(f"s_mov_b32 s{sCD}, 1")
    a(f"v_add_u32 v{vQ0}, s{sQB}, v{vQ0}")
    a(f"v_xor_b32 v{vQ1}, 32, v{vQ0}")
    a(f"v_add_u32 v{vEA}, s{sQB2}, v{vEA}")
    a(f"s_mul_i32 s72, s{sQ}, {8*MBROW}")
    a(f"v_add_u32 v{vFM}, s72, v{vFM}")
    a(f"s_lshl_b32 s72, s{sQ}, 10")
    a(f"v_add_u32 v{vFP}, s72, v{vFP}")
    a(f"s_bfe_u32 s72, s{sT}, 0x50003")
    a(f"s_lshl_b32 s72, s72, 4")
    a(f"s_add_u32 s72, s72, s{sW}")
    a(f"s_lshl_b32 s72, s72, 7")
    a(f"s_add_u32 s{sWHT}, s72, {WS_IMG + IMG_WH}")
    a.label("K2_cdone")
    a.clear_hist()
    a(f"s_cmp_ge_u32 s{sQ}, 2")
    a("s_cbranch_scc1 K2_late")
    first_dma("K2_noq0")
    a("s_waitcnt vmcnt(3)")
    a("s_branch K2_q0done")
    a.label("K2_late")
    a.clear_hist()
    a(f"s_cmp_lg_u32 s{sPD}, 0")
    a("s_cbranch_scc1 K2_noq0")
    a(f"s_cmp_lt_u32 s{sQ}, 3")
    a("s_cbranch_scc1 K2_noq0")
    quads = (16, 20, 28, 120)
    a("v_and_b32 v126, 31, v0")
    a("v_bfe_u32 v26, v0, 5, 1")
    a("v_lshlrev_b32 v125, 4, v126")
    a("v_lshl_add_u32 v125, v26, 3, v125")
    a(f"s_lshl_b32 s72, s{sS}, 9")
    a(f"s_add_u32 s72, s72, {L_PST}")
    a("v_add_u32 v125, s72, v125")
    a(f"v_mov_b32 v124, s{sLOG2E}")
    for mt in range(2):
        if mt == 0: a(f"v_mov_b32 v{vZ}, v126")
        else:
            a(f"v_add_u32 v{vZ}, 32, v126")
            a(f"v_min_u32 v{vZ}, 39, v{vZ}")
        a(f"v_and_b32 v{vY}, 15, v{vZ}")
        a(f"v_xor_b32 v{vY}, v{vY}, v26")
        a(f"v_lshlrev_b32 v{vY}, 4, v{vY}")
        a(f"v_lshl_add_u32 v{vY}, v{vZ}, 8, v{vY}")
        a(f"v_add_u32 v{vY}, {L_MB}, v{vY}")
        for half in range(2):
            for k4 in range(4):
                ks = 4 * half + k4
                a(f"v_xor_b32 v{vZ}, {ks*32}, v{vY}" if ks else f"v_mov_b32 v{vZ}, v{vY}")
                a(f"ds_read_b128 v[{quads[k4]}:{quads[k4]+3}], v{vZ}")
            a("s_waitcnt vmcnt(3) lgkmcnt(0)" if (mt == 0 and half == 0) else "s_waitcnt lgkmcnt(0)")
            for k4 in range(4):
                ks = 4 * half + k4
                bsrc = 40 + 4 * k4 if half == 0 else 104 + 4 * k4
                c = "0" if ks == 0 else "v[88:103]"
                a(f"v_mfma_f32_32x32x16_bf16 v[88:103], v[{quads[k4]}:{quads[k4]+3}], v[{bsrc}:{bsrc+3}], {c}")
        n = 16 if mt == 0 else 4
        for r in range(n):
            a(f"v_mul_f32 v{88+r}, v124, v{88+r}")
        for p in range(n // 2):
            a(f"v_cvt_pk_bf16_f32 v{88+p}, v{88+2*p}, v{89+2*p}")
        for g in range(n // 4):
            a(f"ds_write_b64 v125, v[{88+2*g}:{89+2*g}] offset:{(4*mt+g)*2048}")
    a.label("K2_noq0")
    a.clear_hist()
    a("s_waitcnt vmcnt(0)")
    a.label("K2_q0done")
    a.clear_hist()
    a(f"s_mov_b32 s{sPD}, 1")
    stamp(a, 6)
    a(f"s_mov_b64 exec, s[{sV0}:{sV0+1}]")
    a("s_cbranch_execz K2_p2a")
    phase2(a, RS0)
    a.label("K2_p2a")
    a(f"s_mov_b64 exec, s[{sV1}:{sV1+1}]")
    a("s_cbranch_execz K2_p2b")
    phase2(a, RS1)
    a.label("K2_p2b")
    a("s_mov_b64 exec, -1")
    for g in range(4):
        a(f"v_readlane_b32 s{sTG+g+1}, v{vT32}, {g}")
    a(f"s_mov_b32 s{sTG}, 0")
    a(f"v_and_b32 v{vX}, 7, v0")
    a(f"v_lshlrev_b32 v{vX}, 2, v{vX}")
    a(f"ds_read_b32 v{vY}, v{vX} offset:{L_CNT}")
    a(f"s_mul_i32 s3, s{sA}, {TS}")
    a(f"v_add_u32 v{vSEL}, s3, v{vSEL}")
    a(f"v_add_u32 v{vST}, s3, v{vST}")
    a(f"s_mov_b32 s{sJ}, s{sA}")
    a(f"s_mov_b32 s{sHD}, 0")
    a("s_waitcnt lgkmcnt(0)")
    a(f"v_add_u32 v{vY}, -1, v{vY}")
    a(f"v_and_b32 v{vY}, 31, v{vY}")
    a(f"v_cmp_gt_u32 s[{sHM}:{sHM+1}], 16, v{vY}")
    a("s_waitcnt lgkmcnt(0)")
    stamp(a, 13)
    a("s_barrier")
    a(f"s_cmp_eq_u32 s{sSLOW}, 1")
    a("s_cbranch_scc1 K2_slowzero")
    a.label("K2_zdone")
    a.clear_hist()
    a(f"s_cmp_lt_u32 s{sQ}, 2")
    a("s_cbranch_scc1 K2_nolate")
    first_dma("K2_nolate")
    a.label("K2_nolate")
    a.clear_hist()
    a(f"v_add_u32 v{vLS}, {TS}, v{vLS}")
    a(f"v_add_u32 v{vLE}, {TS}, v{vLE}")
    a(f"v_and_b32 v{vX}, 63, v0")
    a(f"v_lshlrev_b32 v{vX}, 4, v{vX}")
    a(f"s_lshl_b32 s3, s{sS}, 10")
    a(f"s_add_u32 s3, s3, {L_PST + O_W4}")
    a(f"v_add_u32 v{vX}, s3, v{vX}")
    a(f"ds_read_b128 v[{vW4}:{vW4+3}], v{vX}")
    stamp(a, 7)
    if "tiles" in DBG:
        a("s_memtime s[74:75]")
        a("s_waitcnt lgkmcnt(0)")
        a(f"v_writelane_b32 v126, s74, 0")
    for g in range(5):
        main_group(a, g)
    a.label("K2_mainend")
    a.clear_hist()
    a("s_setprio 0")
    if "tiles" in DBG:
        a("s_memtime s[74:75]")
        a("s_waitcnt lgkmcnt(0)")
        a(f"v_writelane_b32 v126, s74, 15")
        a(f"s_cmp_ge_u32 s{sT}, 4")
        a("s_cbranch_scc1 K2_tdone")
        a("s_load_dwordx2 s[64:65], s[0:1], 80")
        a("s_waitcnt lgkmcnt(0)")
        a(f"s_add_u32 s64, s64, {0xB08000}")
        a("s_addc_u32 s65, s65, 0")
        a("s_mov_b32 s66, 8192")
        a("s_mov_b32 s67, 0x20000")
        a(f"v_and_b32 v{vX}, 63, v0")
        a(f"v_lshlrev_b32 v{vX}, 2, v{vX}")
        a(f"v_mov_b32 v{vY}, {OOB:#x}")
        a(f"v_cmp_gt_u32 vcc, 64, v{vX}")
        a(f"v_cndmask_b32 v{vX}, v{vY}, v{vX}, vcc")
        a(f"s_lshl_b32 s3, s{sT}, 10")
        a(f"s_lshl_b32 s72, s{sW}, 6")
        a(f"s_add_u32 s3, s3, s72")
        a(f"buffer_store_dword v126, v{vX}, s[64:67], s3 offen")
        a("s_waitcnt vmcnt(0)")
        a.label("K2_tdone")
    stamp(a, 8)
    a(f"s_cmp_eq_u32 s{sSLOW}, 0")
    a("s_cbranch_scc1 K2_epi")
    a(f"s_add_u32 s{sSLOW}, s{sSLOW}, 1")
    a(f"s_cmp_gt_u32 s{sSLOW}, {SLOW_NBLK}")
    a("s_cbranch_scc1 K2_slowend")
    a("s_waitcnt vmcnt(0) lgkmcnt(0)")
    a("s_barrier")
    a("s_branch K2_batch")
    a.label("K2_epi")
    a.clear_hist()
    epilogue(a)
    a.label("K2_end")
    a("s_endpgm")
    for g in range(5):
        L = f"K2_g{g}"
        a.label(f"{L}_last")
        a.clear_hist()
        if "nowht" not in DBG:
            a(f"v_mov_b32 v{vX}, 0")
            a("s_mov_b64 exec, 1")
            a(f"buffer_load_dword v3, v{vX}, {B(S_WS)}, s{sWHT} offen")
            a("s_mov_b64 exec, -1")
        a(f"s_cmp_ge_u32 s{sW}, 10")
        a(f"s_cbranch_scc1 {L}_nodma")
        a(f"s_mov_b32 m0, s{sQB}")
        a(f"s_mov_b32 s{sHD}, 1")
        a(f"buffer_load_dwordx4 v{vHO}, {B(S_H)}, s{sT10K} offen lds")
        a(f"s_branch {L}_nodma")
    slow_code(a)

def silu_part(a, r0, n):
    if "nosilu" in DBG: return
    for i in range(r0, r0 + n): a(f"v_exp_f32 v{vT+i}, -v{vD1+i}")
    for i in range(r0, r0 + n, 2): a(f"v_pk_add_f32 v[{vT+i}:{vT+i+1}], v[{vT+i}:{vT+i+1}], s[{sONE}:{sONE+1}]")
    for i in range(r0, r0 + n): a(f"v_rcp_f32 v{vT+i}, v{vT+i}")
    for i in range(r0, r0 + n, 2): a(f"v_pk_mul_f32 v[{vT+i}:{vT+i+1}], v[{vT+i}:{vT+i+1}], v[{vD1+i}:{vD1+i+1}]")
    for i in range(r0, r0 + n, 2): a(f"v_cvt_pk_bf16_f32 v{vM+i//2}, v{vT+i}, v{vT+i+1}")

def main_group(a, g):
    L = f"K2_g{g}"
    D1 = f"v[{vD1}:{vD1+15}]"; ACC = f"v[{vACC}:{vACC+15}]"
    a.label(L)
    a.clear_hist()
    a(f"s_min_u32 s{sEND}, s{sB}, s{sTG+g+1}")
    a(f"s_cmp_ge_u32 s{sJ}, s{sEND}")
    a(f"s_cbranch_scc1 {L}_done")
    if g: a(f"v_mad_u32_u24 v{vX}, v{vPBs}, {g}, v{vPBb}")
    a(f"ds_read_b128 v[{vPB}:{vPB+3}], v{vX if g else vPBb}")
    a(f"s_sub_u32 s{sHALF}, s{sTG+g+1}, 1")
    a(f"s_bitcmp1_b32 s{sHM}, {g}")
    a(f"s_cselect_b32 s{sHALF}, s{sHALF}, -1")
    a(f"s_mov_b32 s{sFIRST}, 1")
    a.label(f"{L}_loop")
    a.clear_hist()
    a(f"ds_read_b128 v[{vA+12}:{vA+15}], v{vSEL}")
    a("s_waitcnt vmcnt(0)")
    a(f"ds_read_b128 v[{vA+8}:{vA+11}], v{vEA}")
    a(f"ds_read_b128 v[{vA}:{vA+3}], v{vQ0}")
    a(f"ds_read_b128 v[{vA+4}:{vA+7}], v{vQ1}")
    for i in range(4):
        a(f"ds_read_b64_tr_b16 v[{vSB+2*i}:{vSB+2*i+1}], v{vST} offset:{512*i}")
    a(f"ds_read2_b32 v[{vSN}:{vSN+1}], v{vLS} offset0:0 offset1:64")
    a(f"ds_read_b32 v{vSE}, v{vLE}")
    if "nofair" not in DBG:
        a(f"s_sub_u32 s72, s{sB}, s{sJ}")
        a(f"s_cmp_ge_u32 s72, 4")
        a(f"s_cbranch_scc1 {L}_p3")
        a(f"s_cmp_ge_u32 s72, 3")
        a(f"s_cbranch_scc1 {L}_p2")
        a(f"s_cmp_ge_u32 s72, 2")
        a(f"s_cbranch_scc1 {L}_p1")
        a("s_setprio 0")
        a(f"s_branch {L}_pd")
        a.label(f"{L}_p1"); a("s_setprio 1"); a(f"s_branch {L}_pd")
        a.label(f"{L}_p2"); a("s_setprio 2"); a(f"s_branch {L}_pd")
        a.label(f"{L}_p3"); a("s_setprio 3")
        a.label(f"{L}_pd")
        a.clear_hist()
    a("s_waitcnt lgkmcnt(9)")
    a(f"v_mfma_f32_32x32x16_bf16 {D1}, v[{vA+12}:{vA+15}], v[{vPB}:{vPB+3}], 0")
    a("s_waitcnt lgkmcnt(8)")
    a(f"v_mfma_f32_32x32x16_bf16 {D1}, v[{vA+8}:{vA+11}], v[{vW4}:{vW4+3}], {D1}")
    a("s_waitcnt lgkmcnt(6)")
    a(f"v_mfma_f32_32x32x16_bf16 {D1}, v[{vA}:{vA+3}], v[{vID}:{vID+3}], {D1}")
    a(f"v_mfma_f32_32x32x16_bf16 {D1}, v[{vA+4}:{vA+7}], v[{vID+4}:{vID+7}], {D1}")
    a(f"s_add_u32 s72, s{sJ}, 1")
    for r in (vLS, vLE, vSEL, vST):
        a(f"v_add_u32 v{r}, {TS}, v{r}")
    if "dmalate" not in DBG:
        a("s_waitcnt lgkmcnt(0)")
        a(f"s_cmp_ge_u32 s72, s{sB}")
        if "nodma" in DBG: a(f"s_branch {L}_nodma")
        a(f"s_cbranch_scc1 {L}_last")
        issue_dma(a)
        a.label(f"{L}_nodma")
        a("s_nop 3")
    silu_part(a, 0, 8)
    a("s_waitcnt lgkmcnt(0)")
    a(f"s_cmp_eq_u32 s{sFIRST}, 0")
    a(f"s_cbranch_scc1 {L}_acc")
    a(f"v_mfma_f32_32x32x16_bf16 {ACC}, v[{vM}:{vM+3}], v[{vSB}:{vSB+3}], 0")
    a(f"s_mov_b32 s{sFIRST}, 0")
    a(f"s_branch {L}_acc2")
    a.label(f"{L}_acc")
    a(f"v_mfma_f32_32x32x16_bf16 {ACC}, v[{vM}:{vM+3}], v[{vSB}:{vSB+3}], {ACC}")
    a.label(f"{L}_acc2")
    if "dmalate" in DBG:
        a(f"s_cmp_ge_u32 s72, s{sB}")
        if "nodma" in DBG: a(f"s_branch {L}_nodma")
        a(f"s_cbranch_scc1 {L}_last")
        issue_dma(a)
        a.label(f"{L}_nodma")
    a.clear_hist()
    a(f"s_cmp_eq_u32 s{sJ}, s{sHALF}")
    a(f"s_cbranch_scc1 {L}_skip2")
    silu_part(a, 8, 8)
    a(f"v_mfma_f32_32x32x16_bf16 {ACC}, v[{vM+4}:{vM+7}], v[{vSB+4}:{vSB+7}], {ACC}")
    a.label(f"{L}_skip2")
    a(f"s_add_u32 s{sJ}, s{sJ}, 1")
    if "tiles" in DBG:
        a("s_memtime s[74:75]")
        a(f"s_sub_u32 s95, s{sJ}, s{sA}")
        a("s_waitcnt lgkmcnt(0)")
        a("s_mov_b32 m0, s95")
        a("s_nop 0")
        a(f"v_writelane_b32 v126, s74, m0")
    a(f"s_cmp_lt_u32 s{sJ}, s{sEND}")
    a(f"s_cbranch_scc1 {L}_loop")
    a.clear_hist()
    if "noflush" in DBG: a(f"s_branch {L}_done")
    a(f"v_and_b32 v{vX}, 16, v{vFP}")
    a(f"s_lshl_b32 s72, s{sS}, 7")
    a(f"s_add_u32 s72, s72, {L_WX}")
    a(f"v_add_u32 v{vX}, s72, v{vX}")
    for q4 in range(4):
        a(f"ds_read_b128 v[{vT+4*q4}:{vT+4*q4+3}], v{vX} offset:{q4*32}")
    a(f"s_cmp_lg_u32 s{sSLOW}, 0")
    a(f"s_cbranch_scc1 {L}_sflush")
    a("s_nop 7")
    for p in range(8):
        a(f"v_cvt_pk_bf16_f32 v{vM+p}, v{vACC+2*p}, v{vACC+2*p+1}")
    a("s_mov_b32 exec_lo, 0xff")
    a("s_mov_b32 exec_hi, 0xff")
    for gm in range(4):
        a(f"ds_write_b64 v{vFM}, v[{vM+2*gm}:{vM+2*gm+1}] offset:{g*8*MBROW + gm*16}")
    a("s_mov_b64 exec, -1")
    a("s_waitcnt lgkmcnt(4)")
    a(f"v_pk_mul_f32 v[{vSB}:{vSB+1}], v[{vACC}:{vACC+1}], v[{vT}:{vT+1}]")
    for i in range(2, 16, 2):
        a(f"v_pk_fma_f32 v[{vSB}:{vSB+1}], v[{vACC+i}:{vACC+i+1}], v[{vT+i}:{vT+i+1}], v[{vSB}:{vSB+1}]")
    a(f"v_add_f32 v{vSB}, v{vSB}, v{vSB+1}")
    a(f"ds_write_b32 v{vFP}, v{vSB} offset:{g*1024}")
    a(f"s_cmp_lg_u32 s{sS}, 0")
    a(f"s_cbranch_scc1 {L}_done")
    a(f"s_lshl_b32 s72, s{sQ}, 2")
    a(f"v_mov_b32 v{vX}, s72")
    a(f"v_mov_b32 v{vY}, {g+1}")
    a("s_mov_b64 exec, 1")
    a(f"ds_write_b32 v{vX}, v{vY} offset:{L_OWN + 4*g}")
    a("s_mov_b64 exec, -1")
    a.label(f"{L}_done")

def epilogue(a):
    D0 = f"v[{vACC}:{vACC+15}]"; D1 = "v[8:23]"
    vB = 56
    vAf = 88
    PH = 64
    a(f"v_and_b32 v4, 63, v0")
    a(f"s_mov_b32 s73, s{sT10K}")
    a(f"s_cmp_ge_u32 s{sW}, 10")
    a("s_cbranch_scc1 K2_eh")
    a(f"s_cmp_lg_u32 s{sHD}, 0")
    a("s_cbranch_scc1 K2_eh")
    a(f"s_mov_b32 m0, s{sQB}")
    a("s_nop 0")
    a(f"buffer_load_dwordx4 v{vHO}, {B(S_H)}, s73 offen lds")
    a.label("K2_eh")
    a.clear_hist()
    a("s_waitcnt vmcnt(0)")
    a(f"s_cmp_ge_u32 s{sQ}, 2")
    a("s_cbranch_scc1 K2_e0")
    a(f"v_lshlrev_b32 v5, 4, v4")
    a(f"s_lshl_b32 s3, s{sS}, 13")
    a(f"s_xor_b32 s72, s{sQ}, 1")
    a(f"s_lshl_b32 s72, s72, 15")
    a(f"s_add_u32 s3, s3, s72")
    a(f"s_add_u32 s3, s3, {WS_IMG + IMG_WH}")
    a(f"s_add_u32 s72, s3, 4096")
    for ks in range(8):
        so = "s3" if ks < 4 else "s72"
        a(f"buffer_load_dwordx4 v[{vB+4*ks}:{vB+4*ks+3}], v5, {B(S_WS)}, {so} offen offset:{(ks%4)*1024}")
    a.label("K2_e0")
    a.clear_hist()
    a(f"v_lshlrev_b32 v2, 4, v0")
    a(f"v_mov_b32 v3, {OOB:#x}")
    a("v_cmp_gt_u32 vcc, 640, v0")
    a("v_cndmask_b32 v2, v3, v2, vcc")
    a("v_subrev_u32 v7, 640, v0")
    a("v_lshlrev_b32 v6, 1, v7")
    a("v_cmp_gt_u32 vcc, 120, v7")
    a("v_cndmask_b32 v6, v3, v6, vcc")
    a(f"s_cmp_ge_u32 s{sW}, 12")
    a("s_cbranch_scc1 K2_e00")
    a(f"buffer_load_dwordx4 v[120:123], v2, {B(S_H)}, s73 offen")
    a(f"buffer_load_ushort v124, v6, {B(S_POS)}, s{sT240} offen")
    a.label("K2_e00")
    a.clear_hist()
    a("s_waitcnt lgkmcnt(0)")
    a("s_barrier")
    stamp(a, 9)
    a(f"s_cmp_ge_u32 s{sQ}, 2")
    a("s_cbranch_scc1 K2_e1")
    a("v_and_b32 v24, 31, v4")
    a("v_lshrrev_b32 v25, 5, v4")
    a(f"v_mul_u32_u24 v26, {4*PROW}, v25")
    a("v_lshl_add_u32 v26, v24, 2, v26")
    a(f"s_lshl_b32 s72, s{sS}, 7")
    a(f"s_add_u32 s3, s72, {L_T0}")
    a(f"s_cmp_eq_u32 s{sQ}, 1")
    a("s_cbranch_scc1 K2_ehp")
    a("v_add_u32 v26, s3, v26")
    a(f"v_mul_u32_u24 v27, {MBROW}, v24")
    a("v_lshl_add_u32 v27, v25, 4, v27")
    a(f"v_add_u32 v27, {L_MB}, v27")
    for ks in range(8):
        a(f"ds_read_b128 v[{vAf+4*ks}:{vAf+4*ks+3}], v27 offset:{ks*32}")
    a("s_waitcnt vmcnt(2) lgkmcnt(0)")
    for ks in range(8):
        c = "0" if ks == 0 else D0
        a(f"v_mfma_f32_32x32x16_bf16 {D0}, v[{vAf+4*ks}:{vAf+4*ks+3}], v[{vB+4*ks}:{vB+4*ks+3}], {c}")
    for ks in range(8):
        a(f"ds_read_b128 v[{vAf+4*ks}:{vAf+4*ks+3}], v27 offset:{32*MBROW + ks*32}")
    a("s_waitcnt lgkmcnt(0)")
    for ks in range(8):
        c = "0" if ks == 0 else D1
        a(f"v_mfma_f32_32x32x16_bf16 {D1}, v[{vAf+4*ks}:{vAf+4*ks+3}], v[{vB+4*ks}:{vB+4*ks+3}], {c}")
    for r in range(16):
        a(f"ds_write_b32 v26, v{vACC+r} offset:{(8*(r//4)+r%4)*PROW}")
    for r in range(16):
        a(f"ds_write_b32 v26, v{8+r} offset:{(32 + 8*(r//4)+r%4)*PROW}")
    a("s_branch K2_e1")
    a.label("K2_ehp")
    a.clear_hist()
    a(f"s_add_u32 s3, s3, {PH*PROW}")
    a("v_add_u32 v26, s3, v26")
    def haddr(mt, dst):
        if mt == 0: a("v_mov_b32 v28, v24")
        else:
            a("v_add_u32 v28, 32, v24")
            a("v_min_u32 v28, 39, v28")
        a("v_lshrrev_b32 v29, 2, v28")
        a(f"v_mul_u32_u24 v29, {QSW}, v29")
        a("v_and_b32 v30, 3, v28")
        a("v_lshl_add_u32 v29, v30, 8, v29")
        a("v_and_b32 v30, 15, v28")
        a("v_xor_b32 v30, v30, v25")
        a("v_lshl_add_u32 v29, v30, 4, v29")
        a(f"v_add_u32 v{dst}, {L_QS}, v29")
    haddr(0, 32)
    for ks in range(8):
        a(f"v_xor_b32 v30, {ks*32}, v32" if ks else "v_mov_b32 v30, v32")
        a(f"ds_read_b128 v[{vAf+4*ks}:{vAf+4*ks+3}], v30")
    haddr(1, 33)
    a("s_waitcnt vmcnt(2) lgkmcnt(0)")
    for ks in range(8):
        c = "0" if ks == 0 else D0
        a(f"v_mfma_f32_32x32x16_bf16 {D0}, v[{vAf+4*ks}:{vAf+4*ks+3}], v[{vB+4*ks}:{vB+4*ks+3}], {c}")
    for ks in range(8):
        a(f"v_xor_b32 v30, {ks*32}, v33" if ks else "v_mov_b32 v30, v33")
        a(f"ds_read_b128 v[{vAf+4*ks}:{vAf+4*ks+3}], v30")
    a("s_waitcnt lgkmcnt(0)")
    for ks in range(8):
        c = "0" if ks == 0 else D1
        a(f"v_mfma_f32_32x32x16_bf16 {D1}, v[{vAf+4*ks}:{vAf+4*ks+3}], v[{vB+4*ks}:{vB+4*ks+3}], {c}")
    for r in range(16):
        a(f"ds_write_b32 v26, v{vACC+r} offset:{(8*(r//4)+r%4)*PROW}")
    for r in range(4):
        a(f"ds_write_b32 v26, v{8+r} offset:{(32 + r)*PROW}")
    a.label("K2_e1")
    a.clear_hist()
    a("s_waitcnt lgkmcnt(0)")
    a("s_barrier")
    stamp(a, 10)
    a(f"s_cmp_ge_u32 s{sW}, 12")
    a("s_cbranch_scc1 K2_end")
    a(f"s_cmp_ge_u32 s{sW}, 10")
    a("s_cbranch_scc1 K2_e_pos")
    a(f"s_lshr_b32 s3, s{sW}, 1")
    a(f"s_lshl_b32 s72, s3, 2")
    a("v_mov_b32 v8, s72")
    a(f"ds_read2_b32 v[10:11], v8 offset0:{L_OWN//4} offset1:{L_OWN//4+1}")
    a(f"ds_read2_b32 v[12:13], v8 offset0:{L_OWN//4+2} offset1:{L_OWN//4+3}")
    a("v_lshrrev_b32 v5, 4, v0")
    a("v_and_b32 v5, 7, v5")
    a("v_and_b32 v6, 15, v0")
    a(f"v_mul_u32_u24 v5, {PROW}, v5")
    a("v_lshl_add_u32 v5, v6, 5, v5")
    a(f"s_mul_i32 s72, s3, {8*PROW}")
    a(f"s_add_u32 s72, s72, {L_T0}")
    a("v_add_u32 v5, s72, v5")
    a("v_lshrrev_b32 v14, 4, v0")
    a(f"v_mul_u32_u24 v14, {PROW}, v14")
    a("v_lshl_add_u32 v14, v6, 5, v14")
    a(f"v_add_u32 v14, {L_T0 + 64*PROW}, v14")
    a("ds_read_b128 v[56:59], v14")
    a("ds_read_b128 v[60:63], v14 offset:16")
    for r in range(8): a(f"v_mov_b32 v{40+r}, 0")
    a("s_add_u32 s3, s3, 1")
    a("s_waitcnt lgkmcnt(0)")
    for q in range(4):
        a(f"v_readfirstlane_b32 s72, v{10+q}")
        a(f"s_cmp_lg_u32 s72, s3")
        a(f"s_cbranch_scc1 K2_f{q}")
        a(f"ds_read_b128 v[48:51], v5 offset:{q*8*PROW}")
        a(f"ds_read_b128 v[52:55], v5 offset:{q*8*PROW+16}")
        a("s_waitcnt lgkmcnt(0)")
        for r in range(8): a(f"v_add_f32 v{40+r}, v{40+r}, v{48+r}")
        a.label(f"K2_f{q}")
        a.clear_hist()
    a("s_waitcnt vmcnt(0)")
    a(f"v_mov_b32 v48, s{sLN2}")
    a(f"v_mov_b32 v49, s{sLOG2E}")
    for r in range(8): a(f"v_fmac_f32 v{56+r}, v48, v{40+r}")
    for r in range(8): a(f"v_mul_f32 v{40+r}, v49, v{56+r}")
    for r in range(8): a(f"v_exp_f32 v{40+r}, -v{40+r}")
    for r in range(8): a(f"v_add_f32 v{40+r}, 1.0, v{40+r}")
    for r in range(8): a(f"v_rcp_f32 v{40+r}, v{40+r}")
    for r in range(8): a(f"v_mul_f32 v{40+r}, v{56+r}, v{40+r}")
    for p in range(4):
        a(f"v_lshlrev_b32 v{56+2*p}, 16, v{120+p}")
        a(f"v_and_b32 v{57+2*p}, 0xffff0000, v{120+p}")
    for r in range(8): a(f"v_add_f32 v{40+r}, v{40+r}, v{56+r}")
    for p in range(4): a(f"v_cvt_pk_bf16_f32 v{48+p}, v{40+2*p}, v{41+2*p}")
    a(f"buffer_store_dwordx4 v[48:51], v2, {B(S_OUT)}, s73 offen")
    if PROF:
        a("s_waitcnt vmcnt(0)")
        stamp(a, 11)
        prof_out(a)
    if "clk2" in DBG:
        a("s_waitcnt vmcnt(0) lgkmcnt(0)")
        a("s_memtime s[92:93]")
        a("s_memrealtime s[94:95]")
        a("s_load_dwordx2 s[64:65], s[0:1], 72")
        a("s_waitcnt lgkmcnt(0)")
        a("s_sub_u32 s92, s92, s96")
        a("s_sub_u32 s94, s94, s98")
        a("s_mov_b32 s66, 256")
        a("s_mov_b32 s67, 0x20000")
        a("v_mov_b32 v100, s92")
        a("v_mov_b32 v101, s94")
        a(f"s_lshl_b32 s62, s{sT}, 3")
        a("v_mov_b32 v102, 0x7fffff00")
        a("v_cmp_eq_u32 vcc, 0, v0")
        a("v_cndmask_b32 v103, v102, v0, vcc")
        a("buffer_store_dwordx2 v[100:101], v103, s[64:67], s62 offen")
        a("s_waitcnt vmcnt(0)")
    if "rt" in DBG: rt_end(a, 86, 64, 1, sT, 100, "")
    a("s_endpgm")
    a.label("K2_e_pos")
    a.clear_hist()
    a("v_cmp_gt_u32 vcc, 120, v7")
    a("s_and_saveexec_b64 s[76:77], vcc")
    a("s_cbranch_execz K2_end")
    a("v_mul_u32_u24 v8, 43691, v7")
    a("v_lshrrev_b32 v8, 17, v8")
    a("v_mul_u32_u24 v9, 3, v8")
    a("v_sub_u32 v9, v7, v9")
    a("v_lshrrev_b32 v10, 3, v8")
    a("v_and_b32 v11, 7, v8")
    a("v_add_u32 v9, 1, v9")
    a("v_lshl_add_u32 v9, v9, 3, v11")
    a("v_lshlrev_b32 v9, 5, v9")
    a("v_lshl_add_u32 v9, v10, 10, v9")
    a(f"v_add_u32 v9, {L_POSP}, v9")
    a("v_lshlrev_b32 v12, 2, v10")
    a("v_add_u32 v10, 1, v10")
    a("v_mov_b32 v13, 0")
    for q in range(4):
        a(f"ds_read_b32 v14, v12 offset:{L_OWN + 4*q}")
        a(f"ds_read_b128 v[16:19], v9 offset:{q*1024}")
        a(f"ds_read_b128 v[20:23], v9 offset:{q*1024+16}")
        a("s_waitcnt lgkmcnt(0)")
        a("v_add_f32 v16, v16, v17"); a("v_add_f32 v18, v18, v19")
        a("v_add_f32 v20, v20, v21"); a("v_add_f32 v22, v22, v23")
        a("v_add_f32 v16, v16, v18"); a("v_add_f32 v20, v20, v22")
        a("v_add_f32 v16, v16, v20")
        a("v_cmp_eq_u32 vcc, v14, v10")
        a("v_cndmask_b32 v16, 0, v16, vcc")
        a("v_add_f32 v13, v13, v16")
    a("s_waitcnt vmcnt(0)")
    a("v_lshlrev_b32 v124, 16, v124")
    a("v_add_f32 v13, v13, v124")
    a("v_cvt_pk_bf16_f32 v13, v13, v13")
    a(f"s_add_u32 s3, s{sT240}, {N*256}")
    a(f"buffer_store_short v13, v6, {B(S_OUT)}, s3 offen")
    a("s_endpgm")

def prof_out(a):
    a(f"s_cmp_ge_u32 s{sT}, 2")
    a("s_cbranch_scc1 K2_sto")
    a(f"s_mov_b32 s72, 0")
    a(f"s_cmp_eq_u32 s{sW}, 0")
    a("s_cbranch_scc1 K2_stog")
    a(f"s_mov_b32 s72, 64")
    a(f"s_cmp_lg_u32 s{sW}, 9")
    a("s_cbranch_scc1 K2_sto")
    a.label("K2_stog")
    a(f"v_writelane_b32 v{vPR}, s{sNT}, 14")
    a("s_load_dwordx2 s[64:65], s[0:1], 72")
    a("s_waitcnt lgkmcnt(0)")
    a("s_mov_b32 s66, 256")
    a("s_mov_b32 s67, 0x20000")
    a(f"v_and_b32 v{vX}, 63, v0")
    a(f"v_lshlrev_b32 v{vX}, 2, v{vX}")
    a(f"v_mov_b32 v3, {OOB:#x}")
    a(f"v_cmp_gt_u32 vcc, 64, v{vX}")
    a(f"v_cndmask_b32 v{vX}, v3, v{vX}, vcc")
    a(f"s_lshl_b32 s3, s{sT}, 7")
    a(f"s_add_u32 s3, s3, s72")
    a(f"buffer_store_dword v{vPR}, v{vX}, s[64:67], s3 offen")
    a("s_waitcnt vmcnt(0)")
    a.label("K2_sto")

def slow_code(a):
    a.label("K2_toslow")
    a.clear_hist()
    a(f"s_mov_b32 s{sSLOW}, 1")
    a("s_load_dwordx4 s[64:67], s[0:1], 24")
    a("s_waitcnt vmcnt(0) lgkmcnt(0)")
    srd(a, S_SRC, 64, 65, E * 4)
    srd(a, S_DST, 66, 67, E * 4)
    a("s_barrier")
    a("s_branch K2_batch")
    a.label("K2_slowzero")
    a.clear_hist()
    a(f"v_lshlrev_b32 v{vX}, 4, v0")
    a(f"v_add_u32 v{vX}, {L_MACC}, v{vX}")
    for r in range(4): a(f"v_mov_b32 v{vZR+r}, 0")
    a(f"ds_write_b128 v{vX}, v[{vZR}:{vZR+3}]")
    masked(a, f"v_cmp_gt_u32 vcc, {(40*MROW+640-16384)//16}, v0", "K2_sz", lambda: a(f"ds_write_b128 v{vX}, v[{vZR}:{vZR+3}] offset:16384"))
    a("s_waitcnt lgkmcnt(0)")
    a("s_barrier")
    a("s_branch K2_zdone")
    a.label("K2_slowload")
    a.clear_hist()
    a(f"s_sub_u32 s3, s{sSLOW}, 1")
    a(f"s_mul_i32 s3, s3, {SLOW_BLK}")
    a(f"v_add_u32 v{RS0.eid}, s3, v0")
    a(f"v_lshlrev_b32 v{vX}, 2, v{RS0.eid}")
    a(f"v_mov_b32 v{vY}, {OOB:#x}")
    a(f"v_cmp_gt_u32 vcc, {SLOW_BLK}, v0")
    a(f"v_cndmask_b32 v{vX}, v{vY}, v{vX}, vcc")
    a(f"buffer_load_dword v{RS0.dl}, v{vX}, {B(S_DST)}, 0 offen")
    a(f"buffer_load_dword v{RS0.so}, v{vX}, {B(S_SRC)}, 0 offen")
    a(f"s_mul_i32 s3, s{sT}, 40")
    a(f"v_mov_b32 v{RS1.rec}, -1")
    a("s_waitcnt vmcnt(0) lgkmcnt(0)")
    a("s_barrier")
    a(f"v_subrev_u32 v{RS0.dl}, s3, v{RS0.dl}")
    a(f"v_lshl_or_b32 v{RS0.rec}, v{RS0.dl}, 14, v{RS0.so}")
    a(f"v_cmp_gt_u32 s[78:79], 40, v{RS0.dl}")
    a(f"s_and_b64 s[78:79], s[78:79], vcc")
    a(f"v_cndmask_b32 v{RS0.rec}, -1, v{RS0.rec}, s[78:79]")
    a("s_branch K2_sort")
    a.label("K2_slowaddr")
    a.clear_hist()
    a(f"v_and_b32 v{vL}, 63, v0")
    lane_consts_run(a)
    a("s_branch K2_addr")
    for g in range(5):
        L = f"K2_g{g}"
        a.label(f"{L}_sflush")
        a.clear_hist()
        a("s_waitcnt lgkmcnt(0)")
        a("s_nop 7")
        a(f"v_pk_mul_f32 v[{vSB}:{vSB+1}], v[{vACC}:{vACC+1}], v[{vT}:{vT+1}]")
        for i in range(2, 16, 2):
            a(f"v_pk_fma_f32 v[{vSB}:{vSB+1}], v[{vACC+i}:{vACC+i+1}], v[{vT+i}:{vT+i+1}], v[{vSB}:{vSB+1}]")
        a(f"v_add_f32 v{vSB}, v{vSB}, v{vSB+1}")
        a(f"v_and_b32 v{vX}, 63, v0")
        a(f"v_and_b32 v{vY}, 7, v{vX}")
        a(f"v_bfe_u32 v{vZ}, v{vX}, 3, 2")
        a(f"v_lshlrev_b32 v{vZ}, 2, v{vZ}")
        a(f"v_lshl_add_u32 v{vZ}, v{vY}, 4, v{vZ}")
        a(f"v_add_u32 v{vZ}, {L_POSACC + g*128}, v{vZ}")
        a(f"ds_add_f32 v{vZ}, v{vSB}")
        a(f"v_mul_u32_u24 v{vY}, {MROW}, v{vY}")
        a(f"v_lshrrev_b32 v{vX}, 5, v{vX}")
        a(f"v_lshl_add_u32 v{vY}, v{vX}, 4, v{vY}")
        a(f"s_lshl_b32 s72, s{sS}, 7")
        a(f"s_add_u32 s72, s72, {L_MACC}")
        a(f"v_add_u32 v{vY}, s72, v{vY}")
        a("s_mov_b32 exec_lo, 0xff")
        a("s_mov_b32 exec_hi, 0xff")
        for r in range(16):
            a(f"ds_add_f32 v{vY}, v{vACC+r} offset:{g*8*MROW + (8*(r//4)+r%4)*4}")
        a("s_mov_b64 exec, -1")
        a(f"s_branch {L}_done")
    a.label("K2_slowend")
    a.clear_hist()
    a("s_waitcnt vmcnt(0) lgkmcnt(0)")
    a("s_barrier")
    a("v_lshrrev_b32 v8, 4, v0")
    a("v_min_u32 v8, 39, v8")
    a("v_and_b32 v9, 15, v0")
    a(f"v_mul_u32_u24 v10, {MROW}, v8")
    a("v_lshl_add_u32 v10, v9, 5, v10")
    a(f"v_add_u32 v10, {L_MACC}, v10")
    a("ds_read_b128 v[24:27], v10")
    a("ds_read_b128 v[28:31], v10 offset:16")
    a("v_subrev_u32 v7, 640, v0")
    a("v_mul_u32_u24 v11, 43691, v7")
    a("v_lshrrev_b32 v11, 17, v11")
    a("v_min_u32 v11, 39, v11")
    a("v_add_u32 v12, v11, v7")
    a("v_and_b32 v12, 0xff, v12")
    a("v_lshlrev_b32 v12, 2, v12")
    a(f"v_add_u32 v12, {L_POSACC+4}, v12")
    a("ds_read_b32 v32, v12")
    a("s_waitcnt lgkmcnt(0)")
    a("s_barrier")
    def wm():
        for p in range(4): a(f"v_cvt_pk_bf16_f32 v{24+p}, v{24+2*p}, v{25+2*p}")
        a(f"v_mul_u32_u24 v10, {MBROW}, v8")
        a("v_lshl_add_u32 v10, v9, 4, v10")
        a(f"v_add_u32 v10, {L_MB}, v10")
        a("ds_write_b128 v10, v[24:27]")
    masked(a, "v_cmp_gt_u32 vcc, 640, v0", "K2_se1", wm)
    def wp():
        a("v_mul_u32_u24 v13, 3, v11")
        a("v_sub_u32 v13, v7, v13")
        a("v_add_u32 v13, 1, v13")
        a("v_and_b32 v14, 7, v11")
        a("v_lshl_add_u32 v13, v13, 3, v14")
        a("v_lshlrev_b32 v13, 5, v13")
        a("v_lshrrev_b32 v14, 3, v11")
        a("v_lshl_add_u32 v13, v14, 10, v13")
        a(f"v_add_u32 v13, {L_POSP}, v13")
        for r in range(33, 40): a(f"v_mov_b32 v{r}, 0")
        a("ds_write_b128 v13, v[32:35]")
        a("ds_write_b128 v13, v[36:39] offset:16")
    masked(a, "v_cmp_gt_u32 vcc, 120, v7", "K2_se2", wp)
    def wo():
        a("v_add_u32 v13, 1, v0")
        a("v_cmp_gt_u32 vcc, 5, v0")
        a("v_cndmask_b32 v13, 0, v13, vcc")
        a("v_lshlrev_b32 v14, 2, v0")
        a(f"ds_write_b32 v14, v13 offset:{L_OWN}")
    masked(a, "v_cmp_gt_u32 vcc, 12, v0", "K2_se3", wo)
    a("s_branch K2_epi")

K2_KD = f"""
.amdhsa_kernel {KNAME}_kernel
  .amdhsa_next_free_vgpr 128
  .amdhsa_next_free_sgpr 102
  .amdhsa_accum_offset 128
  .amdhsa_group_segment_fixed_size 0
  .amdhsa_kernarg_size 88
  .amdhsa_user_sgpr_count 2
  .amdhsa_user_sgpr_kernarg_segment_ptr 1
  .amdhsa_system_sgpr_workgroup_id_x 1
.end_amdhsa_kernel
"""
```

```python
from asmlib import *
from consts import *

K1_GWG = 157
K1_IWG = 7
K1_PWG = 15
K1_GRID = 64 + K1_GWG + K1_IWG + K1_PWG
L_W = 0; L_H = 32768; L_O = L_H + 64 * 256
LP_W = 34816; LP_H = LP_W + 32768
K1_LDS = max(L_O + 64 * 272, LP_H + 128 * 256)
DBG1 = set()
WT = " sc0 sc1"

def srd(a, base, lo, hi, size, add=0):
    if add:
        a(f"s_add_u32 s{base}, s{lo}, {add}")
        a(f"s_addc_u32 s{base+1}, s{hi}, 0")
    else:
        a(f"s_mov_b32 s{base}, s{lo}")
        a(f"s_mov_b32 s{base+1}, s{hi}")
    a(f"s_mov_b32 s{base+2}, {size}")
    a(f"s_mov_b32 s{base+3}, 0x20000")

def g1(a, k):
    if "g1" not in DBG1: return
    a("s_memtime s[68:69]")
    a("s_waitcnt lgkmcnt(0)")
    a(f"s_mov_b32 s{70+k}, s68")
def g1out(a):
    if "g1" not in DBG1: return
    a("s_waitcnt vmcnt(0) lgkmcnt(0)")
    g1(a, 7)
    a("s_and_b32 s50, s3, 7")
    a("s_cmp_lg_u32 s50, 0")
    a("s_cbranch_scc1 K1_g1done")
    a("s_cmp_lg_u32 s2, 10")
    a("s_cbranch_scc1 K1_g1done")
    a("s_mov_b32 s51, 0")
    a("s_lshl_b32 s50, s3, 3")
    a("s_add_u32 s51, s51, s50")
    a("s_load_dwordx2 s[64:65], s[0:1], 72")
    a("s_waitcnt lgkmcnt(0)")
    a("s_mov_b32 s66, 256")
    a("s_mov_b32 s67, 0x20000")
    for k in range(8): a(f"v_writelane_b32 v104, s{70+k}, {k}")
    a("v_and_b32 v105, 63, v0")
    a("v_lshlrev_b32 v105, 2, v105")
    a("v_mov_b32 v106, 0x7fffff00")
    a("v_cmp_gt_u32 vcc, 32, v105")
    a("v_cndmask_b32 v105, v106, v105, vcc")
    a("buffer_store_dword v104, v105, s[64:67], s51 offen")
    a("s_waitcnt vmcnt(0)")
    a.label("K1_g1done")

def p_stage(a, pre):
    a("v_lshrrev_b32 v60, 6, v0")
    a("v_and_b32 v61, 63, v0")
    a("v_readfirstlane_b32 s52, v60")
    a("v_lshrrev_b32 v62, 4, v61")
    a("s_lshl_b32 s53, s52, 2")
    a("v_add_u32 v63, s53, v62")
    a("v_xor_b32 v64, v63, v61")
    a("v_and_b32 v64, 15, v64")
    a("v_lshlrev_b32 v63, 8, v63")
    a("v_lshl_add_u32 v63, v64, 4, v63")
    a("v_lshlrev_b32 v64, 2, v62")
    a("v_xor_b32 v64, v64, v61")
    a("v_and_b32 v64, 15, v64")
    a("v_lshlrev_b32 v65, 8, v62")
    a("v_lshl_add_u32 v65, v64, 4, v65")
    srd(a, 56, 48, 49, N * 256)
    srd(a, 44, 50, 51, 273 * 256)
    a("s_lshl_b32 s54, s2, 15")
    a("s_lshl_b32 s55, s52, 10")
    for i in range(2):
        a(f"s_add_u32 m0, s55, {LP_H + i*16384}")
        a(f"s_add_u32 s53, s54, {i*16384}")
        a("buffer_load_dwordx4 v63, s[56:59], s53 offen lds")
    a("s_lshl_b32 s55, s52, 11")
    for i in range(2):
        a(f"s_add_u32 s53, s55, {i*1024}")
        a(f"s_add_u32 m0, s53, {LP_W}")
        a("s_nop 0")
        a("buffer_load_dwordx4 v65, s[44:47], s53 offen lds")

def p_compute(a, younger):
    a("s_and_b32 s35, s52, 3")
    a("s_lshr_b32 s36, s52, 2")
    a("v_and_b32 v4, 31, v61")
    a("v_lshrrev_b32 v5, 5, v61")
    a("v_and_b32 v6, 15, v4")
    a("v_xor_b32 v6, v6, v5")
    a("v_lshlrev_b32 v6, 4, v6")
    a("v_lshl_add_u32 v6, v4, 8, v6")
    a("s_lshl_b32 s37, s36, 13")
    a(f"s_add_u32 s37, s37, {LP_H}")
    a("v_add_u32 v6, s37, v6")
    a("v_bfe_u32 v9, v61, 2, 2")
    a("v_bfe_u32 v10, v61, 4, 1")
    a("v_bfe_u32 v11, v61, 1, 1")
    a("v_lshl_add_u32 v10, v10, 1, v11")
    a("s_lshl_b32 s39, s35, 2")
    a("v_add_u32 v10, s39, v10")
    a("v_lshlrev_b32 v11, 2, v9")
    a("v_xor_b32 v10, v10, v11")
    a("v_lshl_add_u32 v9, v5, 3, v9")
    a("v_lshlrev_b32 v9, 8, v9")
    a("v_lshl_add_u32 v9, v10, 4, v9")
    a("v_and_b32 v10, 1, v61")
    a("v_lshl_add_u32 v9, v10, 3, v9")
    a(f"v_add_u32 v9, {LP_W}, v9")
    a("v_lshlrev_b32 v2, 4, v4")
    a("v_lshl_add_u32 v2, v5, 3, v2")
    a("s_lshl_b32 s38, s35, 9")
    a("v_add_u32 v2, s38, v2")
    srd(a, 44, 18, 19, P_BYTES, add=WS_P)
    a("s_lshl_b32 s42, s2, 4")
    a("s_lshl_b32 s43, s36, 2")
    a("s_add_u32 s42, s42, s43")
    a("s_lshl_b32 s42, s42, 11")
    a(f"s_mov_b32 s40, {f2u(LOG2E):#x}")
    a(f"s_waitcnt vmcnt({younger})")
    a("s_barrier")
    for ks in range(8):
        a(f"ds_read_b64_tr_b16 v[{48+4*ks}:{49+4*ks}], v9 offset:{ks*4096}")
        a(f"ds_read_b64_tr_b16 v[{50+4*ks}:{51+4*ks}], v9 offset:{ks*4096+1024}")
    for ks in range(8):
        a(f"v_xor_b32 v7, {ks*32}, v6" if ks else "v_mov_b32 v7, v6")
        a(f"ds_read_b128 v[{16+4*ks}:{19+4*ks}], v7")
    a("s_waitcnt lgkmcnt(0)")
    for ks in range(8):
        c = "0" if ks == 0 else "v[80:95]"
        a(f"v_mfma_f32_32x32x16_bf16 v[80:95], v[{16+4*ks}:{19+4*ks}], v[{48+4*ks}:{51+4*ks}], {c}")
    for r in range(16):
        a(f"v_mul_f32 v{80+r}, s40, v{80+r}")
    for p in range(8):
        a(f"v_cvt_pk_bf16_f32 v{96+p}, v{80+2*p}, v{81+2*p}")
    for g in range(4):
        a(f"s_add_u32 s43, s42, {g*2048}")
        a(f"buffer_store_dwordx2 v[{96+2*g}:{97+2*g}], v2, s[44:47], s43 offen" + WT)

def gen_k1(a):
    a.raw(".p2align 8")
    a.raw(".type egnn_prep_kernel,@function")
    a.label("egnn_prep_kernel")
    a(f"s_cmp_ge_u32 s2, {K1_GRID}")
    a("s_cbranch_scc1 K1_end")
    RT = "rt" in DBG1
    if RT:
        rt_begin(a, 60)
        a("s_mov_b32 s62, s2")
    def fin():
        if RT: rt_end(a, 60, 64, 0, 62, 104, "")
        a("s_endpgm")
    a("s_cmp_ge_u32 s2, 64")
    a("s_cbranch_scc1 K1_q")
    a("s_load_dwordx4 s[8:11], s[0:1], 24")
    a("s_load_dwordx2 s[18:19], s[0:1], 80")
    a("s_load_dwordx2 s[4:5], s[0:1], 8")
    a("s_load_dwordx2 s[48:49], s[0:1], 0")
    a("s_load_dwordx2 s[50:51], s[0:1], 40")
    a("v_lshlrev_b32 v1, 4, v0")
    a(f"s_mul_i32 s3, s2, {CH*4}")
    a("v_cmp_gt_u32 vcc, 625, v0")
    a("v_mov_b32 v12, -1"); a("v_mov_b32 v13, -1"); a("v_mov_b32 v14, -1"); a("v_mov_b32 v15, -1")
    a("v_lshlrev_b32 v2, 2, v0")
    a("v_mov_b32 v3, 0")
    a("s_waitcnt lgkmcnt(0)")
    srd(a, 24, 10, 11, E * 4)
    srd(a, 20, 8, 9, E * 4)
    a("s_and_saveexec_b64 s[32:33], vcc")
    a("s_cbranch_execz K1_b1")
    a("buffer_load_dwordx4 v[4:7], v1, s[24:27], s3 offen")
    a("buffer_load_dwordx4 v[8:11], v1, s[20:23], s3 offen")
    a.label("K1_b1")
    a("s_mov_b64 exec, s[32:33]")
    a("v_lshrrev_b32 v40, 6, v0")
    a("v_readfirstlane_b32 s38, v40")
    a("s_sub_u32 s39, s38, 10")
    a("s_cmp_ge_u32 s39, 2")
    a("s_cbranch_scc1 K1_np4")
    srd(a, 40, 4, 5, N * 6)
    a("s_lshl_b32 s44, s2, 1")
    a("s_add_u32 s44, s44, s39")
    a("s_lshl_b32 s44, s44, 6")
    a("v_and_b32 v40, 63, v0")
    a("v_add_u32 v40, s44, v40")
    a("v_mul_u32_u24 v41, 12, v40")
    a("buffer_load_dwordx3 v[44:46], v41, s[40:43], 0 offen")
    a.label("K1_np4")
    p_stage(a, "K1_")
    a("ds_write_b128 v1, v[12:15]")
    a("ds_write_b128 v1, v[12:15] offset:16384")
    a("v_cmp_gt_u32 vcc, 256, v0")
    a("s_and_saveexec_b64 s[34:35], vcc")
    a("s_cbranch_execz K1_b2")
    a("ds_write_b32 v2, v3 offset:32768")
    a.label("K1_b2")
    a("s_mov_b64 exec, s[34:35]")
    srd(a, 28, 18, 19, CELLS_BYTES)
    a("v_lshlrev_b32 v16, 22, v0")
    a("v_mov_b32 v17, 1")
    a("v_mov_b32 v36, 33788")
    a("s_waitcnt lgkmcnt(0)")
    a("s_barrier")
    a("s_cmp_ge_u32 s39, 2")
    a("s_cbranch_scc1 K1_np4b")
    srd(a, 40, 18, 19, POS4_BYTES, add=WS_POS4)
    a("s_waitcnt vmcnt(4)")
    a("v_mov_b32 v48, v44")
    a("v_and_b32 v49, 0xffff, v45")
    a("v_alignbit_b32 v50, v46, v45, 16")
    a("v_lshrrev_b32 v51, 16, v46")
    a("v_lshlrev_b32 v41, 4, v40")
    a("buffer_store_dwordx4 v[48:51], v41, s[40:43], 0 offen" + WT)
    a.label("K1_np4b")
    a("v_cmp_gt_u32 vcc, 625, v0")
    a("s_and_saveexec_b64 s[32:33], vcc")
    a("s_cbranch_execz K1_b3")
    a("s_waitcnt vmcnt(4)")
    for k in range(4):
        a(f"v_mul_u32_u24 v{20+k}, 52429, v{4+k}")
        a(f"v_lshrrev_b32 v{20+k}, 21, v{20+k}")
        a(f"v_lshlrev_b32 v{28+k}, 2, v{20+k}")
        a(f"ds_add_rtn_u32 v{24+k}, v{28+k}, v17 offset:32768")
    for k in range(4):
        a(f"v_mul_u32_u24 v{32+k}, 40, v{20+k}")
        a(f"v_sub_u32 v{32+k}, v{4+k}, v{32+k}")
        a(f"v_lshl_or_b32 v{8+k}, v{32+k}, 14, v{8+k}")
        if k: a(f"v_add_u32 v{32+k}, {k<<20}, v16")
        a(f"v_or_b32 v{8+k}, v{8+k}, v{32+k if k else 16}")
        a(f"v_lshlrev_b32 v{20+k}, 7, v{20+k}")
    a("s_waitcnt lgkmcnt(0)")
    for k in range(4):
        a(f"v_lshl_add_u32 v{20+k}, v{24+k}, 2, v{20+k}")
        a(f"v_cmp_gt_u32 vcc, 32, v{24+k}")
        a(f"v_cndmask_b32 v{20+k}, v36, v{20+k}, vcc")
        a(f"ds_write_b32 v{20+k}, v{8+k}")
    a.label("K1_b3")
    a("s_mov_b64 exec, s[32:33]")
    a("s_lshl_b32 s3, s2, 7")
    a("v_lshrrev_b32 v2, 3, v0")
    a("v_and_b32 v3, 7, v0")
    a("v_lshlrev_b32 v4, 2, v2")
    a("v_lshlrev_b32 v7, 13, v2")
    a("v_lshl_add_u32 v7, v3, 4, v7")
    a(f"v_add_u32 v16, {128*8192}, v7")
    a("v_cmp_eq_u32 s[36:37], 7, v3")
    a("v_mov_b32 v17, -2")
    a("s_waitcnt lgkmcnt(0)")
    a("s_barrier")
    a("ds_read_b128 v[8:11], v1")
    a("ds_read_b128 v[12:15], v1 offset:16384")
    a("ds_read_b32 v5, v4 offset:32768")
    a(f"ds_read_b32 v6, v4 offset:{32768+512}")
    a("s_waitcnt lgkmcnt(0)")
    a("v_cmp_lt_u32 vcc, 32, v5")
    a("s_and_b64 vcc, vcc, s[36:37]")
    a("v_cndmask_b32 v11, v11, v17, vcc")
    a("v_cmp_lt_u32 vcc, 32, v6")
    a("s_and_b64 vcc, vcc, s[36:37]")
    a("v_cndmask_b32 v15, v15, v17, vcc")
    a("buffer_store_dwordx4 v[8:11], v7, s[28:31], s3 offen" + WT)
    a("buffer_store_dwordx4 v[12:15], v16, s[28:31], s3 offen" + WT)
    p_compute(a, 2)
    fin()
    a.label("K1_q")
    a.clear_hist()
    a(f"s_cmp_ge_u32 s2, {64 + K1_GWG + K1_IWG}")
    a("s_cbranch_scc1 K1_ponly")
    a(f"s_cmp_ge_u32 s2, {64 + K1_GWG}")
    a("s_cbranch_scc1 K1_img")
    g1(a, 0)
    a("s_load_dwordx2 s[4:5], s[0:1], 0")
    a("s_load_dwordx2 s[12:13], s[0:1], 40")
    a("s_load_dwordx2 s[18:19], s[0:1], 80")
    a("v_lshrrev_b32 v1, 6, v0")
    a("v_and_b32 v2, 63, v0")
    a("v_readfirstlane_b32 s3, v1")
    a("s_sub_u32 s2, s2, 64")
    a("v_lshrrev_b32 v4, 4, v2")
    a("s_lshl_b32 s33, s3, 2")
    a("v_add_u32 v5, s33, v4")
    a("v_xor_b32 v6, v5, v2")
    a("v_and_b32 v6, 15, v6")
    a("v_lshlrev_b32 v5, 8, v5")
    a("v_lshl_add_u32 v5, v6, 4, v5")
    a("v_lshlrev_b32 v6, 2, v4")
    a("v_xor_b32 v6, v6, v2")
    a("v_and_b32 v6, 15, v6")
    a("v_lshlrev_b32 v3, 8, v4")
    a("v_lshl_add_u32 v3, v6, 4, v3")
    a(f"s_lshl_b32 s34, s2, 14")
    a("s_lshl_b32 s35, s3, 10")
    a("s_lshl_b32 s36, s3, 11")
    a("s_waitcnt lgkmcnt(0)")
    g1(a, 1)
    srd(a, 24, 4, 5, N * 256)
    srd(a, 20, 12, 13, 273 * 256)
    a("s_mov_b32 s38, 32768")
    a(f"s_add_u32 m0, s35, {L_H}")
    a("s_nop 0")
    a("buffer_load_dwordx4 v5, s[24:27], s34 offen lds")
    a("s_mul_i32 s45, s2, 5120")
    for i in range(2):
        a(f"s_add_u32 s37, s36, {i*1024}")
        if "norot" not in DBG1:
            a("s_add_u32 s37, s37, s45")
            a("s_and_b32 s37, s37, 0x7fff")
        a(f"s_add_u32 m0, s37, {L_W}")
        a("s_add_u32 s37, s37, s38")
        if "g1now" not in DBG1: a("buffer_load_dwordx4 v3, s[20:23], s37 offen lds")
    a("s_and_b32 s35, s3, 3")
    a("s_bfe_u32 s36, s3, 0x10002")
    a("v_and_b32 v4, 31, v2")
    a("v_lshrrev_b32 v5, 5, v2")
    a("v_and_b32 v6, 15, v4")
    a("v_xor_b32 v6, v6, v5")
    a("v_lshlrev_b32 v6, 4, v6")
    a("v_lshl_add_u32 v6, v4, 8, v6")
    a("s_lshl_b32 s37, s36, 13")
    a(f"s_add_u32 s37, s37, {L_H}")
    a("v_add_u32 v6, s37, v6")
    a("v_bfe_u32 v9, v2, 2, 2")
    a("v_bfe_u32 v10, v2, 4, 1")
    a("v_bfe_u32 v11, v2, 1, 1")
    a("v_lshl_add_u32 v10, v10, 1, v11")
    a("s_lshl_b32 s39, s35, 2")
    a("v_add_u32 v10, s39, v10")
    a("v_lshlrev_b32 v11, 2, v9")
    a("v_xor_b32 v10, v10, v11")
    a("v_lshl_add_u32 v9, v5, 3, v9")
    a("v_lshlrev_b32 v9, 8, v9")
    a("v_lshl_add_u32 v9, v10, 4, v9")
    a("v_and_b32 v10, 1, v2")
    a("v_lshl_add_u32 v9, v10, 3, v9")
    a("s_lshl_b32 s39, s35, 6")
    a(f"s_mov_b32 s40, {f2u(LOG2E):#x}")
    g1(a, 2)
    a("s_waitcnt vmcnt(0)")
    g1(a, 3)
    a("s_barrier")
    g1(a, 4)
    a("s_cmp_ge_u32 s3, 8")
    a("s_cbranch_scc1 K1_jd")
    for ks in range(8):
        a(f"ds_read_b64_tr_b16 v[{48+4*ks}:{49+4*ks}], v9 offset:{ks*4096}")
        a(f"ds_read_b64_tr_b16 v[{50+4*ks}:{51+4*ks}], v9 offset:{ks*4096+1024}")
    a("v_mul_u32_u24 v12, 272, v4")
    a("v_lshl_add_u32 v12, v5, 3, v12")
    a("s_mul_i32 s37, s36, %d" % (32 * 272))
    a("s_add_u32 s37, s37, s39")
    a(f"s_add_u32 s37, s37, {L_O}")
    a("v_add_u32 v12, s37, v12")
    for ks in range(8):
        a(f"v_xor_b32 v7, {ks*32}, v6" if ks else "v_mov_b32 v7, v6")
        a(f"ds_read_b128 v[{16+4*ks}:{19+4*ks}], v7")
    a("s_waitcnt lgkmcnt(0)")
    for ks in range(8):
        c = "0" if ks == 0 else "v[80:95]"
        a(f"v_mfma_f32_32x32x16_bf16 v[80:95], v[{48+4*ks}:{51+4*ks}], v[{16+4*ks}:{19+4*ks}], {c}")
    for r in range(16):
        a(f"v_mul_f32 v{80+r}, s40, v{80+r}")
    for p in range(8):
        a(f"v_cvt_pk_bf16_f32 v{96+p}, v{80+2*p}, v{81+2*p}")
    for g in range(4):
        a(f"ds_write_b64 v12, v[{96+2*g}:{97+2*g}] offset:{g*16}")
    a.label("K1_jd")
    a.clear_hist()
    g1(a, 5)
    a("v_lshrrev_b32 v4, 4, v0")
    a("v_and_b32 v5, 15, v0")
    a("v_mul_u32_u24 v6, 272, v4")
    a("v_lshl_add_u32 v6, v5, 4, v6")
    a(f"v_add_u32 v6, {L_O}, v6")
    a("v_lshlrev_b32 v7, 4, v0")
    srd(a, 20, 18, 19, Q_BYTES, add=WS_Q)
    a("s_add_u32 s35, s34, 256")
    a("s_waitcnt lgkmcnt(0)")
    a("s_barrier")
    g1(a, 6)
    a("ds_read_b128 v[16:19], v6")
    a("s_waitcnt lgkmcnt(0)")
    a("buffer_store_dwordx4 v[16:19], v7, s[20:23], s35 offen" + WT)
    a("s_cmp_lg_u32 s2, 0")
    a("s_cbranch_scc1 K1_gend")
    a("v_cmp_gt_u32 vcc, 16, v0")
    a("s_and_saveexec_b64 s[32:33], vcc")
    a("s_cbranch_execz K1_gend")
    for r in range(4): a(f"v_mov_b32 v{28+r}, 0")
    a("buffer_store_dwordx4 v[28:31], v7, s[20:23], 0 offen" + WT)
    a.label("K1_gend")
    a.clear_hist()
    a("s_mov_b64 exec, -1")
    g1out(a)
    fin()
    a.label("K1_ponly")
    a.clear_hist()
    a("s_load_dwordx2 s[18:19], s[0:1], 80")
    a("s_load_dwordx2 s[48:49], s[0:1], 0")
    a("s_load_dwordx2 s[50:51], s[0:1], 40")
    a(f"s_sub_u32 s2, s2, {K1_GWG + K1_IWG}")
    a("s_waitcnt lgkmcnt(0)")
    p_stage(a, "K1o_")
    p_compute(a, 0)
    fin()
    a.label("K1_img")
    a.clear_hist()
    a("s_load_dwordx4 s[12:15], s[0:1], 40")
    a("s_load_dwordx2 s[16:17], s[0:1], 56")
    a("s_load_dwordx2 s[18:19], s[0:1], 80")
    a("v_lshrrev_b32 v1, 6, v0")
    a("v_and_b32 v2, 63, v0")
    a("v_readfirstlane_b32 s3, v1")
    a(f"s_sub_u32 s2, s2, {64 + K1_GWG}")
    a("s_lshl_b32 s33, s2, 4")
    a("s_add_u32 s33, s33, s3")
    a("s_add_u32 s62, s33, 300")
    def fin_img():
        if RT: rt_end(a, 60, 64, 0, 62, 104, "", anywave=True)
        a("s_endpgm")
    a("v_and_b32 v4, 31, v2")
    a("v_lshrrev_b32 v5, 5, v2")
    a("v_lshlrev_b32 v6, 11, v5")
    a("v_lshl_add_u32 v6, v4, 1, v6")
    a("v_lshlrev_b32 v3, 4, v2")
    a("s_waitcnt lgkmcnt(0)")
    srd(a, 28, 18, 19, IMG_BYTES, add=WS_IMG)
    srd(a, 20, 12, 13, 273 * 256)
    a("s_cmp_ge_u32 s33, 105")
    a("s_cbranch_scc1 K1_end")
    a("s_cmp_ge_u32 s33, 101")
    a("s_cbranch_scc1 K1_tab")
    a("s_cmp_ge_u32 s33, 100")
    a("s_cbranch_scc1 K1_wd")
    a("s_cmp_ge_u32 s33, 96")
    a("s_cbranch_scc1 K1_w4")
    a("s_cmp_ge_u32 s33, 64")
    a("s_cbranch_scc1 K1_end")
    srd(a, 24, 16, 17, 256 * 256)
    a("s_lshr_b32 s35, s33, 5")
    a("s_lshl_b32 s37, s35, 15")
    a.label("K1_wf")
    a.clear_hist()
    a("s_bfe_u32 s34, s33, 0x20003")
    a("s_and_b32 s35, s33, 7")
    a("s_lshl_b32 s35, s35, 12")
    a("s_lshl_b32 s34, s34, 6")
    a("s_add_u32 s34, s34, s35")
    a("s_add_u32 s34, s34, s37")
    a("s_lshl_b32 s36, s33, 10")
    for j in range(8):
        a(f"buffer_load_ushort v{16+j}, v6, s[24:27], s34 offen offset:{j*256}")
    a("s_waitcnt vmcnt(0)")
    for p in range(4):
        a(f"v_lshl_or_b32 v{24+p}, v{17+2*p}, 16, v{16+2*p}")
    a("buffer_store_dwordx4 v[24:27], v3, s[28:31], s36 offen" + WT)
    fin_img()
    a.label("K1_w4")
    a.clear_hist()
    a("s_sub_u32 s33, s33, 96")
    a("s_lshl_b32 s34, s33, 6")
    a(f"s_add_u32 s34, s34, {257*256}")
    a("s_lshl_b32 s36, s33, 10")
    a(f"s_add_u32 s36, s36, {IMG_W4}")
    for j in range(8):
        a(f"buffer_load_ushort v{16+j}, v6, s[20:23], s34 offen offset:{j*256}")
    a(f"s_mov_b32 s40, {f2u(LOG2E):#x}")
    a("s_waitcnt vmcnt(0)")
    for j in range(8):
        a(f"v_lshlrev_b32 v{16+j}, 16, v{16+j}")
        a(f"v_mul_f32 v{16+j}, s40, v{16+j}")
    for p in range(4):
        a(f"v_cvt_pk_bf16_f32 v{24+p}, v{16+2*p}, v{17+2*p}")
    a("buffer_store_dwordx4 v[24:27], v3, s[28:31], s36 offen" + WT)
    fin_img()
    a.label("K1_wd")
    a.clear_hist()
    srd(a, 24, 14, 15, 256)
    a("v_lshlrev_b32 v7, 1, v2")
    a(f"s_mov_b32 s34, {256*256}")
    a("buffer_load_ushort v16, v7, s[20:23], s34 offen")
    a("buffer_load_ushort v17, v7, s[20:23], s34 offen offset:128")
    a("buffer_load_ushort v18, v7, s[24:27], 0 offen")
    a("buffer_load_ushort v19, v7, s[24:27], 0 offen offset:128")
    a(f"s_mov_b32 s40, {f2u(LOG2E):#x}")
    a(f"s_mov_b32 s41, {f2u(LN2):#x}")
    a("v_lshlrev_b32 v8, 2, v2")
    for r in (25, 26, 27, 29, 30, 31): a(f"v_mov_b32 v{r}, 0")
    a("s_waitcnt vmcnt(0)")
    for k in range(2):
        d = 24 + 4 * k
        a(f"v_lshlrev_b32 v{16+k}, 16, v{16+k}")
        a(f"v_mul_f32 v{16+k}, s40, v{16+k}")
        a(f"v_cvt_pk_bf16_f32 v{20+k}, v{16+k}, v{16+k}")
        a(f"v_and_b32 v{22+k}, 0xffff0000, v{20+k}")
        a(f"v_sub_f32 v{22+k}, v{16+k}, v{22+k}")
        a(f"v_cvt_pk_bf16_f32 v{d}, v{16+k}, v{22+k}")
        a(f"v_lshlrev_b32 v{18+k}, 16, v{18+k}")
        a(f"v_mul_f32 v{18+k}, s41, v{18+k}")
    a(f"s_mov_b32 s34, {IMG_WD16}")
    a(f"s_mov_b32 s35, {IMG_WXF}")
    a("buffer_store_dwordx4 v[24:27], v3, s[28:31], s34 offen" + WT)
    a("buffer_store_dwordx4 v[28:31], v3, s[28:31], s34 offen offset:1024" + WT)
    a("buffer_store_dword v18, v8, s[28:31], s35 offen" + WT)
    a("buffer_store_dword v19, v8, s[28:31], s35 offen offset:256" + WT)
    fin_img()
    a.label("K1_tab")
    a.clear_hist()
    import gen_k2
    gen_k2.table_job(a, WT)
    fin_img()
    a.label("K1_end")
    a("s_endpgm")

K1_KD = f"""
.amdhsa_kernel egnn_prep_kernel
  .amdhsa_next_free_vgpr 112
  .amdhsa_next_free_sgpr 80
  .amdhsa_accum_offset 112
  .amdhsa_group_segment_fixed_size 0
  .amdhsa_kernarg_size 88
  .amdhsa_user_sgpr_count 2
  .amdhsa_user_sgpr_kernarg_segment_ptr 1
  .amdhsa_system_sgpr_workgroup_id_x 1
.end_amdhsa_kernel
"""
```

```python
from asmlib import *
from consts import *
from gen_k1 import srd

MAXT = 28
TS = 2560
O_D2 = 2048
L_CNT = 0
L_OWN = 32
L_WX = 128
L_PD = 640
L_T0 = 1024
L_QS = L_T0 + MAXT * TS
QSW = 3072
L_MB = L_QS + 16 * QSW
MBROW = 272
L_POSP = L_MB + 64 * MBROW
L_PST = L_POSP + 8192
O_WD = 10240; O_W4 = 12288
K2_LDS = L_PST + 16384
assert K2_LDS <= 163840, K2_LDS
assert L_POSP % 32 == 0 and L_QS % 256 == 0
L_MACC = L_MB; MROW = 528; L_POSACC = L_MACC + 40 * MROW
assert L_POSACC + 640 <= L_PST
PROW = 528
assert 104 * PROW <= MAXT * TS
OOB = 0x7FFFFF00
SLOW_BLK = 640
SLOW_NBLK = E // SLOW_BLK

S_WS, S_EA, S_OUT, S_H, S_SRC, S_DST = 8, 12, 16, 20, 24, 28
S_POS = 32
sW, sS, sQ, sT = 36, 37, 38, 39
sONE = 40
sSLOW, sQB, sWSQ, sT240 = 42, 43, 44, 45
sTG = 46
sNT = sTG + 5
sHM = 52
sA, sB, sJ, sEND, sFIRST, sHALF = 54, 55, 56, 57, 58, 59
sLN2, sLOG2E = 60, 61
sWSP4 = 62
sV0, sV1 = 80, 82
sQB1, sQB2 = 84, 85
sSTS, sSTD, sHD, sT10K, sCD, sWHT, sPD = 90, 91, 92, 93, 94, 89, 88
vHO = 2
vQ1 = 1
vQ0, vEA, vEO, vSEL = 4, 5, 6, 7
vST, vLS, vLE, vPBs = 8, 9, 10, 11
vCQ, vPBb, vFM, vFP = 12, 13, 14, 15
vPB = 16
vSN, vSE = 20, 22
vX, vY, vZ = 23, 24, 25
vW4 = 28; vID = 32; vACC = 40; vD1 = 56
vA = 72; vT = 88; vM = 104; vSB = 112
vPR = 127

PROF = False
DBG = set()
def stamp(a, k):
    if not PROF: return
    a("s_memtime s[74:75]")
    a("s_waitcnt lgkmcnt(0)")
    a(f"v_writelane_b32 v{vPR}, s74, {k}")

def B(r): return f"s[{r}:{r+3}]"

def masked(a, cmp, label, body, sv=76):
    a(cmp)
    a(f"s_and_saveexec_b64 s[{sv}:{sv+1}], vcc")
    a(f"s_cbranch_execz {label}")
    body()
    a.label(label)
    a(f"s_mov_b64 exec, s[{sv}:{sv+1}]")

class RS:
    def __init__(self, base):
        self.rec = base; self.g = base + 1; self.dl = base + 2; self.so = base + 3
        self.rk = base + 4; self.tb = base + 5; self.e = base + 6; self.x = base + 7
        self.ps = base + 8; self.pd = base + 10; self.eid = base + 12
        self.c4 = base + 12
RS0, RS1 = RS(56), RS(72)
vCB, vONE1, vK1, vT32 = 100, 101, 3, 27
vZR = 88
vL = 124

def phase1(a, r):
    a(f"v_and_b32 v{r.so}, 0x3fff, v{r.rec}")
    a(f"v_lshlrev_b32 v{r.x}, 3, v{r.so}")
    a(f"buffer_load_dwordx2 v[{r.ps}:{r.ps+1}], v{r.x}, {B(S_WS)}, s{sWSP4} offen")
    a(f"v_bfe_u32 v{r.dl}, v{r.rec}, 14, 6")
    a(f"v_lshrrev_b32 v{r.g}, 1, v{r.dl}")
    a(f"v_and_b32 v{r.g}, 28, v{r.g}")
    a(f"ds_add_rtn_u32 v{r.rk}, v{r.g}, v{vONE1} offset:{L_CNT}")
    a(f"v_lshlrev_b32 v{r.tb}, 3, v{r.dl}")
    a(f"ds_read_b64 v[{r.pd}:{r.pd+1}], v{r.tb} offset:{L_PD}")
    a(f"v_lshlrev_b32 v{r.so}, 8, v{r.so}")
    a(f"v_add_u32 v{r.so}, 256, v{r.so}")

def phase1b(a, r):
    a(f"v_add_u32 v{r.rk}, v{r.rk}, v{r.x}")
    a(f"v_lshrrev_b32 v{r.tb}, 5, v{r.rk}")
    a(f"v_mul_u32_u24 v{r.tb}, {TS}, v{r.tb}")
    a(f"v_and_b32 v{r.e}, 31, v{r.rk}")
    a(f"v_lshl_add_u32 v{r.x}, v{r.e}, 4, v{r.tb}")
    a(f"v_lshlrev_b32 v{r.eid}, 8, v{r.eid}")
    a(f"ds_write_b32 v{r.x}, v{r.so} offset:{L_T0+O_D2+4}")
    a(f"ds_write_b32 v{r.x}, v{r.eid} offset:{L_T0+O_D2+8}")

def phase2(a, r):
    t0, t1, t2 = vX, vY, vZ
    a(f"v_lshlrev_b32 v{t0}, 16, v{r.ps}")
    a(f"v_lshlrev_b32 v{t1}, 16, v{r.pd}")
    a(f"v_sub_f32 v{t0}, v{t1}, v{t0}")
    a(f"v_and_b32 v{r.ps}, 0xffff0000, v{r.ps}")
    a(f"v_and_b32 v{r.pd}, 0xffff0000, v{r.pd}")
    a(f"v_sub_f32 v{t1}, v{r.pd}, v{r.ps}")
    a(f"v_lshlrev_b32 v{r.ps+1}, 16, v{r.ps+1}")
    a(f"v_lshlrev_b32 v{r.pd+1}, 16, v{r.pd+1}")
    a(f"v_sub_f32 v{t2}, v{r.pd+1}, v{r.ps+1}")
    a(f"v_cvt_pk_bf16_f32 v{r.ps}, v{t0}, v{t1}")
    a(f"v_cvt_pk_bf16_f32 v{r.ps+1}, v{t2}, v{t2}")
    a(f"v_and_b32 v{t2}, 7, v{r.dl}")
    a(f"v_lshl_add_u32 v{r.rk}, v{r.e}, 6, v{r.tb}")
    a(f"v_lshl_add_u32 v{r.rk}, v{t2}, 1, v{r.rk}")
    a(f"ds_write_b16 v{r.rk}, v{vK1} offset:{L_T0}")
    a(f"ds_write_b16 v{r.rk}, v{r.ps} offset:{L_T0+16}")
    a(f"ds_write_b16_d16_hi v{r.rk}, v{r.ps} offset:{L_T0+32}")
    a(f"ds_write_b16 v{r.rk}, v{r.ps+1} offset:{L_T0+48}")
    a(f"v_lshlrev_b32 v{t0}, 16, v{r.ps}")
    a(f"v_and_b32 v{t1}, 0xffff0000, v{r.ps}")
    a(f"v_and_b32 v{t2}, 0xffff0000, v{r.ps+1}")
    a(f"v_mul_f32 v{t0}, v{t0}, v{t0}")
    a(f"v_mul_f32 v{t1}, v{t1}, v{t1}")
    a(f"v_mul_f32 v{t2}, v{t2}, v{t2}")
    a(f"v_cvt_pk_bf16_f32 v{t0}, v{t0}, v{t1}")
    a(f"v_cvt_pk_bf16_f32 v{t2}, v{t2}, v{t2}")
    a(f"v_and_b32 v{t1}, 0xffff0000, v{t0}")
    a(f"v_lshlrev_b32 v{t0}, 16, v{t0}")
    a(f"v_and_b32 v{t2}, 0xffff0000, v{t2}")
    a(f"v_add_f32 v{t0}, v{t0}, v{t1}")
    a(f"v_add_f32 v{t0}, v{t0}, v{t2}")
    a(f"v_cvt_pk_bf16_f32 v{t0}, v{t0}, v{t0}")
    a(f"ds_write_b32 v{r.x}, v{t0} offset:{L_T0+O_D2}")

def issue_dma(a):
    if "noq" in DBG:
        a(f"v_and_b32 v{vSN}, 0x3f00, v{vSN}")
        a(f"v_and_b32 v{vSN+1}, 0x3f00, v{vSN+1}")
    a(f"v_add_u32 v{vSN}, v{vSN}, v{vCQ}")
    a(f"v_add_u32 v{vSN+1}, v{vSN+1}, v{vCQ}")
    a(f"s_mov_b32 m0, s{sQB}")
    a(f"v_lshrrev_b32 v{vSE}, 3, v{vSE}")
    a(f"buffer_load_dwordx4 v{vSN}, {B(S_WS)}, s{sWSQ} offen lds")
    a(f"s_mov_b32 m0, s{sQB1}")
    a(f"v_add_u32 v{vSE}, v{vSE}, v{vEO}")
    a(f"buffer_load_dwordx4 v{vSN+1}, {B(S_WS)}, s{sWSQ} offen lds")
    a(f"s_mov_b32 m0, s{sQB2}")
    if "noea" in DBG:
        a(f"v_and_b32 v{vSE}, 0x3ff, v{vSE}")
    if "noq" in DBG:
        a(f"s_nop 0")
    a(f"buffer_load_dwordx4 v{vSE}, {B(S_EA)}, 0 offen lds")

def lane_consts_run(a):
    e, hh, f, t, u = 92, 93, 94, 95, 96
    a(f"v_and_b32 v{e}, 31, v{vL}")
    a(f"v_lshrrev_b32 v{hh}, 5, v{vL}")
    a(f"v_lshlrev_b32 v{t}, 6, v{e}")
    a(f"v_lshlrev_b32 v{u}, 4, v{e}")
    a(f"v_add_u32 v{u}, {O_D2}, v{u}")
    a(f"v_cmp_eq_u32 vcc, 0, v{hh}")
    a(f"v_cndmask_b32 v{t}, v{u}, v{t}, vcc")
    a(f"v_add_u32 v{vSEL}, {L_T0}, v{t}")
    a(f"v_bfe_u32 v{t}, v{vL}, 2, 2")
    a(f"v_lshlrev_b32 v{t}, 6, v{t}")
    a(f"v_lshl_add_u32 v{t}, v{hh}, 8, v{t}")
    a(f"v_and_b32 v{u}, 16, v{vL}")
    a(f"v_lshl_add_u32 v{t}, v{u}, 1, v{t}")
    a(f"v_and_b32 v{u}, 3, v{vL}")
    a(f"v_lshl_add_u32 v{t}, v{u}, 3, v{t}")
    a(f"v_add_u32 v{vST}, {L_T0}, v{t}")
    a(f"v_lshrrev_b32 v{t}, 2, v{vL}")
    a(f"v_lshlrev_b32 v{t}, 4, v{t}")
    a(f"v_add_u32 v{vLS}, {L_T0+O_D2+4}, v{t}")
    a(f"v_lshrrev_b32 v{t}, 1, v{vL}")
    a(f"v_lshlrev_b32 v{t}, 4, v{t}")
    a(f"v_add_u32 v{vLE}, {L_T0+O_D2+8}, v{t}")

def table_job(a, WT):
    L = 2
    e, hh, f, t, u = 16, 17, 18, 19, 20
    a("s_sub_u32 s33, s33, 101")
    a(f"v_and_b32 v{e}, 31, v{L}")
    a(f"v_lshrrev_b32 v{hh}, 5, v{L}")
    a(f"v_lshrrev_b32 v{t}, 4, v{L}")
    a(f"v_xor_b32 v{t}, v{t}, v{L}")
    a(f"v_and_b32 v{t}, 3, v{t}")
    a(f"v_lshlrev_b32 v{t}, 4, v{t}")
    a("s_lshl_b32 s34, s33, 6")
    a(f"v_add_u32 v24, s34, v{t}")
    a(f"v_lshlrev_b32 v{t}, 4, v{e}")
    a("s_lshl_b32 s34, s33, 9")
    a(f"s_add_u32 s34, s34, {L_PST}")
    a(f"v_add_u32 v{t}, s34, v{t}")
    a(f"v_add_u32 v{u}, {O_WD}, v{t}")
    a(f"v_cmp_eq_u32 vcc, 0, v{hh}")
    a(f"v_cndmask_b32 v25, v{u}, v{t}, vcc")
    a(f"v_and_b32 v{t}, 7, v{e}")
    a(f"v_mul_u32_u24 v{t}, {MBROW}, v{t}")
    a(f"v_lshl_add_u32 v{t}, v{hh}, 3, v{t}")
    a("s_lshl_b32 s34, s33, 6")
    a(f"s_add_u32 s34, s34, {L_MB}")
    a(f"v_add_u32 v26, s34, v{t}")
    a(f"v_lshlrev_b32 v{t}, 5, v{e}")
    a(f"v_lshl_add_u32 v{t}, v{hh}, 4, v{t}")
    a("s_lshl_b32 s34, s33, 2")
    a(f"s_add_u32 s34, s34, {L_POSP}")
    a(f"v_add_u32 v27, s34, v{t}")
    a("s_lshl_b32 s35, s33, 10")
    a(f"s_add_u32 s35, s35, {IMG_TAB + 4096}")
    a("buffer_store_dwordx4 v[24:27], v3, s[28:31], s35 offen" + WT)
    a("s_cmp_lg_u32 s33, 0")
    a("s_cbranch_scc1 K1_tabd")
    a(f"v_bfe_u32 v{f}, v{e}, 2, 2")
    a(f"v_xor_b32 v{t}, v{hh}, v{f}")
    a(f"v_lshlrev_b32 v{t}, 4, v{t}")
    a(f"v_lshl_add_u32 v28, v{e}, 6, v{t}")
    a(f"v_lshlrev_b32 v{t}, 4, v{hh}")
    a(f"v_lshl_add_u32 v29, v{e}, 5, v{t}")
    a(f"v_and_b32 v{u}, 1, v{L}")
    a(f"v_lshlrev_b32 v30, 4, v{u}")
    a(f"v_lshlrev_b32 v{t}, 6, v{e}")
    a(f"v_lshlrev_b32 v{u}, 4, v{e}")
    a(f"v_add_u32 v{u}, {O_D2}, v{u}")
    a(f"v_cndmask_b32 v{t}, v{u}, v{t}, vcc")
    a(f"v_add_u32 v31, {L_T0}, v{t}")
    a(f"v_bfe_u32 v{t}, v{L}, 2, 2")
    a(f"v_lshlrev_b32 v{t}, 6, v{t}")
    a(f"v_lshl_add_u32 v{t}, v{hh}, 8, v{t}")
    a(f"v_and_b32 v{u}, 16, v{L}")
    a(f"v_lshl_add_u32 v{t}, v{u}, 1, v{t}")
    a(f"v_and_b32 v{u}, 3, v{L}")
    a(f"v_lshl_add_u32 v{t}, v{u}, 3, v{t}")
    a(f"v_add_u32 v32, {L_T0}, v{t}")
    a(f"v_lshrrev_b32 v{t}, 2, v{L}")
    a(f"v_lshlrev_b32 v{t}, 4, v{t}")
    a(f"v_add_u32 v33, {L_T0+O_D2+4}, v{t}")
    a(f"v_lshrrev_b32 v{t}, 1, v{L}")
    a(f"v_lshlrev_b32 v{t}, 4, v{t}")
    a(f"v_add_u32 v34, {L_T0+O_D2+8}, v{t}")
    a(f"v_mov_b32 v{u}, 2048")
    a(f"v_cndmask_b32 v35, 0, v{u}, vcc")
    a(f"v_and_b32 v{t}, 15, v{e}")
    a(f"v_lshlrev_b32 v{u}, 3, v{hh}")
    a(f"v_sub_u32 v{t}, v{t}, v{u}")
    a(f"v_and_b32 v{u}, 1, v{t}")
    a(f"v_lshlrev_b32 v{u}, 4, v{u}")
    a(f"v_mov_b32 v{f}, 0x3f80")
    a(f"v_lshlrev_b32 v{u}, v{u}, v{f}")
    a(f"v_cmp_gt_u32 vcc, 8, v{t}")
    a(f"v_cndmask_b32 v{u}, 0, v{u}, vcc")
    a(f"v_bfe_u32 v{t}, v{t}, 1, 2")
    a(f"v_lshrrev_b32 v{f}, 4, v{e}")
    a(f"v_lshl_add_u32 v{t}, v{f}, 2, v{t}")
    for d in range(8):
        a(f"v_cmp_eq_u32 vcc, {d}, v{t}")
        a(f"v_cndmask_b32 v{36+d}, 0, v{u}, vcc")
    a(f"s_mov_b32 s35, {IMG_TAB}")
    a("buffer_store_dwordx4 v[36:39], v3, s[28:31], s35 offen" + WT)
    a("buffer_store_dwordx4 v[40:43], v3, s[28:31], s35 offen offset:1024" + WT)
    a("buffer_store_dwordx4 v[28:31], v3, s[28:31], s35 offen offset:2048" + WT)
    a("buffer_store_dwordx4 v[32:35], v3, s[28:31], s35 offen offset:3072" + WT)
    a.label("K1_tabd")
    a.clear_hist()

def gen_k2(a):
    a(f"s_cmp_ge_u32 s2, {T}")
    a("s_cbranch_scc1 K2_end")
    stamp(a, 0)
    if "rt" in DBG: rt_begin(a, 86)
    if "clk2" in DBG:
        a("s_memtime s[96:97]")
        a("s_memrealtime s[98:99]")
    a("s_load_dwordx2 s[4:5], s[0:1], 80")
    a("s_load_dwordx4 s[64:67], s[0:1], 0")
    a("s_load_dwordx2 s[68:69], s[0:1], 16")
    a("s_load_dwordx2 s[70:71], s[0:1], 64")
    a(f"s_mov_b32 s{sT}, s2")
    a(f"v_lshrrev_b32 v{vX}, 4, v0")
    a(f"v_lshlrev_b32 v{vY}, 6, v{vX}")
    a(f"v_lshl_add_u32 v{vY}, v0, 2, v{vY}")
    a(f"v_mul_u32_u24 v{vCB}, {CH}, v{vX}")
    a(f"v_lshrrev_b32 v{vX}, 6, v0")
    a(f"v_readfirstlane_b32 s{sW}, v{vX}")
    a(f"v_and_b32 v{vL}, 63, v0")
    a(f"s_lshl_b32 s3, s{sT}, 13")
    a(f"v_lshlrev_b32 v{vX}, 4, v{vL}")
    a(f"s_and_b32 s{sS}, s{sW}, 3")
    a(f"s_lshr_b32 s{sQ}, s{sW}, 2")
    a(f"s_mul_i32 s{sQB}, s{sW}, {QSW}")
    a(f"s_add_u32 s{sQB}, s{sQB}, {L_QS}")
    a(f"s_add_u32 s{sQB1}, s{sQB}, 1024")
    a(f"s_add_u32 s{sQB2}, s{sQB}, 2048")
    a(f"s_mul_i32 s63, s{sT}, 10240")
    a(f"s_add_u32 s63, s63, {WS_P}")
    a(f"s_cmp_ge_u32 s{sW}, 10")
    a(f"s_cselect_b32 s63, {WS_IMG + IMG_WD16 - 10240}, s63")
    a(f"s_lshl_b32 s72, s{sW}, 10")
    a(f"s_add_u32 s63, s63, s72")
    a(f"s_add_u32 s72, s72, {L_PST}")
    a(f"v_lshrrev_b32 v{vZ}, 4, v{vL}")
    a(f"s_lshl_b32 s73, s{sW}, 2")
    a(f"v_add_u32 v{vZ}, s73, v{vZ}")
    a(f"v_xor_b32 v{vHO}, v{vZ}, v{vL}")
    a(f"v_and_b32 v{vHO}, 15, v{vHO}")
    a(f"v_lshlrev_b32 v{vZ}, 8, v{vZ}")
    a(f"v_lshl_add_u32 v{vHO}, v{vHO}, 4, v{vZ}")
    a(f"s_mul_i32 s{sT10K}, s{sT}, {40*256}")
    a("s_waitcnt lgkmcnt(0)")
    stamp(a, 1)
    srd(a, S_WS, 4, 5, WS_END)
    a(f"buffer_load_dword v{RS0.rec}, v{vY}, {B(S_WS)}, s3 offen")
    a(f"buffer_load_dword v{RS1.rec}, v{vY}, {B(S_WS)}, s3 offen offset:64")
    a(f"s_mov_b32 s{sWSP4}, {WS_POS4}")
    a(f"s_mov_b32 s{sSTS}, s63")
    a(f"s_mov_b32 s{sSTD}, s72")
    a(f"s_cmp_ge_u32 s{sW}, 10")
    a("s_cbranch_scc1 K2_nx")
    a(f"s_cmp_ge_u32 s{sW}, 8")
    a("s_cbranch_scc1 K2_x8")
    a(f"s_lshl_b32 s3, s{sW}, 10")
    a(f"s_add_u32 m0, s3, {L_QS}")
    a(f"s_add_u32 s3, s3, {WS_IMG + IMG_TAB}")
    a(f"buffer_load_dwordx4 v{vX}, {B(S_WS)}, s3 offen lds")
    a("s_branch K2_xh")
    a.label("K2_x8")
    a(f"s_cmp_eq_u32 s{sW}, 9")
    a("s_cbranch_scc1 K2_x9")
    a(f"s_mul_i32 s3, s{sT}, 320")
    a(f"s_add_u32 s3, s3, {WS_POS4}")
    a(f"s_mov_b32 m0, {L_PD}")
    a("s_mov_b64 exec, 0xfffff")
    a(f"buffer_load_dwordx4 v{vX}, {B(S_WS)}, s3 offen lds")
    a("s_mov_b64 exec, -1")
    a("s_branch K2_xh")
    a.label("K2_x9")
    a(f"s_mov_b32 s3, {WS_IMG + IMG_WXF}")
    a(f"s_mov_b32 m0, {L_WX}")
    a("s_mov_b32 exec_hi, 0")
    a(f"buffer_load_dwordx4 v{vX}, {B(S_WS)}, s3 offen lds")
    a("s_mov_b64 exec, -1")
    a.label("K2_xh")
    a.label("K2_nx")
    a.clear_hist()
    srd(a, S_EA, 68, 69, E * 32)
    srd(a, S_OUT, 70, 71, N * 262)
    srd(a, S_H, 64, 65, N * 256)
    srd(a, S_POS, 66, 67, N * 6)
    a(f"s_mov_b32 s{sONE}, 1.0")
    a(f"s_mov_b32 s{sONE+1}, 1.0")
    a(f"s_mov_b32 s{sSLOW}, 0")
    a(f"s_mov_b32 s{sCD}, 0")
    a(f"s_mov_b32 s{sPD}, 0")
    a(f"s_mov_b32 s{sWHT}, {WS_IMG}")
    a(f"s_mov_b32 s{sWSQ}, {WS_Q}")
    a(f"s_mul_i32 s{sT240}, s{sT}, 240")
    a(f"s_mov_b32 s{sLN2}, {f2u(LN2):#x}")
    a(f"s_mov_b32 s{sLOG2E}, {f2u(LOG2E):#x}")
    a.label("K2_batch")
    a.clear_hist()
    a(f"v_lshlrev_b32 v{vZ}, 4, v0")
    for r in range(4): a(f"v_mov_b32 v{vZR+r}, 0")
    ZR = f"v[{vZR}:{vZR+3}]"
    a(f"s_cmp_ge_u32 s{sW}, 8")
    a("s_cbranch_scc1 K2_zfd")
    nfull = (MAXT * TS) // 8192
    for i in range(nfull):
        if i == 7: a(f"v_add_u32 v{vY}, 57344, v{vZ}")
        a(f"ds_write_b128 v{vZ if i < 7 else vY}, {ZR} offset:{L_T0 + i*8192 - (57344 if i >= 7 else 0)}")
    rem = MAXT * TS - nfull * 8192
    if nfull <= 7: a(f"v_add_u32 v{vY}, 57344, v{vZ}")
    masked(a, f"v_cmp_gt_u32 vcc, {rem//16}, v0", "K2_zf", lambda: a(f"ds_write_b128 v{vY}, {ZR} offset:{L_T0+nfull*8192-57344}"))
    masked(a, "v_cmp_gt_u32 vcc, 6, v0", "K2_cz", lambda: a(f"ds_write_b128 v{vZ}, {ZR}"))
    a.label("K2_zfd")
    a.clear_hist()
    a(f"v_mov_b32 v{vONE1}, 1")
    a(f"v_mov_b32 v{vK1}, 0x3f80")
    a(f"s_cmp_lg_u32 s{sSLOW}, 0")
    a("s_cbranch_scc1 K2_slowload")
    a("s_waitcnt vmcnt(0) lgkmcnt(0)")
    a.label("K2_z")
    a.clear_hist()
    a("s_barrier")
    a(f"v_lshlrev_b32 v{vX}, 4, v{vL}")
    a(f"v_add_u32 v{vX}, {L_QS}, v{vX}")
    a(f"s_lshl_b32 s3, s{sS}, 10")
    a(f"v_add_u32 v{vY}, s3, v{vX}")
    a(f"ds_read_b128 v[{vQ0}:{vQ0+3}], v{vX} offset:2048")
    a(f"ds_read_b128 v[{vST}:{vST+3}], v{vX} offset:3072")
    a(f"ds_read_b128 v[{vCQ}:{vCQ+3}], v{vY} offset:4096")
    a(f"ds_read_b128 v[{vID}:{vID+3}], v{vX}")
    a(f"ds_read_b128 v[{vID+4}:{vID+7}], v{vX} offset:1024")
    stamp(a, 2)
    stamp(a, 3)
    for r in (RS0, RS1):
        a(f"v_lshrrev_b32 v{r.eid}, 20, v{r.rec}")
        a(f"v_add_u32 v{r.eid}, v{r.eid}, v{vCB}")
    a.label("K2_sort")
    a.clear_hist()
    a(f"v_cmp_gt_u32 s[{sV0}:{sV0+1}], -2, v{RS0.rec}")
    a(f"v_cmp_gt_u32 s[{sV1}:{sV1+1}], -2, v{RS1.rec}")
    a(f"v_cmp_eq_u32 vcc, -2, v{RS1.rec}")
    a("s_cbranch_vccz K2_nomark")
    a(f"v_mov_b32 v{vX}, 0")
    a(f"v_mov_b32 v{vY}, 0x10000")
    a("s_mov_b64 exec, vcc")
    a(f"ds_add_u32 v{vX}, v{vY} offset:{L_CNT}")
    a("s_mov_b64 exec, -1")
    a.label("K2_nomark")
    a(f"s_mov_b64 exec, s[{sV0}:{sV0+1}]")
    a("s_cbranch_execz K2_p1a")
    phase1(a, RS0)
    a.label("K2_p1a")
    a(f"s_mov_b64 exec, s[{sV1}:{sV1+1}]")
    a("s_cbranch_execz K2_p1b")
    phase1(a, RS1)
    a.label("K2_p1b")
    a("s_mov_b64 exec, -1")
    a(f"s_cmp_lg_u32 s{sSLOW}, 0")
    a("s_cbranch_scc1 K2_nstg")
    a(f"v_lshlrev_b32 v{vX}, 4, v{vL}")
    a(f"s_mov_b32 m0, s{sSTD}")
    a("s_nop 0")
    a(f"buffer_load_dwordx4 v{vX}, {B(S_WS)}, s{sSTS} offen lds")
    a.label("K2_nstg")
    stamp(a, 12)
    a("s_waitcnt lgkmcnt(0)")
    a("s_barrier")
    stamp(a, 4)
    a(f"v_and_b32 v{vX}, 7, v0")
    a(f"v_lshlrev_b32 v{vX}, 2, v{vX}")
    a(f"ds_read_b32 v{vY}, v{vX} offset:{L_CNT}")
    a("s_waitcnt lgkmcnt(0)")
    a(f"v_add_u32 v{vT32}, 31, v{vY}")
    a(f"v_lshrrev_b32 v{vZ}, 5, v{vT32}")
    a(f"v_mov_b32 v{vT32}, v{vZ}")
    for sh in (1, 2, 4):
        a(f"v_add_u32_dpp v{vT32}, v{vT32}, v{vT32} row_shr:{sh} row_mask:0xf bank_mask:0xf bound_ctrl:0")
    a(f"v_readlane_b32 s{sNT}, v{vT32}, 4")
    a(f"v_sub_u32 v{vZ}, v{vT32}, v{vZ}")
    a(f"v_lshlrev_b32 v{vZ}, 5, v{vZ}")
    a(f"s_cmp_lg_u32 s{sSLOW}, 0")
    a("s_cbranch_scc1 K2_go")
    a(f"s_cmp_gt_u32 s{sNT}, {MAXT}")
    a("s_cbranch_scc1 K2_toslow")
    a.label("K2_go")
    a(f"ds_bpermute_b32 v{RS0.x}, v{RS0.g}, v{vZ}")
    a(f"ds_bpermute_b32 v{RS1.x}, v{RS1.g}, v{vZ}")
    a("s_waitcnt lgkmcnt(0)")
    a(f"s_mov_b64 exec, s[{sV0}:{sV0+1}]")
    a("s_cbranch_execz K2_p1c")
    phase1b(a, RS0)
    a.label("K2_p1c")
    a(f"s_mov_b64 exec, s[{sV1}:{sV1+1}]")
    a("s_cbranch_execz K2_p1d")
    phase1b(a, RS1)
    a.label("K2_p1d")
    a("s_mov_b64 exec, -1")
    a(f"s_mul_i32 s{sA}, s{sQ}, s{sNT}")
    a(f"s_add_u32 s{sB}, s{sA}, s{sNT}")
    a(f"s_lshr_b32 s{sA}, s{sA}, 2")
    a(f"s_lshr_b32 s{sB}, s{sB}, 2")
    a(f"s_cmp_lg_u32 s{sSLOW}, 0")
    a("s_cbranch_scc1 K2_slowaddr")
    a.label("K2_addr")
    a(f"s_mul_i32 s3, s{sA}, {TS}")
    a(f"v_add_u32 v{vLS}, s3, v{vLS}")
    a(f"v_add_u32 v{vLE}, s3, v{vLE}")
    a("s_waitcnt lgkmcnt(0)")
    a("s_barrier")
    stamp(a, 5)
    def first_dma(lbl):
        a(f"s_cmp_ge_u32 s{sA}, s{sB}")
        a(f"s_cbranch_scc1 {lbl}")
        a(f"ds_read2_b32 v[{vSN}:{vSN+1}], v{vLS} offset0:0 offset1:64")
        a(f"ds_read_b32 v{vSE}, v{vLE}")
        a("s_waitcnt lgkmcnt(0)")
        issue_dma(a)
    a(f"s_cmp_lg_u32 s{sCD}, 0")
    a("s_cbranch_scc1 K2_cdone")
    a(f"s_mov_b32 s{sCD}, 1")
    a(f"v_add_u32 v{vQ0}, s{sQB}, v{vQ0}")
    a(f"v_xor_b32 v{vQ1}, 32, v{vQ0}")
    a(f"v_add_u32 v{vEA}, s{sQB2}, v{vEA}")
    a(f"s_mul_i32 s72, s{sQ}, {8*MBROW}")
    a(f"v_add_u32 v{vFM}, s72, v{vFM}")
    a(f"s_lshl_b32 s72, s{sQ}, 10")
    a(f"v_add_u32 v{vFP}, s72, v{vFP}")
    a(f"s_bfe_u32 s72, s{sT}, 0x50003")
    a(f"s_lshl_b32 s72, s72, 4")
    a(f"s_add_u32 s72, s72, s{sW}")
    a(f"s_lshl_b32 s72, s72, 7")
    a(f"s_add_u32 s{sWHT}, s72, {WS_IMG + IMG_WH}")
    a.label("K2_cdone")
    a.clear_hist()
    a(f"s_cmp_ge_u32 s{sQ}, 2")
    a("s_cbranch_scc1 K2_late")
    first_dma("K2_noq0")
    a("s_waitcnt vmcnt(3)")
    a("s_branch K2_q0done")
    a.label("K2_late")
    a.clear_hist()
    a.label("K2_noq0")
    a.clear_hist()
    a("s_waitcnt vmcnt(0)")
    a.label("K2_q0done")
    a.clear_hist()
    a(f"s_mov_b32 s{sPD}, 1")
    stamp(a, 6)
    a(f"s_mov_b64 exec, s[{sV0}:{sV0+1}]")
    a("s_cbranch_execz K2_p2a")
    phase2(a, RS0)
    a.label("K2_p2a")
    a(f"s_mov_b64 exec, s[{sV1}:{sV1+1}]")
    a("s_cbranch_execz K2_p2b")
    phase2(a, RS1)
    a.label("K2_p2b")
    a("s_mov_b64 exec, -1")
    for g in range(4):
        a(f"v_readlane_b32 s{sTG+g+1}, v{vT32}, {g}")
    a(f"s_mov_b32 s{sTG}, 0")
    a(f"v_and_b32 v{vX}, 7, v0")
    a(f"v_lshlrev_b32 v{vX}, 2, v{vX}")
    a(f"ds_read_b32 v{vY}, v{vX} offset:{L_CNT}")
    a(f"s_mul_i32 s3, s{sA}, {TS}")
    a(f"v_add_u32 v{vSEL}, s3, v{vSEL}")
    a(f"v_add_u32 v{vST}, s3, v{vST}")
    a(f"s_mov_b32 s{sJ}, s{sA}")
    a(f"s_mov_b32 s{sHD}, 0")
    a("s_waitcnt lgkmcnt(0)")
    a(f"v_add_u32 v{vY}, -1, v{vY}")
    a(f"v_and_b32 v{vY}, 31, v{vY}")
    a(f"v_cmp_gt_u32 s[{sHM}:{sHM+1}], 16, v{vY}")
    a("s_waitcnt lgkmcnt(0)")
    stamp(a, 13)
    a("s_barrier")
    a(f"s_cmp_eq_u32 s{sSLOW}, 1")
    a("s_cbranch_scc1 K2_slowzero")
    a.label("K2_zdone")
    a.clear_hist()
    a(f"s_cmp_lt_u32 s{sQ}, 2")
    a("s_cbranch_scc1 K2_nolate")
    first_dma("K2_nolate")
    a.label("K2_nolate")
    a.clear_hist()
    a(f"v_add_u32 v{vLS}, {TS}, v{vLS}")
    a(f"v_add_u32 v{vLE}, {TS}, v{vLE}")
    a(f"v_and_b32 v{vX}, 63, v0")
    a(f"v_lshlrev_b32 v{vX}, 4, v{vX}")
    a(f"s_lshl_b32 s3, s{sS}, 10")
    a(f"s_add_u32 s3, s3, {L_PST + O_W4}")
    a(f"v_add_u32 v{vX}, s3, v{vX}")
    a(f"ds_read_b128 v[{vW4}:{vW4+3}], v{vX}")
    stamp(a, 7)
    if "tiles" in DBG:
        a("s_memtime s[74:75]")
        a("s_waitcnt lgkmcnt(0)")
        a(f"v_writelane_b32 v126, s74, 0")
    for g in range(5):
        main_group(a, g)
    a.label("K2_mainend")
    a.clear_hist()
    a("s_setprio 0")
    if "tiles" in DBG:
        a("s_memtime s[74:75]")
        a("s_waitcnt lgkmcnt(0)")
        a(f"v_writelane_b32 v126, s74, 15")
        a(f"s_cmp_ge_u32 s{sT}, 4")
        a("s_cbranch_scc1 K2_tdone")
        a("s_load_dwordx2 s[64:65], s[0:1], 80")
        a("s_waitcnt lgkmcnt(0)")
        a(f"s_add_u32 s64, s64, {0xB08000}")
        a("s_addc_u32 s65, s65, 0")
        a("s_mov_b32 s66, 8192")
        a("s_mov_b32 s67, 0x20000")
        a(f"v_and_b32 v{vX}, 63, v0")
        a(f"v_lshlrev_b32 v{vX}, 2, v{vX}")
        a(f"v_mov_b32 v{vY}, {OOB:#x}")
        a(f"v_cmp_gt_u32 vcc, 64, v{vX}")
        a(f"v_cndmask_b32 v{vX}, v{vY}, v{vX}, vcc")
        a(f"s_lshl_b32 s3, s{sT}, 10")
        a(f"s_lshl_b32 s72, s{sW}, 6")
        a(f"s_add_u32 s3, s3, s72")
        a(f"buffer_store_dword v126, v{vX}, s[64:67], s3 offen")
        a("s_waitcnt vmcnt(0)")
        a.label("K2_tdone")
    stamp(a, 8)
    a(f"s_cmp_eq_u32 s{sSLOW}, 0")
    a("s_cbranch_scc1 K2_epi")
    a(f"s_add_u32 s{sSLOW}, s{sSLOW}, 1")
    a(f"s_cmp_gt_u32 s{sSLOW}, {SLOW_NBLK}")
    a("s_cbranch_scc1 K2_slowend")
    a("s_waitcnt vmcnt(0) lgkmcnt(0)")
    a("s_barrier")
    a("s_branch K2_batch")
    a.label("K2_epi")
    a.clear_hist()
    epilogue(a)
    a.label("K2_end")
    a("s_endpgm")
    for g in range(5):
        L = f"K2_g{g}"
        a.label(f"{L}_last")
        a.clear_hist()
        if "nowht" not in DBG:
            a(f"v_mov_b32 v{vX}, 0")
            a("s_mov_b64 exec, 1")
            a(f"buffer_load_dword v3, v{vX}, {B(S_WS)}, s{sWHT} offen")
            a("s_mov_b64 exec, -1")
        a(f"s_cmp_ge_u32 s{sW}, 10")
        a(f"s_cbranch_scc1 {L}_nodma")
        a(f"s_mov_b32 m0, s{sQB}")
        a(f"s_mov_b32 s{sHD}, 1")
        a(f"buffer_load_dwordx4 v{vHO}, {B(S_H)}, s{sT10K} offen lds")
        a(f"s_branch {L}_nodma")
    slow_code(a)

def silu_part(a, r0, n):
    if "nosilu" in DBG: return
    for i in range(r0, r0 + n): a(f"v_exp_f32 v{vT+i}, -v{vD1+i}")
    for i in range(r0, r0 + n, 2): a(f"v_pk_add_f32 v[{vT+i}:{vT+i+1}], v[{vT+i}:{vT+i+1}], s[{sONE}:{sONE+1}]")
    for i in range(r0, r0 + n): a(f"v_rcp_f32 v{vT+i}, v{vT+i}")
    for i in range(r0, r0 + n, 2): a(f"v_pk_mul_f32 v[{vT+i}:{vT+i+1}], v[{vT+i}:{vT+i+1}], v[{vD1+i}:{vD1+i+1}]")
    for i in range(r0, r0 + n, 2): a(f"v_cvt_pk_bf16_f32 v{vM+i//2}, v{vT+i}, v{vT+i+1}")

def main_group(a, g):
    L = f"K2_g{g}"
    D1 = f"v[{vD1}:{vD1+15}]"; ACC = f"v[{vACC}:{vACC+15}]"
    a.label(L)
    a.clear_hist()
    a(f"s_min_u32 s{sEND}, s{sB}, s{sTG+g+1}")
    a(f"s_cmp_ge_u32 s{sJ}, s{sEND}")
    a(f"s_cbranch_scc1 {L}_done")
    if g: a(f"v_mad_u32_u24 v{vX}, v{vPBs}, {g}, v{vPBb}")
    a(f"ds_read_b128 v[{vPB}:{vPB+3}], v{vX if g else vPBb}")
    a(f"s_sub_u32 s{sHALF}, s{sTG+g+1}, 1")
    a(f"s_bitcmp1_b32 s{sHM}, {g}")
    a(f"s_cselect_b32 s{sHALF}, s{sHALF}, -1")
    a(f"s_mov_b32 s{sFIRST}, 1")
    a.label(f"{L}_loop")
    a.clear_hist()
    a(f"ds_read_b128 v[{vA+12}:{vA+15}], v{vSEL}")
    a("s_waitcnt vmcnt(0)")
    a(f"ds_read_b128 v[{vA+8}:{vA+11}], v{vEA}")
    a(f"ds_read_b128 v[{vA}:{vA+3}], v{vQ0}")
    a(f"ds_read_b128 v[{vA+4}:{vA+7}], v{vQ1}")
    for i in range(4):
        a(f"ds_read_b64_tr_b16 v[{vSB+2*i}:{vSB+2*i+1}], v{vST} offset:{512*i}")
    a(f"ds_read2_b32 v[{vSN}:{vSN+1}], v{vLS} offset0:0 offset1:64")
    a(f"ds_read_b32 v{vSE}, v{vLE}")
    if "nofair" not in DBG:
        a(f"s_sub_u32 s72, s{sB}, s{sJ}")
        a(f"s_cmp_ge_u32 s72, 4")
        a(f"s_cbranch_scc1 {L}_p3")
        a(f"s_cmp_ge_u32 s72, 3")
        a(f"s_cbranch_scc1 {L}_p2")
        a(f"s_cmp_ge_u32 s72, 2")
        a(f"s_cbranch_scc1 {L}_p1")
        a("s_setprio 0")
        a(f"s_branch {L}_pd")
        a.label(f"{L}_p1"); a("s_setprio 1"); a(f"s_branch {L}_pd")
        a.label(f"{L}_p2"); a("s_setprio 2"); a(f"s_branch {L}_pd")
        a.label(f"{L}_p3"); a("s_setprio 3")
        a.label(f"{L}_pd")
        a.clear_hist()
    a("s_waitcnt lgkmcnt(9)")
    a(f"v_mfma_f32_32x32x16_bf16 {D1}, v[{vA+12}:{vA+15}], v[{vPB}:{vPB+3}], 0")
    a("s_waitcnt lgkmcnt(8)")
    a(f"v_mfma_f32_32x32x16_bf16 {D1}, v[{vA+8}:{vA+11}], v[{vW4}:{vW4+3}], {D1}")
    a("s_waitcnt lgkmcnt(6)")
    a(f"v_mfma_f32_32x32x16_bf16 {D1}, v[{vA}:{vA+3}], v[{vID}:{vID+3}], {D1}")
    a(f"v_mfma_f32_32x32x16_bf16 {D1}, v[{vA+4}:{vA+7}], v[{vID+4}:{vID+7}], {D1}")
    a(f"s_add_u32 s72, s{sJ}, 1")
    for r in (vLS, vLE, vSEL, vST):
        a(f"v_add_u32 v{r}, {TS}, v{r}")
    if "dmalate" not in DBG:
        a("s_waitcnt lgkmcnt(0)")
        a(f"s_cmp_ge_u32 s72, s{sB}")
        if "nodma" in DBG: a(f"s_branch {L}_nodma")
        a(f"s_cbranch_scc1 {L}_last")
        issue_dma(a)
        a.label(f"{L}_nodma")
        a("s_nop 3")
    silu_part(a, 0, 8)
    a("s_waitcnt lgkmcnt(0)")
    a(f"s_cmp_eq_u32 s{sFIRST}, 0")
    a(f"s_cbranch_scc1 {L}_acc")
    a(f"v_mfma_f32_32x32x16_bf16 {ACC}, v[{vM}:{vM+3}], v[{vSB}:{vSB+3}], 0")
    a(f"s_mov_b32 s{sFIRST}, 0")
    a(f"s_branch {L}_acc2")
    a.label(f"{L}_acc")
    a(f"v_mfma_f32_32x32x16_bf16 {ACC}, v[{vM}:{vM+3}], v[{vSB}:{vSB+3}], {ACC}")
    a.label(f"{L}_acc2")
    if "dmalate" in DBG:
        a(f"s_cmp_ge_u32 s72, s{sB}")
        if "nodma" in DBG: a(f"s_branch {L}_nodma")
        a(f"s_cbranch_scc1 {L}_last")
        issue_dma(a)
        a.label(f"{L}_nodma")
    a.clear_hist()
    a(f"s_cmp_eq_u32 s{sJ}, s{sHALF}")
    a(f"s_cbranch_scc1 {L}_skip2")
    silu_part(a, 8, 8)
    a(f"v_mfma_f32_32x32x16_bf16 {ACC}, v[{vM+4}:{vM+7}], v[{vSB+4}:{vSB+7}], {ACC}")
    a.label(f"{L}_skip2")
    a(f"s_add_u32 s{sJ}, s{sJ}, 1")
    if "tiles" in DBG:
        a("s_memtime s[74:75]")
        a(f"s_sub_u32 s95, s{sJ}, s{sA}")
        a("s_waitcnt lgkmcnt(0)")
        a("s_mov_b32 m0, s95")
        a("s_nop 0")
        a(f"v_writelane_b32 v126, s74, m0")
    a(f"s_cmp_lt_u32 s{sJ}, s{sEND}")
    a(f"s_cbranch_scc1 {L}_loop")
    a.clear_hist()
    if "noflush" in DBG: a(f"s_branch {L}_done")
    a(f"v_and_b32 v{vX}, 16, v{vFP}")
    a(f"s_lshl_b32 s72, s{sS}, 7")
    a(f"s_add_u32 s72, s72, {L_WX}")
    a(f"v_add_u32 v{vX}, s72, v{vX}")
    for q4 in range(4):
        a(f"ds_read_b128 v[{vT+4*q4}:{vT+4*q4+3}], v{vX} offset:{q4*32}")
    a(f"s_cmp_lg_u32 s{sSLOW}, 0")
    a(f"s_cbranch_scc1 {L}_sflush")
    a("s_nop 7")
    for p in range(8):
        a(f"v_cvt_pk_bf16_f32 v{vM+p}, v{vACC+2*p}, v{vACC+2*p+1}")
    a("s_mov_b32 exec_lo, 0xff")
    a("s_mov_b32 exec_hi, 0xff")
    for gm in range(4):
        a(f"ds_write_b64 v{vFM}, v[{vM+2*gm}:{vM+2*gm+1}] offset:{g*8*MBROW + gm*16}")
    a("s_mov_b64 exec, -1")
    a("s_waitcnt lgkmcnt(4)")
    a(f"v_pk_mul_f32 v[{vSB}:{vSB+1}], v[{vACC}:{vACC+1}], v[{vT}:{vT+1}]")
    for i in range(2, 16, 2):
        a(f"v_pk_fma_f32 v[{vSB}:{vSB+1}], v[{vACC+i}:{vACC+i+1}], v[{vT+i}:{vT+i+1}], v[{vSB}:{vSB+1}]")
    a(f"v_add_f32 v{vSB}, v{vSB}, v{vSB+1}")
    a(f"ds_write_b32 v{vFP}, v{vSB} offset:{g*1024}")
    a(f"s_cmp_lg_u32 s{sS}, 0")
    a(f"s_cbranch_scc1 {L}_done")
    a(f"s_lshl_b32 s72, s{sQ}, 2")
    a(f"v_mov_b32 v{vX}, s72")
    a(f"v_mov_b32 v{vY}, {g+1}")
    a("s_mov_b64 exec, 1")
    a(f"ds_write_b32 v{vX}, v{vY} offset:{L_OWN + 4*g}")
    a("s_mov_b64 exec, -1")
    a.label(f"{L}_done")

def epilogue(a):
    D0 = f"v[{vACC}:{vACC+15}]"; D1 = "v[8:23]"
    vB = 56
    vAf = 88
    PH = 64
    a(f"v_and_b32 v4, 63, v0")
    a(f"s_mov_b32 s73, s{sT10K}")
    a(f"s_cmp_ge_u32 s{sW}, 10")
    a("s_cbranch_scc1 K2_eh")
    a(f"s_cmp_lg_u32 s{sHD}, 0")
    a("s_cbranch_scc1 K2_eh")
    a(f"s_mov_b32 m0, s{sQB}")
    a("s_nop 0")
    a(f"buffer_load_dwordx4 v{vHO}, {B(S_H)}, s73 offen lds")
    a.label("K2_eh")
    a.clear_hist()
    a("s_waitcnt vmcnt(0)")
    a(f"s_cmp_ge_u32 s{sQ}, 2")
    a("s_cbranch_scc1 K2_e0")
    a(f"v_lshlrev_b32 v5, 4, v4")
    a(f"s_lshl_b32 s3, s{sS}, 13")
    a(f"s_xor_b32 s72, s{sQ}, 1")
    a(f"s_lshl_b32 s72, s72, 15")
    a(f"s_add_u32 s3, s3, s72")
    a(f"s_add_u32 s3, s3, {WS_IMG + IMG_WH}")
    a(f"s_add_u32 s72, s3, 4096")
    for ks in range(8):
        so = "s3" if ks < 4 else "s72"
        a(f"buffer_load_dwordx4 v[{vB+4*ks}:{vB+4*ks+3}], v5, {B(S_WS)}, {so} offen offset:{(ks%4)*1024}")
    a.label("K2_e0")
    a.clear_hist()
    a(f"v_lshlrev_b32 v2, 4, v0")
    a(f"v_mov_b32 v3, {OOB:#x}")
    a("v_cmp_gt_u32 vcc, 640, v0")
    a("v_cndmask_b32 v2, v3, v2, vcc")
    a("v_subrev_u32 v7, 640, v0")
    a("v_lshlrev_b32 v6, 1, v7")
    a("v_cmp_gt_u32 vcc, 120, v7")
    a("v_cndmask_b32 v6, v3, v6, vcc")
    a(f"s_cmp_ge_u32 s{sW}, 12")
    a("s_cbranch_scc1 K2_e00")
    a(f"buffer_load_dwordx4 v[120:123], v2, {B(S_H)}, s73 offen")
    a(f"buffer_load_ushort v124, v6, {B(S_POS)}, s{sT240} offen")
    a.label("K2_e00")
    a.clear_hist()
    a("s_waitcnt lgkmcnt(0)")
    a("s_barrier")
    stamp(a, 9)
    a(f"s_cmp_ge_u32 s{sQ}, 2")
    a("s_cbranch_scc1 K2_e1")
    a("v_and_b32 v24, 31, v4")
    a("v_lshrrev_b32 v25, 5, v4")
    a(f"v_mul_u32_u24 v26, {4*PROW}, v25")
    a("v_lshl_add_u32 v26, v24, 2, v26")
    a(f"s_lshl_b32 s72, s{sS}, 7")
    a(f"s_add_u32 s3, s72, {L_T0}")
    a(f"s_cmp_eq_u32 s{sQ}, 1")
    a("s_cbranch_scc1 K2_ehp")
    a("v_add_u32 v26, s3, v26")
    a(f"v_mul_u32_u24 v27, {MBROW}, v24")
    a("v_lshl_add_u32 v27, v25, 4, v27")
    a(f"v_add_u32 v27, {L_MB}, v27")
    for ks in range(8):
        a(f"ds_read_b128 v[{vAf+4*ks}:{vAf+4*ks+3}], v27 offset:{ks*32}")
    a("s_waitcnt vmcnt(2) lgkmcnt(0)")
    for ks in range(8):
        c = "0" if ks == 0 else D0
        a(f"v_mfma_f32_32x32x16_bf16 {D0}, v[{vAf+4*ks}:{vAf+4*ks+3}], v[{vB+4*ks}:{vB+4*ks+3}], {c}")
    for ks in range(8):
        a(f"ds_read_b128 v[{vAf+4*ks}:{vAf+4*ks+3}], v27 offset:{32*MBROW + ks*32}")
    a("s_waitcnt lgkmcnt(0)")
    for ks in range(8):
        c = "0" if ks == 0 else D1
        a(f"v_mfma_f32_32x32x16_bf16 {D1}, v[{vAf+4*ks}:{vAf+4*ks+3}], v[{vB+4*ks}:{vB+4*ks+3}], {c}")
    for r in range(16):
        a(f"ds_write_b32 v26, v{vACC+r} offset:{(8*(r//4)+r%4)*PROW}")
    for r in range(16):
        a(f"ds_write_b32 v26, v{8+r} offset:{(32 + 8*(r//4)+r%4)*PROW}")
    a("s_branch K2_e1")
    a.label("K2_ehp")
    a.clear_hist()
    a(f"s_add_u32 s3, s3, {PH*PROW}")
    a("v_add_u32 v26, s3, v26")
    def haddr(mt, dst):
        if mt == 0: a("v_mov_b32 v28, v24")
        else:
            a("v_add_u32 v28, 32, v24")
            a("v_min_u32 v28, 39, v28")
        a("v_lshrrev_b32 v29, 2, v28")
        a(f"v_mul_u32_u24 v29, {QSW}, v29")
        a("v_and_b32 v30, 3, v28")
        a("v_lshl_add_u32 v29, v30, 8, v29")
        a("v_and_b32 v30, 15, v28")
        a("v_xor_b32 v30, v30, v25")
        a("v_lshl_add_u32 v29, v30, 4, v29")
        a(f"v_add_u32 v{dst}, {L_QS}, v29")
    haddr(0, 32)
    for ks in range(8):
        a(f"v_xor_b32 v30, {ks*32}, v32" if ks else "v_mov_b32 v30, v32")
        a(f"ds_read_b128 v[{vAf+4*ks}:{vAf+4*ks+3}], v30")
    haddr(1, 33)
    a("s_waitcnt vmcnt(2) lgkmcnt(0)")
    for ks in range(8):
        c = "0" if ks == 0 else D0
        a(f"v_mfma_f32_32x32x16_bf16 {D0}, v[{vAf+4*ks}:{vAf+4*ks+3}], v[{vB+4*ks}:{vB+4*ks+3}], {c}")
    for ks in range(8):
        a(f"v_xor_b32 v30, {ks*32}, v33" if ks else "v_mov_b32 v30, v33")
        a(f"ds_read_b128 v[{vAf+4*ks}:{vAf+4*ks+3}], v30")
    a("s_waitcnt lgkmcnt(0)")
    for ks in range(8):
        c = "0" if ks == 0 else D1
        a(f"v_mfma_f32_32x32x16_bf16 {D1}, v[{vAf+4*ks}:{vAf+4*ks+3}], v[{vB+4*ks}:{vB+4*ks+3}], {c}")
    for r in range(16):
        a(f"ds_write_b32 v26, v{vACC+r} offset:{(8*(r//4)+r%4)*PROW}")
    for r in range(4):
        a(f"ds_write_b32 v26, v{8+r} offset:{(32 + r)*PROW}")
    a.label("K2_e1")
    a.clear_hist()
    a("s_waitcnt lgkmcnt(0)")
    a("s_barrier")
    stamp(a, 10)
    a(f"s_cmp_ge_u32 s{sW}, 12")
    a("s_cbranch_scc1 K2_end")
    a(f"s_cmp_ge_u32 s{sW}, 10")
    a("s_cbranch_scc1 K2_e_pos")
    a(f"s_lshr_b32 s3, s{sW}, 1")
    a(f"s_lshl_b32 s72, s3, 2")
    a("v_mov_b32 v8, s72")
    a(f"ds_read2_b32 v[10:11], v8 offset0:{L_OWN//4} offset1:{L_OWN//4+1}")
    a(f"ds_read2_b32 v[12:13], v8 offset0:{L_OWN//4+2} offset1:{L_OWN//4+3}")
    a("v_lshrrev_b32 v5, 4, v0")
    a("v_and_b32 v5, 7, v5")
    a("v_and_b32 v6, 15, v0")
    a(f"v_mul_u32_u24 v5, {PROW}, v5")
    a("v_lshl_add_u32 v5, v6, 5, v5")
    a(f"s_mul_i32 s72, s3, {8*PROW}")
    a(f"s_add_u32 s72, s72, {L_T0}")
    a("v_add_u32 v5, s72, v5")
    a("v_lshrrev_b32 v14, 4, v0")
    a(f"v_mul_u32_u24 v14, {PROW}, v14")
    a("v_lshl_add_u32 v14, v6, 5, v14")
    a(f"v_add_u32 v14, {L_T0 + 64*PROW}, v14")
    a("ds_read_b128 v[56:59], v14")
    a("ds_read_b128 v[60:63], v14 offset:16")
    for r in range(8): a(f"v_mov_b32 v{40+r}, 0")
    a("s_add_u32 s3, s3, 1")
    a("s_waitcnt lgkmcnt(0)")
    for q in range(4):
        a(f"v_readfirstlane_b32 s72, v{10+q}")
        a(f"s_cmp_lg_u32 s72, s3")
        a(f"s_cbranch_scc1 K2_f{q}")
        a(f"ds_read_b128 v[48:51], v5 offset:{q*8*PROW}")
        a(f"ds_read_b128 v[52:55], v5 offset:{q*8*PROW+16}")
        a("s_waitcnt lgkmcnt(0)")
        for r in range(8): a(f"v_add_f32 v{40+r}, v{40+r}, v{48+r}")
        a.label(f"K2_f{q}")
        a.clear_hist()
    a("s_waitcnt vmcnt(0)")
    a(f"v_mov_b32 v48, s{sLN2}")
    a(f"v_mov_b32 v49, s{sLOG2E}")
    for r in range(8): a(f"v_fmac_f32 v{56+r}, v48, v{40+r}")
    for r in range(8): a(f"v_mul_f32 v{40+r}, v49, v{56+r}")
    for r in range(8): a(f"v_exp_f32 v{40+r}, -v{40+r}")
    for r in range(8): a(f"v_add_f32 v{40+r}, 1.0, v{40+r}")
    for r in range(8): a(f"v_rcp_f32 v{40+r}, v{40+r}")
    for r in range(8): a(f"v_mul_f32 v{40+r}, v{56+r}, v{40+r}")
    for p in range(4):
        a(f"v_lshlrev_b32 v{56+2*p}, 16, v{120+p}")
        a(f"v_and_b32 v{57+2*p}, 0xffff0000, v{120+p}")
    for r in range(8): a(f"v_add_f32 v{40+r}, v{40+r}, v{56+r}")
    for p in range(4): a(f"v_cvt_pk_bf16_f32 v{48+p}, v{40+2*p}, v{41+2*p}")
    a(f"buffer_store_dwordx4 v[48:51], v2, {B(S_OUT)}, s73 offen" + ("" if "nowtout" in DBG else " sc0 sc1"))
    if PROF:
        a("s_waitcnt vmcnt(0)")
        stamp(a, 11)
        prof_out(a)
    if "clk2" in DBG:
        a("s_waitcnt vmcnt(0) lgkmcnt(0)")
        a("s_memtime s[92:93]")
        a("s_memrealtime s[94:95]")
        a("s_load_dwordx2 s[64:65], s[0:1], 72")
        a("s_waitcnt lgkmcnt(0)")
        a("s_sub_u32 s92, s92, s96")
        a("s_sub_u32 s94, s94, s98")
        a("s_mov_b32 s66, 256")
        a("s_mov_b32 s67, 0x20000")
        a("v_mov_b32 v100, s92")
        a("v_mov_b32 v101, s94")
        a(f"s_lshl_b32 s62, s{sT}, 3")
        a("v_mov_b32 v102, 0x7fffff00")
        a("v_cmp_eq_u32 vcc, 0, v0")
        a("v_cndmask_b32 v103, v102, v0, vcc")
        a("buffer_store_dwordx2 v[100:101], v103, s[64:67], s62 offen")
        a("s_waitcnt vmcnt(0)")
    if "rt" in DBG: rt_end(a, 86, 64, 1, sT, 100, "")
    a("s_endpgm")
    a.label("K2_e_pos")
    a.clear_hist()
    a("v_cmp_gt_u32 vcc, 120, v7")
    a("s_and_saveexec_b64 s[76:77], vcc")
    a("s_cbranch_execz K2_end")
    a("v_mul_u32_u24 v8, 43691, v7")
    a("v_lshrrev_b32 v8, 17, v8")
    a("v_mul_u32_u24 v9, 3, v8")
    a("v_sub_u32 v9, v7, v9")
    a("v_lshrrev_b32 v10, 3, v8")
    a("v_and_b32 v11, 7, v8")
    a("v_add_u32 v9, 1, v9")
    a("v_lshl_add_u32 v9, v9, 3, v11")
    a("v_lshlrev_b32 v9, 5, v9")
    a("v_lshl_add_u32 v9, v10, 10, v9")
    a(f"v_add_u32 v9, {L_POSP}, v9")
    a("v_lshlrev_b32 v12, 2, v10")
    a("v_add_u32 v10, 1, v10")
    a("v_mov_b32 v13, 0")
    for q in range(4):
        a(f"ds_read_b32 v14, v12 offset:{L_OWN + 4*q}")
        a(f"ds_read_b128 v[16:19], v9 offset:{q*1024}")
        a(f"ds_read_b128 v[20:23], v9 offset:{q*1024+16}")
        a("s_waitcnt lgkmcnt(0)")
        a("v_add_f32 v16, v16, v17"); a("v_add_f32 v18, v18, v19")
        a("v_add_f32 v20, v20, v21"); a("v_add_f32 v22, v22, v23")
        a("v_add_f32 v16, v16, v18"); a("v_add_f32 v20, v20, v22")
        a("v_add_f32 v16, v16, v20")
        a("v_cmp_eq_u32 vcc, v14, v10")
        a("v_cndmask_b32 v16, 0, v16, vcc")
        a("v_add_f32 v13, v13, v16")
    a("s_waitcnt vmcnt(0)")
    a("v_lshlrev_b32 v124, 16, v124")
    a("v_add_f32 v13, v13, v124")
    a("v_cvt_pk_bf16_f32 v13, v13, v13")
    a(f"s_add_u32 s3, s{sT240}, {N*256}")
    a(f"buffer_store_short v13, v6, {B(S_OUT)}, s3 offen" + ("" if "nowtout" in DBG else " sc0 sc1"))
    a("s_endpgm")

def prof_out(a):
    a(f"s_cmp_ge_u32 s{sT}, 2")
    a("s_cbranch_scc1 K2_sto")
    a(f"s_mov_b32 s72, 0")
    a(f"s_cmp_eq_u32 s{sW}, 0")
    a("s_cbranch_scc1 K2_stog")
    a(f"s_mov_b32 s72, 64")
    a(f"s_cmp_lg_u32 s{sW}, 9")
    a("s_cbranch_scc1 K2_sto")
    a.label("K2_stog")
    a(f"v_writelane_b32 v{vPR}, s{sNT}, 14")
    a("s_load_dwordx2 s[64:65], s[0:1], 72")
    a("s_waitcnt lgkmcnt(0)")
    a("s_mov_b32 s66, 256")
    a("s_mov_b32 s67, 0x20000")
    a(f"v_and_b32 v{vX}, 63, v0")
    a(f"v_lshlrev_b32 v{vX}, 2, v{vX}")
    a(f"v_mov_b32 v3, {OOB:#x}")
    a(f"v_cmp_gt_u32 vcc, 64, v{vX}")
    a(f"v_cndmask_b32 v{vX}, v3, v{vX}, vcc")
    a(f"s_lshl_b32 s3, s{sT}, 7")
    a(f"s_add_u32 s3, s3, s72")
    a(f"buffer_store_dword v{vPR}, v{vX}, s[64:67], s3 offen")
    a("s_waitcnt vmcnt(0)")
    a.label("K2_sto")

def slow_code(a):
    a.label("K2_toslow")
    a.clear_hist()
    a(f"s_mov_b32 s{sSLOW}, 1")
    a("s_load_dwordx4 s[64:67], s[0:1], 24")
    a("s_waitcnt vmcnt(0) lgkmcnt(0)")
    srd(a, S_SRC, 64, 65, E * 4)
    srd(a, S_DST, 66, 67, E * 4)
    a("s_barrier")
    a("s_branch K2_batch")
    a.label("K2_slowzero")
    a.clear_hist()
    a(f"v_lshlrev_b32 v{vX}, 4, v0")
    a(f"v_add_u32 v{vX}, {L_MACC}, v{vX}")
    for r in range(4): a(f"v_mov_b32 v{vZR+r}, 0")
    a(f"ds_write_b128 v{vX}, v[{vZR}:{vZR+3}]")
    masked(a, f"v_cmp_gt_u32 vcc, {(40*MROW+640-16384)//16}, v0", "K2_sz", lambda: a(f"ds_write_b128 v{vX}, v[{vZR}:{vZR+3}] offset:16384"))
    a("s_waitcnt lgkmcnt(0)")
    a("s_barrier")
    a("s_branch K2_zdone")
    a.label("K2_slowload")
    a.clear_hist()
    a(f"s_sub_u32 s3, s{sSLOW}, 1")
    a(f"s_mul_i32 s3, s3, {SLOW_BLK}")
    a(f"v_add_u32 v{RS0.eid}, s3, v0")
    a(f"v_lshlrev_b32 v{vX}, 2, v{RS0.eid}")
    a(f"v_mov_b32 v{vY}, {OOB:#x}")
    a(f"v_cmp_gt_u32 vcc, {SLOW_BLK}, v0")
    a(f"v_cndmask_b32 v{vX}, v{vY}, v{vX}, vcc")
    a(f"buffer_load_dword v{RS0.dl}, v{vX}, {B(S_DST)}, 0 offen")
    a(f"buffer_load_dword v{RS0.so}, v{vX}, {B(S_SRC)}, 0 offen")
    a(f"s_mul_i32 s3, s{sT}, 40")
    a(f"v_mov_b32 v{RS1.rec}, -1")
    a("s_waitcnt vmcnt(0) lgkmcnt(0)")
    a("s_barrier")
    a(f"v_subrev_u32 v{RS0.dl}, s3, v{RS0.dl}")
    a(f"v_lshl_or_b32 v{RS0.rec}, v{RS0.dl}, 14, v{RS0.so}")
    a(f"v_cmp_gt_u32 s[78:79], 40, v{RS0.dl}")
    a(f"s_and_b64 s[78:79], s[78:79], vcc")
    a(f"v_cndmask_b32 v{RS0.rec}, -1, v{RS0.rec}, s[78:79]")
    a("s_branch K2_sort")
    a.label("K2_slowaddr")
    a.clear_hist()
    a(f"v_and_b32 v{vL}, 63, v0")
    lane_consts_run(a)
    a("s_branch K2_addr")
    for g in range(5):
        L = f"K2_g{g}"
        a.label(f"{L}_sflush")
        a.clear_hist()
        a("s_waitcnt lgkmcnt(0)")
        a("s_nop 7")
        a(f"v_pk_mul_f32 v[{vSB}:{vSB+1}], v[{vACC}:{vACC+1}], v[{vT}:{vT+1}]")
        for i in range(2, 16, 2):
            a(f"v_pk_fma_f32 v[{vSB}:{vSB+1}], v[{vACC+i}:{vACC+i+1}], v[{vT+i}:{vT+i+1}], v[{vSB}:{vSB+1}]")
        a(f"v_add_f32 v{vSB}, v{vSB}, v{vSB+1}")
        a(f"v_and_b32 v{vX}, 63, v0")
        a(f"v_and_b32 v{vY}, 7, v{vX}")
        a(f"v_bfe_u32 v{vZ}, v{vX}, 3, 2")
        a(f"v_lshlrev_b32 v{vZ}, 2, v{vZ}")
        a(f"v_lshl_add_u32 v{vZ}, v{vY}, 4, v{vZ}")
        a(f"v_add_u32 v{vZ}, {L_POSACC + g*128}, v{vZ}")
        a(f"ds_add_f32 v{vZ}, v{vSB}")
        a(f"v_mul_u32_u24 v{vY}, {MROW}, v{vY}")
        a(f"v_lshrrev_b32 v{vX}, 5, v{vX}")
        a(f"v_lshl_add_u32 v{vY}, v{vX}, 4, v{vY}")
        a(f"s_lshl_b32 s72, s{sS}, 7")
        a(f"s_add_u32 s72, s72, {L_MACC}")
        a(f"v_add_u32 v{vY}, s72, v{vY}")
        a("s_mov_b32 exec_lo, 0xff")
        a("s_mov_b32 exec_hi, 0xff")
        for r in range(16):
            a(f"ds_add_f32 v{vY}, v{vACC+r} offset:{g*8*MROW + (8*(r//4)+r%4)*4}")
        a("s_mov_b64 exec, -1")
        a(f"s_branch {L}_done")
    a.label("K2_slowend")
    a.clear_hist()
    a("s_waitcnt vmcnt(0) lgkmcnt(0)")
    a("s_barrier")
    a("v_lshrrev_b32 v8, 4, v0")
    a("v_min_u32 v8, 39, v8")
    a("v_and_b32 v9, 15, v0")
    a(f"v_mul_u32_u24 v10, {MROW}, v8")
    a("v_lshl_add_u32 v10, v9, 5, v10")
    a(f"v_add_u32 v10, {L_MACC}, v10")
    a("ds_read_b128 v[24:27], v10")
    a("ds_read_b128 v[28:31], v10 offset:16")
    a("v_subrev_u32 v7, 640, v0")
    a("v_mul_u32_u24 v11, 43691, v7")
    a("v_lshrrev_b32 v11, 17, v11")
    a("v_min_u32 v11, 39, v11")
    a("v_add_u32 v12, v11, v7")
    a("v_and_b32 v12, 0xff, v12")
    a("v_lshlrev_b32 v12, 2, v12")
    a(f"v_add_u32 v12, {L_POSACC+4}, v12")
    a("ds_read_b32 v32, v12")
    a("s_waitcnt lgkmcnt(0)")
    a("s_barrier")
    def wm():
        for p in range(4): a(f"v_cvt_pk_bf16_f32 v{24+p}, v{24+2*p}, v{25+2*p}")
        a(f"v_mul_u32_u24 v10, {MBROW}, v8")
        a("v_lshl_add_u32 v10, v9, 4, v10")
        a(f"v_add_u32 v10, {L_MB}, v10")
        a("ds_write_b128 v10, v[24:27]")
    masked(a, "v_cmp_gt_u32 vcc, 640, v0", "K2_se1", wm)
    def wp():
        a("v_mul_u32_u24 v13, 3, v11")
        a("v_sub_u32 v13, v7, v13")
        a("v_add_u32 v13, 1, v13")
        a("v_and_b32 v14, 7, v11")
        a("v_lshl_add_u32 v13, v13, 3, v14")
        a("v_lshlrev_b32 v13, 5, v13")
        a("v_lshrrev_b32 v14, 3, v11")
        a("v_lshl_add_u32 v13, v14, 10, v13")
        a(f"v_add_u32 v13, {L_POSP}, v13")
        for r in range(33, 40): a(f"v_mov_b32 v{r}, 0")
        a("ds_write_b128 v13, v[32:35]")
        a("ds_write_b128 v13, v[36:39] offset:16")
    masked(a, "v_cmp_gt_u32 vcc, 120, v7", "K2_se2", wp)
    def wo():
        a("v_add_u32 v13, 1, v0")
        a("v_cmp_gt_u32 vcc, 5, v0")
        a("v_cndmask_b32 v13, 0, v13, vcc")
        a("v_lshlrev_b32 v14, 2, v0")
        a(f"ds_write_b32 v14, v13 offset:{L_OWN}")
    masked(a, "v_cmp_gt_u32 vcc, 12, v0", "K2_se3", wo)
    a("s_branch K2_epi")

K2_KD = f"""
.amdhsa_kernel {KNAME}_kernel
  .amdhsa_next_free_vgpr 128
  .amdhsa_next_free_sgpr 102
  .amdhsa_accum_offset 128
  .amdhsa_group_segment_fixed_size 0
  .amdhsa_kernarg_size 88
  .amdhsa_user_sgpr_count 2
  .amdhsa_user_sgpr_kernarg_segment_ptr 1
  .amdhsa_system_sgpr_workgroup_id_x 1
.end_amdhsa_kernel
"""
```

```python
from asmlib import *
from consts import *

K1_GWG = 157
K1_IWG = 7
K1_PWG = 15
K1_GRID = 64 + K1_GWG + K1_IWG + K1_PWG
L_W = 0; L_H = 65536; L_O = L_H + 64 * 256
LP_W = 34816; LP_H = LP_W + 32768
K1_LDS = max(L_O + 2 * 64 * 272, LP_H + 128 * 256)
DBG1 = set()
WT = " sc0 sc1"

def srd(a, base, lo, hi, size, add=0):
    if add:
        a(f"s_add_u32 s{base}, s{lo}, {add}")
        a(f"s_addc_u32 s{base+1}, s{hi}, 0")
    else:
        a(f"s_mov_b32 s{base}, s{lo}")
        a(f"s_mov_b32 s{base+1}, s{hi}")
    a(f"s_mov_b32 s{base+2}, {size}")
    a(f"s_mov_b32 s{base+3}, 0x20000")

def g1(a, k):
    if "g1" not in DBG1: return
    a("s_memtime s[68:69]")
    a("s_waitcnt lgkmcnt(0)")
    a(f"s_mov_b32 s{70+k}, s68")
def g1out(a):
    if "g1" not in DBG1: return
    a("s_waitcnt vmcnt(0) lgkmcnt(0)")
    g1(a, 7)
    a("s_and_b32 s50, s3, 7")
    a("s_cmp_lg_u32 s50, 0")
    a("s_cbranch_scc1 K1_g1done")
    a("s_cmp_lg_u32 s2, 10")
    a("s_cbranch_scc1 K1_g1done")
    a("s_mov_b32 s51, 0")
    a("s_lshl_b32 s50, s3, 3")
    a("s_add_u32 s51, s51, s50")
    a("s_load_dwordx2 s[64:65], s[0:1], 72")
    a("s_waitcnt lgkmcnt(0)")
    a("s_mov_b32 s66, 256")
    a("s_mov_b32 s67, 0x20000")
    for k in range(8): a(f"v_writelane_b32 v104, s{70+k}, {k}")
    a("v_and_b32 v105, 63, v0")
    a("v_lshlrev_b32 v105, 2, v105")
    a("v_mov_b32 v106, 0x7fffff00")
    a("v_cmp_gt_u32 vcc, 32, v105")
    a("v_cndmask_b32 v105, v106, v105, vcc")
    a("buffer_store_dword v104, v105, s[64:67], s51 offen")
    a("s_waitcnt vmcnt(0)")
    a.label("K1_g1done")

def p_stage(a, pre):
    a("v_lshrrev_b32 v60, 6, v0")
    a("v_and_b32 v61, 63, v0")
    a("v_readfirstlane_b32 s52, v60")
    a("v_lshrrev_b32 v62, 4, v61")
    a("s_lshl_b32 s53, s52, 2")
    a("v_add_u32 v63, s53, v62")
    a("v_xor_b32 v64, v63, v61")
    a("v_and_b32 v64, 15, v64")
    a("v_lshlrev_b32 v63, 8, v63")
    a("v_lshl_add_u32 v63, v64, 4, v63")
    a("v_lshlrev_b32 v64, 2, v62")
    a("v_xor_b32 v64, v64, v61")
    a("v_and_b32 v64, 15, v64")
    a("v_lshlrev_b32 v65, 8, v62")
    a("v_lshl_add_u32 v65, v64, 4, v65")
    srd(a, 56, 48, 49, N * 256)
    srd(a, 44, 50, 51, 273 * 256)
    a("s_lshl_b32 s54, s2, 15")
    a("s_lshl_b32 s55, s52, 10")
    for i in range(2):
        a(f"s_add_u32 m0, s55, {LP_H + i*16384}")
        a(f"s_add_u32 s53, s54, {i*16384}")
        a("buffer_load_dwordx4 v63, s[56:59], s53 offen lds")
    a("s_lshl_b32 s55, s52, 11")
    for i in range(2):
        a(f"s_add_u32 s53, s55, {i*1024}")
        a(f"s_add_u32 m0, s53, {LP_W}")
        a("s_nop 0")
        a("buffer_load_dwordx4 v65, s[44:47], s53 offen lds")

def p_compute(a, younger):
    a("s_and_b32 s35, s52, 3")
    a("s_lshr_b32 s36, s52, 2")
    a("v_and_b32 v4, 31, v61")
    a("v_lshrrev_b32 v5, 5, v61")
    a("v_and_b32 v6, 15, v4")
    a("v_xor_b32 v6, v6, v5")
    a("v_lshlrev_b32 v6, 4, v6")
    a("v_lshl_add_u32 v6, v4, 8, v6")
    a("s_lshl_b32 s37, s36, 13")
    a(f"s_add_u32 s37, s37, {LP_H}")
    a("v_add_u32 v6, s37, v6")
    a("v_bfe_u32 v9, v61, 2, 2")
    a("v_bfe_u32 v10, v61, 4, 1")
    a("v_bfe_u32 v11, v61, 1, 1")
    a("v_lshl_add_u32 v10, v10, 1, v11")
    a("s_lshl_b32 s39, s35, 2")
    a("v_add_u32 v10, s39, v10")
    a("v_lshlrev_b32 v11, 2, v9")
    a("v_xor_b32 v10, v10, v11")
    a("v_lshl_add_u32 v9, v5, 3, v9")
    a("v_lshlrev_b32 v9, 8, v9")
    a("v_lshl_add_u32 v9, v10, 4, v9")
    a("v_and_b32 v10, 1, v61")
    a("v_lshl_add_u32 v9, v10, 3, v9")
    a(f"v_add_u32 v9, {LP_W}, v9")
    a("v_lshlrev_b32 v2, 4, v4")
    a("v_lshl_add_u32 v2, v5, 3, v2")
    a("s_lshl_b32 s38, s35, 9")
    a("v_add_u32 v2, s38, v2")
    srd(a, 44, 18, 19, P_BYTES, add=WS_P)
    a("s_lshl_b32 s42, s2, 4")
    a("s_lshl_b32 s43, s36, 2")
    a("s_add_u32 s42, s42, s43")
    a("s_lshl_b32 s42, s42, 11")
    a(f"s_mov_b32 s40, {f2u(LOG2E):#x}")
    a(f"s_waitcnt vmcnt({younger})")
    a("s_barrier")
    for ks in range(8):
        a(f"ds_read_b64_tr_b16 v[{48+4*ks}:{49+4*ks}], v9 offset:{ks*4096}")
        a(f"ds_read_b64_tr_b16 v[{50+4*ks}:{51+4*ks}], v9 offset:{ks*4096+1024}")
    for ks in range(8):
        a(f"v_xor_b32 v7, {ks*32}, v6" if ks else "v_mov_b32 v7, v6")
        a(f"ds_read_b128 v[{16+4*ks}:{19+4*ks}], v7")
    a("s_waitcnt lgkmcnt(0)")
    for ks in range(8):
        c = "0" if ks == 0 else "v[80:95]"
        a(f"v_mfma_f32_32x32x16_bf16 v[80:95], v[{16+4*ks}:{19+4*ks}], v[{48+4*ks}:{51+4*ks}], {c}")
    for r in range(16):
        a(f"v_mul_f32 v{80+r}, s40, v{80+r}")
    for p in range(8):
        a(f"v_cvt_pk_bf16_f32 v{96+p}, v{80+2*p}, v{81+2*p}")
    for g in range(4):
        a(f"s_add_u32 s43, s42, {g*2048}")
        a(f"buffer_store_dwordx2 v[{96+2*g}:{97+2*g}], v2, s[44:47], s43 offen" + WT)

def gen_k1(a):
    a.raw(".p2align 8")
    a.raw(".type egnn_prep_kernel,@function")
    a.label("egnn_prep_kernel")
    a(f"s_cmp_ge_u32 s2, {K1_GRID}")
    a("s_cbranch_scc1 K1_end")
    RT = "rt" in DBG1
    if RT:
        rt_begin(a, 60)
        a("s_mov_b32 s62, s2")
    def fin():
        if RT: rt_end(a, 60, 64, 0, 62, 104, "")
        a("s_endpgm")
    a("s_cmp_ge_u32 s2, 64")
    a("s_cbranch_scc1 K1_q")
    a("s_load_dwordx4 s[8:11], s[0:1], 24")
    a("s_load_dwordx2 s[18:19], s[0:1], 80")
    a("s_load_dwordx2 s[4:5], s[0:1], 8")
    a("s_load_dwordx2 s[48:49], s[0:1], 0")
    a("s_load_dwordx2 s[50:51], s[0:1], 40")
    a("v_lshlrev_b32 v1, 4, v0")
    a(f"s_mul_i32 s3, s2, {CH*4}")
    a("v_cmp_gt_u32 vcc, 625, v0")
    a("v_mov_b32 v12, -1"); a("v_mov_b32 v13, -1"); a("v_mov_b32 v14, -1"); a("v_mov_b32 v15, -1")
    a("v_lshlrev_b32 v2, 2, v0")
    a("v_mov_b32 v3, 0")
    a("s_waitcnt lgkmcnt(0)")
    srd(a, 24, 10, 11, E * 4)
    srd(a, 20, 8, 9, E * 4)
    a("s_and_saveexec_b64 s[32:33], vcc")
    a("s_cbranch_execz K1_b1")
    a("buffer_load_dwordx4 v[4:7], v1, s[24:27], s3 offen")
    a("buffer_load_dwordx4 v[8:11], v1, s[20:23], s3 offen")
    a.label("K1_b1")
    a("s_mov_b64 exec, s[32:33]")
    a("v_lshrrev_b32 v40, 6, v0")
    a("v_readfirstlane_b32 s38, v40")
    a("s_sub_u32 s39, s38, 10")
    a("s_cmp_ge_u32 s39, 2")
    a("s_cbranch_scc1 K1_np4")
    srd(a, 40, 4, 5, N * 6)
    a("s_lshl_b32 s44, s2, 1")
    a("s_add_u32 s44, s44, s39")
    a("s_lshl_b32 s44, s44, 6")
    a("v_and_b32 v40, 63, v0")
    a("v_add_u32 v40, s44, v40")
    a("v_mul_u32_u24 v41, 12, v40")
    a("buffer_load_dwordx3 v[44:46], v41, s[40:43], 0 offen")
    a.label("K1_np4")
    p_stage(a, "K1_")
    a("ds_write_b128 v1, v[12:15]")
    a("ds_write_b128 v1, v[12:15] offset:16384")
    a("v_cmp_gt_u32 vcc, 256, v0")
    a("s_and_saveexec_b64 s[34:35], vcc")
    a("s_cbranch_execz K1_b2")
    a("ds_write_b32 v2, v3 offset:32768")
    a.label("K1_b2")
    a("s_mov_b64 exec, s[34:35]")
    srd(a, 28, 18, 19, CELLS_BYTES)
    a("v_lshlrev_b32 v16, 22, v0")
    a("v_mov_b32 v17, 1")
    a("v_mov_b32 v36, 33788")
    a("s_waitcnt lgkmcnt(0)")
    a("s_barrier")
    a("s_cmp_ge_u32 s39, 2")
    a("s_cbranch_scc1 K1_np4b")
    srd(a, 40, 18, 19, POS4_BYTES, add=WS_POS4)
    a("s_waitcnt vmcnt(4)")
    a("v_mov_b32 v48, v44")
    a("v_and_b32 v49, 0xffff, v45")
    a("v_alignbit_b32 v50, v46, v45, 16")
    a("v_lshrrev_b32 v51, 16, v46")
    a("v_lshlrev_b32 v41, 4, v40")
    a("buffer_store_dwordx4 v[48:51], v41, s[40:43], 0 offen" + WT)
    a.label("K1_np4b")
    a("v_cmp_gt_u32 vcc, 625, v0")
    a("s_and_saveexec_b64 s[32:33], vcc")
    a("s_cbranch_execz K1_b3")
    a("s_waitcnt vmcnt(4)")
    for k in range(4):
        a(f"v_mul_u32_u24 v{20+k}, 52429, v{4+k}")
        a(f"v_lshrrev_b32 v{20+k}, 21, v{20+k}")
        a(f"v_lshlrev_b32 v{28+k}, 2, v{20+k}")
        a(f"ds_add_rtn_u32 v{24+k}, v{28+k}, v17 offset:32768")
    for k in range(4):
        a(f"v_mul_u32_u24 v{32+k}, 40, v{20+k}")
        a(f"v_sub_u32 v{32+k}, v{4+k}, v{32+k}")
        a(f"v_lshl_or_b32 v{8+k}, v{32+k}, 14, v{8+k}")
        if k: a(f"v_add_u32 v{32+k}, {k<<20}, v16")
        a(f"v_or_b32 v{8+k}, v{8+k}, v{32+k if k else 16}")
        a(f"v_lshlrev_b32 v{20+k}, 7, v{20+k}")
    a("s_waitcnt lgkmcnt(0)")
    for k in range(4):
        a(f"v_lshl_add_u32 v{20+k}, v{24+k}, 2, v{20+k}")
        a(f"v_cmp_gt_u32 vcc, 32, v{24+k}")
        a(f"v_cndmask_b32 v{20+k}, v36, v{20+k}, vcc")
        a(f"ds_write_b32 v{20+k}, v{8+k}")
    a.label("K1_b3")
    a("s_mov_b64 exec, s[32:33]")
    a("s_lshl_b32 s3, s2, 7")
    a("v_lshrrev_b32 v2, 3, v0")
    a("v_and_b32 v3, 7, v0")
    a("v_lshlrev_b32 v4, 2, v2")
    a("v_lshlrev_b32 v7, 13, v2")
    a("v_lshl_add_u32 v7, v3, 4, v7")
    a(f"v_add_u32 v16, {128*8192}, v7")
    a("v_cmp_eq_u32 s[36:37], 7, v3")
    a("v_mov_b32 v17, -2")
    a("s_waitcnt lgkmcnt(0)")
    a("s_barrier")
    a("ds_read_b128 v[8:11], v1")
    a("ds_read_b128 v[12:15], v1 offset:16384")
    a("ds_read_b32 v5, v4 offset:32768")
    a(f"ds_read_b32 v6, v4 offset:{32768+512}")
    a("s_waitcnt lgkmcnt(0)")
    a("v_cmp_lt_u32 vcc, 32, v5")
    a("s_and_b64 vcc, vcc, s[36:37]")
    a("v_cndmask_b32 v11, v11, v17, vcc")
    a("v_cmp_lt_u32 vcc, 32, v6")
    a("s_and_b64 vcc, vcc, s[36:37]")
    a("v_cndmask_b32 v15, v15, v17, vcc")
    a("buffer_store_dwordx4 v[8:11], v7, s[28:31], s3 offen" + WT)
    a("buffer_store_dwordx4 v[12:15], v16, s[28:31], s3 offen" + WT)
    p_compute(a, 2)
    fin()
    a.label("K1_q")
    a.clear_hist()
    a(f"s_cmp_ge_u32 s2, {64 + K1_GWG + K1_IWG}")
    a("s_cbranch_scc1 K1_ponly")
    a(f"s_cmp_ge_u32 s2, {64 + K1_GWG}")
    a("s_cbranch_scc1 K1_img")
    g1(a, 0)
    a("s_load_dwordx2 s[4:5], s[0:1], 0")
    a("s_load_dwordx2 s[12:13], s[0:1], 40")
    a("s_load_dwordx2 s[16:17], s[0:1], 56")
    a("s_load_dwordx2 s[18:19], s[0:1], 80")
    a("v_lshrrev_b32 v1, 6, v0")
    a("v_and_b32 v2, 63, v0")
    a("v_readfirstlane_b32 s3, v1")
    a("s_sub_u32 s2, s2, 64")
    a("v_lshrrev_b32 v4, 4, v2")
    a("s_lshl_b32 s33, s3, 2")
    a("v_add_u32 v5, s33, v4")
    a("v_xor_b32 v6, v5, v2")
    a("v_and_b32 v6, 15, v6")
    a("v_lshlrev_b32 v5, 8, v5")
    a("v_lshl_add_u32 v5, v6, 4, v5")
    a("v_lshlrev_b32 v6, 2, v4")
    a("v_xor_b32 v6, v6, v2")
    a("v_and_b32 v6, 15, v6")
    a("v_lshlrev_b32 v3, 8, v4")
    a("v_lshl_add_u32 v3, v6, 4, v3")
    a(f"s_lshl_b32 s34, s2, 14")
    a("s_lshl_b32 s35, s3, 10")
    a("s_lshl_b32 s36, s3, 11")
    a("s_waitcnt lgkmcnt(0)")
    g1(a, 1)
    srd(a, 24, 4, 5, N * 256)
    srd(a, 20, 12, 13, 273 * 256)
    a("s_mov_b32 s38, 32768")
    a(f"s_add_u32 m0, s35, {L_H}")
    a("s_nop 0")
    a("buffer_load_dwordx4 v5, s[24:27], s34 offen lds")
    srd(a, 28, 16, 17, 256 * 256)
    for i in range(2):
        a(f"s_add_u32 s37, s36, {i*1024}")
        a(f"s_add_u32 m0, s37, {L_W}")
        a("s_add_u32 s37, s37, s38")
        a("buffer_load_dwordx4 v3, s[20:23], s37 offen lds")
    for i in range(2):
        a(f"s_add_u32 s37, s36, {i*1024}")
        a(f"s_add_u32 m0, s37, {L_W + 32768}")
        a("s_nop 0")
        a("buffer_load_dwordx4 v3, s[28:31], s37 offen lds")
    a("s_and_b32 s35, s3, 3")
    a("s_bfe_u32 s36, s3, 0x10002")
    a("v_and_b32 v4, 31, v2")
    a("v_lshrrev_b32 v5, 5, v2")
    a("v_and_b32 v6, 15, v4")
    a("v_xor_b32 v6, v6, v5")
    a("v_lshlrev_b32 v6, 4, v6")
    a("v_lshl_add_u32 v6, v4, 8, v6")
    a("s_lshl_b32 s37, s36, 13")
    a(f"s_add_u32 s37, s37, {L_H}")
    a("v_add_u32 v6, s37, v6")
    a("v_bfe_u32 v9, v2, 2, 2")
    a("v_bfe_u32 v10, v2, 4, 1")
    a("v_bfe_u32 v11, v2, 1, 1")
    a("v_lshl_add_u32 v10, v10, 1, v11")
    a("s_lshl_b32 s39, s35, 2")
    a("v_add_u32 v10, s39, v10")
    a("v_lshlrev_b32 v11, 2, v9")
    a("v_xor_b32 v10, v10, v11")
    a("v_lshl_add_u32 v9, v5, 3, v9")
    a("v_lshlrev_b32 v9, 8, v9")
    a("v_lshl_add_u32 v9, v10, 4, v9")
    a("v_and_b32 v10, 1, v2")
    a("v_lshl_add_u32 v9, v10, 3, v9")
    a("s_lshl_b32 s39, s35, 6")
    a(f"s_mov_b32 s40, {f2u(LOG2E):#x}")
    g1(a, 2)
    a("s_waitcnt vmcnt(0)")
    g1(a, 3)
    a("s_barrier")
    g1(a, 4)
    a("s_lshr_b32 s41, s3, 3")
    a("s_lshl_b32 s37, s41, 15")
    a("v_add_u32 v9, s37, v9")
    a("s_cmp_eq_u32 s41, 1")
    a("s_cselect_b32 s40, 1.0, s40")
    for ks in range(8):
        a(f"ds_read_b64_tr_b16 v[{48+4*ks}:{49+4*ks}], v9 offset:{ks*4096}")
        a(f"ds_read_b64_tr_b16 v[{50+4*ks}:{51+4*ks}], v9 offset:{ks*4096+1024}")
    a("v_mul_u32_u24 v12, 272, v4")
    a("v_lshl_add_u32 v12, v5, 3, v12")
    a("s_mul_i32 s37, s36, %d" % (32 * 272))
    a("s_add_u32 s37, s37, s39")
    a(f"s_add_u32 s37, s37, {L_O}")
    a(f"s_mul_i32 s38, s41, {64*272}")
    a("s_add_u32 s37, s37, s38")
    a("v_add_u32 v12, s37, v12")
    for ks in range(8):
        a(f"v_xor_b32 v7, {ks*32}, v6" if ks else "v_mov_b32 v7, v6")
        a(f"ds_read_b128 v[{16+4*ks}:{19+4*ks}], v7")
    a("s_waitcnt lgkmcnt(0)")
    for ks in range(8):
        c = "0" if ks == 0 else "v[80:95]"
        a(f"v_mfma_f32_32x32x16_bf16 v[80:95], v[{48+4*ks}:{51+4*ks}], v[{16+4*ks}:{19+4*ks}], {c}")
    for r in range(16):
        a(f"v_mul_f32 v{80+r}, s40, v{80+r}")
    for p in range(8):
        a(f"v_cvt_pk_bf16_f32 v{96+p}, v{80+2*p}, v{81+2*p}")
    for g in range(4):
        a(f"ds_write_b64 v12, v[{96+2*g}:{97+2*g}] offset:{g*16}")
    a.label("K1_jd")
    a.clear_hist()
    g1(a, 5)
    a("v_lshrrev_b32 v4, 4, v0")
    a("v_and_b32 v5, 15, v0")
    a("v_mul_u32_u24 v6, 272, v4")
    a("v_lshl_add_u32 v6, v5, 4, v6")
    a(f"v_add_u32 v6, {L_O}, v6")
    a("v_lshlrev_b32 v7, 4, v0")
    srd(a, 20, 18, 19, Q_BYTES, add=WS_Q)
    srd(a, 28, 18, 19, R_BYTES, add=WS_R)
    a("s_add_u32 s35, s34, 256")
    a("s_waitcnt lgkmcnt(0)")
    a("s_barrier")
    g1(a, 6)
    a("ds_read_b128 v[16:19], v6")
    a(f"ds_read_b128 v[20:23], v6 offset:{64*272}")
    a("s_waitcnt lgkmcnt(1)")
    a("buffer_store_dwordx4 v[16:19], v7, s[20:23], s35 offen" + WT)
    a("s_waitcnt lgkmcnt(0)")
    a("buffer_store_dwordx4 v[20:23], v7, s[28:31], s34 offen" + WT)
    if "noeapf" not in DBG1:
        a("s_load_dwordx2 s[24:25], s[0:1], 16")
        a("s_waitcnt lgkmcnt(0)")
        a(f"s_mov_b32 s26, {E*32}")
        a("s_mov_b32 s27, 0x20000")
        a("v_lshlrev_b32 v24, 6, v0")
        a(f"s_mul_i32 s36, s2, {512*64}")
        a("s_cmp_ge_u32 s3, 8")
        a("s_cbranch_scc1 K1_nopf")
        a("buffer_load_dword v25, v24, s[24:27], s36 offen")
        a.label("K1_nopf")
        a.clear_hist()
    a("s_cmp_lg_u32 s2, 0")
    a("s_cbranch_scc1 K1_gend")
    a("v_cmp_gt_u32 vcc, 16, v0")
    a("s_and_saveexec_b64 s[32:33], vcc")
    a("s_cbranch_execz K1_gend")
    for r in range(4): a(f"v_mov_b32 v{28+r}, 0")
    a("buffer_store_dwordx4 v[28:31], v7, s[20:23], 0 offen" + WT)
    a.label("K1_gend")
    a.clear_hist()
    a("s_mov_b64 exec, -1")
    g1out(a)
    fin()
    a.label("K1_ponly")
    a.clear_hist()
    a("s_load_dwordx2 s[18:19], s[0:1], 80")
    a("s_load_dwordx2 s[48:49], s[0:1], 0")
    a("s_load_dwordx2 s[50:51], s[0:1], 40")
    a(f"s_sub_u32 s2, s2, {K1_GWG + K1_IWG}")
    a("s_waitcnt lgkmcnt(0)")
    p_stage(a, "K1o_")
    p_compute(a, 0)
    fin()
    a.label("K1_img")
    a.clear_hist()
    a("s_load_dwordx4 s[12:15], s[0:1], 40")
    a("s_load_dwordx2 s[16:17], s[0:1], 56")
    a("s_load_dwordx2 s[18:19], s[0:1], 80")
    a("v_lshrrev_b32 v1, 6, v0")
    a("v_and_b32 v2, 63, v0")
    a("v_readfirstlane_b32 s3, v1")
    a(f"s_sub_u32 s2, s2, {64 + K1_GWG}")
    a("s_lshl_b32 s33, s2, 4")
    a("s_add_u32 s33, s33, s3")
    a("s_add_u32 s62, s33, 300")
    def fin_img():
        if RT: rt_end(a, 60, 64, 0, 62, 104, "", anywave=True)
        a("s_endpgm")
    a("v_and_b32 v4, 31, v2")
    a("v_lshrrev_b32 v5, 5, v2")
    a("v_lshlrev_b32 v6, 11, v5")
    a("v_lshl_add_u32 v6, v4, 1, v6")
    a("v_lshlrev_b32 v3, 4, v2")
    a("s_waitcnt lgkmcnt(0)")
    srd(a, 28, 18, 19, IMG_BYTES, add=WS_IMG)
    srd(a, 20, 12, 13, 273 * 256)
    a("s_cmp_ge_u32 s33, 105")
    a("s_cbranch_scc1 K1_end")
    a("s_cmp_ge_u32 s33, 101")
    a("s_cbranch_scc1 K1_tab")
    a("s_cmp_ge_u32 s33, 100")
    a("s_cbranch_scc1 K1_wd")
    a("s_cmp_ge_u32 s33, 96")
    a("s_cbranch_scc1 K1_w4")
    a("s_cmp_ge_u32 s33, 64")
    a("s_cbranch_scc1 K1_end")
    a("s_cmp_lt_u32 s33, 32")
    a("s_cbranch_scc1 K1_end")
    srd(a, 24, 16, 17, 256 * 256)
    a("s_lshr_b32 s35, s33, 5")
    a("s_lshl_b32 s37, s35, 15")
    a.label("K1_wf")
    a.clear_hist()
    a("s_bfe_u32 s34, s33, 0x20003")
    a("s_and_b32 s35, s33, 7")
    a("s_lshl_b32 s35, s35, 12")
    a("s_lshl_b32 s34, s34, 6")
    a("s_add_u32 s34, s34, s35")
    a("s_add_u32 s34, s34, s37")
    a("s_lshl_b32 s36, s33, 10")
    for j in range(8):
        a(f"buffer_load_ushort v{16+j}, v6, s[24:27], s34 offen offset:{j*256}")
    a("s_waitcnt vmcnt(0)")
    for p in range(4):
        a(f"v_lshl_or_b32 v{24+p}, v{17+2*p}, 16, v{16+2*p}")
    a("buffer_store_dwordx4 v[24:27], v3, s[28:31], s36 offen" + WT)
    fin_img()
    a.label("K1_w4")
    a.clear_hist()
    a("s_sub_u32 s33, s33, 96")
    a("s_lshl_b32 s34, s33, 6")
    a(f"s_add_u32 s34, s34, {257*256}")
    a("s_lshl_b32 s36, s33, 10")
    a(f"s_add_u32 s36, s36, {IMG_W4}")
    for j in range(8):
        a(f"buffer_load_ushort v{16+j}, v6, s[20:23], s34 offen offset:{j*256}")
    a(f"s_mov_b32 s40, {f2u(LOG2E):#x}")
    a("s_waitcnt vmcnt(0)")
    for j in range(8):
        a(f"v_lshlrev_b32 v{16+j}, 16, v{16+j}")
        a(f"v_mul_f32 v{16+j}, s40, v{16+j}")
    for p in range(4):
        a(f"v_cvt_pk_bf16_f32 v{24+p}, v{16+2*p}, v{17+2*p}")
    a("buffer_store_dwordx4 v[24:27], v3, s[28:31], s36 offen" + WT)
    fin_img()
    a.label("K1_wd")
    a.clear_hist()
    srd(a, 24, 14, 15, 256)
    a("v_lshlrev_b32 v7, 1, v2")
    a(f"s_mov_b32 s34, {256*256}")
    a("buffer_load_ushort v16, v7, s[20:23], s34 offen")
    a("buffer_load_ushort v17, v7, s[20:23], s34 offen offset:128")
    a("buffer_load_ushort v18, v7, s[24:27], 0 offen")
    a("buffer_load_ushort v19, v7, s[24:27], 0 offen offset:128")
    a(f"s_mov_b32 s40, {f2u(LOG2E):#x}")
    a(f"s_mov_b32 s41, {f2u(LN2):#x}")
    a("v_lshlrev_b32 v8, 2, v2")
    for r in (25, 26, 27, 29, 30, 31): a(f"v_mov_b32 v{r}, 0")
    a("s_waitcnt vmcnt(0)")
    for k in range(2):
        d = 24 + 4 * k
        a(f"v_lshlrev_b32 v{16+k}, 16, v{16+k}")
        a(f"v_mul_f32 v{16+k}, s40, v{16+k}")
        a(f"v_cvt_pk_bf16_f32 v{20+k}, v{16+k}, v{16+k}")
        a(f"v_and_b32 v{22+k}, 0xffff0000, v{20+k}")
        a(f"v_sub_f32 v{22+k}, v{16+k}, v{22+k}")
        a(f"v_cvt_pk_bf16_f32 v{d}, v{16+k}, v{22+k}")
        a(f"v_lshlrev_b32 v{18+k}, 16, v{18+k}")
        a(f"v_mul_f32 v{18+k}, s41, v{18+k}")
    a(f"s_mov_b32 s34, {IMG_WD16}")
    a(f"s_mov_b32 s35, {IMG_WXF}")
    a("buffer_store_dwordx4 v[24:27], v3, s[28:31], s34 offen" + WT)
    a("buffer_store_dwordx4 v[28:31], v3, s[28:31], s34 offen offset:1024" + WT)
    a("buffer_store_dword v18, v8, s[28:31], s35 offen" + WT)
    a("buffer_store_dword v19, v8, s[28:31], s35 offen offset:256" + WT)
    fin_img()
    a.label("K1_tab")
    a.clear_hist()
    import gen_k2
    gen_k2.table_job(a, WT)
    fin_img()
    a.label("K1_end")
    a("s_endpgm")

K1_KD = f"""
.amdhsa_kernel egnn_prep_kernel
  .amdhsa_next_free_vgpr 112
  .amdhsa_next_free_sgpr 80
  .amdhsa_accum_offset 112
  .amdhsa_group_segment_fixed_size 0
  .amdhsa_kernarg_size 88
  .amdhsa_user_sgpr_count 2
  .amdhsa_user_sgpr_kernarg_segment_ptr 1
  .amdhsa_system_sgpr_workgroup_id_x 1
.end_amdhsa_kernel
"""
```

```python
from asmlib import *
from consts import *
from gen_k1 import srd

MAXT = 28
TS = 2560
O_D2 = 2048
L_CNT = 0
L_OWN = 32
L_WX = 128
L_PD = 640
L_T0 = 1024
L_QS = L_T0 + MAXT * TS
QSW = 3072
L_MB = L_QS + 16 * QSW
MBROW = 272
L_POSP = L_MB + 64 * MBROW
L_PST = L_POSP + 8192
O_WD = 10240; O_W4 = 12288
K2_LDS = L_PST + 16384
assert K2_LDS <= 163840, K2_LDS
assert L_POSP % 32 == 0 and L_QS % 256 == 0
L_MACC = L_MB; MROW = 528; L_POSACC = L_MACC + 40 * MROW
assert L_POSACC + 640 <= L_PST
PROW = 528
assert 104 * PROW <= MAXT * TS
OOB = 0x7FFFFF00
SLOW_BLK = 640
SLOW_NBLK = E // SLOW_BLK

S_WS, S_EA, S_OUT, S_H, S_SRC, S_DST = 8, 12, 16, 20, 24, 28
S_POS = 32
sW, sS, sQ, sT = 36, 37, 38, 39
sONE = 40
sSLOW, sQB, sWSQ, sT240 = 42, 43, 44, 45
sTG = 46
sNT = sTG + 5
sHM = 52
sA, sB, sJ, sEND, sFIRST, sHALF = 54, 55, 56, 57, 58, 59
sLN2, sLOG2E = 60, 61
sWSP4 = 62
sV0, sV1 = 80, 82
sQB1, sQB2 = 84, 85
sSTS, sSTD, sHD, sT10K, sCD, sWHT, sPD = 90, 91, 92, 93, 94, 89, 88
vEAO = 26
sSHA = 92
vQ1 = 1
vQ0, vEA, vEO, vSEL = 4, 5, 6, 7
vST, vLS, vLE, vPBs = 8, 9, 10, 11
vCQ, vPBb, vFM, vFP = 12, 13, 14, 15
vPB = 16
vSN, vSE = 20, 22
vX, vY, vZ = 23, 24, 25
vW4 = 28; vID = 32; vACC = 40; vD1 = 56
vA = 72; vT = 88; vM = 104; vSB = 112
vPR = 127

PROF = False
DBG = set()
def stamp(a, k):
    if not PROF: return
    a("s_memtime s[74:75]")
    a("s_waitcnt lgkmcnt(0)")
    a(f"v_writelane_b32 v{vPR}, s74, {k}")

def B(r): return f"s[{r}:{r+3}]"

def masked(a, cmp, label, body, sv=76):
    a(cmp)
    a(f"s_and_saveexec_b64 s[{sv}:{sv+1}], vcc")
    a(f"s_cbranch_execz {label}")
    body()
    a.label(label)
    a(f"s_mov_b64 exec, s[{sv}:{sv+1}]")

class RS:
    def __init__(self, base):
        self.rec = base; self.g = base + 1; self.dl = base + 2; self.so = base + 3
        self.rk = base + 4; self.tb = base + 5; self.e = base + 6; self.x = base + 7
        self.ps = base + 8; self.pd = base + 10; self.eid = base + 12
        self.c4 = base + 12
RS0, RS1 = RS(56), RS(72)
vCB, vONE1, vK1, vT32 = 100, 101, 3, 27
vZR = 88
vL = 124

def phase1(a, r):
    if "notouch" not in DBG:
        a(f"v_lshlrev_b32 v{r.tb}, 5, v{r.eid}")
        a(f"buffer_load_dword v126, v{r.tb}, {B(S_EA)}, 0 offen")
    a(f"v_and_b32 v{r.so}, 0x3fff, v{r.rec}")
    a(f"v_lshlrev_b32 v{r.x}, 3, v{r.so}")
    a(f"buffer_load_dwordx2 v[{r.ps}:{r.ps+1}], v{r.x}, {B(S_WS)}, s{sWSP4} offen")
    a(f"v_bfe_u32 v{r.dl}, v{r.rec}, 14, 6")
    a(f"v_lshrrev_b32 v{r.g}, 1, v{r.dl}")
    a(f"v_and_b32 v{r.g}, 28, v{r.g}")
    a(f"ds_add_rtn_u32 v{r.rk}, v{r.g}, v{vONE1} offset:{L_CNT}")
    a(f"v_lshlrev_b32 v{r.tb}, 3, v{r.dl}")
    a(f"ds_read_b64 v[{r.pd}:{r.pd+1}], v{r.tb} offset:{L_PD}")
    a(f"v_lshlrev_b32 v{r.so}, 8, v{r.so}")
    a(f"v_add_u32 v{r.so}, 256, v{r.so}")

def phase1b(a, r):
    a(f"v_add_u32 v{r.rk}, v{r.rk}, v{r.x}")
    a(f"v_lshrrev_b32 v{r.tb}, 5, v{r.rk}")
    a(f"v_mul_u32_u24 v{r.tb}, {TS}, v{r.tb}")
    a(f"v_and_b32 v{r.e}, 31, v{r.rk}")
    a(f"v_lshl_add_u32 v{r.x}, v{r.e}, 4, v{r.tb}")
    a(f"v_lshlrev_b32 v{r.eid}, 8, v{r.eid}")
    a(f"ds_write_b32 v{r.x}, v{r.so} offset:{L_T0+O_D2+4}")
    a(f"ds_write_b32 v{r.x}, v{r.eid} offset:{L_T0+O_D2+8}")

def phase2(a, r):
    t0, t1, t2 = vX, vY, vZ
    a(f"v_lshlrev_b32 v{t0}, 16, v{r.ps}")
    a(f"v_lshlrev_b32 v{t1}, 16, v{r.pd}")
    a(f"v_sub_f32 v{t0}, v{t1}, v{t0}")
    a(f"v_and_b32 v{r.ps}, 0xffff0000, v{r.ps}")
    a(f"v_and_b32 v{r.pd}, 0xffff0000, v{r.pd}")
    a(f"v_sub_f32 v{t1}, v{r.pd}, v{r.ps}")
    a(f"v_lshlrev_b32 v{r.ps+1}, 16, v{r.ps+1}")
    a(f"v_lshlrev_b32 v{r.pd+1}, 16, v{r.pd+1}")
    a(f"v_sub_f32 v{t2}, v{r.pd+1}, v{r.ps+1}")
    a(f"v_cvt_pk_bf16_f32 v{r.ps}, v{t0}, v{t1}")
    a(f"v_cvt_pk_bf16_f32 v{r.ps+1}, v{t2}, v{t2}")
    a(f"v_and_b32 v{t2}, 7, v{r.dl}")
    a(f"v_lshl_add_u32 v{r.rk}, v{r.e}, 6, v{r.tb}")
    a(f"v_lshl_add_u32 v{r.rk}, v{t2}, 1, v{r.rk}")
    a(f"ds_write_b16 v{r.rk}, v{vK1} offset:{L_T0}")
    a(f"ds_write_b16 v{r.rk}, v{r.ps} offset:{L_T0+16}")
    a(f"ds_write_b16_d16_hi v{r.rk}, v{r.ps} offset:{L_T0+32}")
    a(f"ds_write_b16 v{r.rk}, v{r.ps+1} offset:{L_T0+48}")
    a(f"v_lshlrev_b32 v{t0}, 16, v{r.ps}")
    a(f"v_and_b32 v{t1}, 0xffff0000, v{r.ps}")
    a(f"v_and_b32 v{t2}, 0xffff0000, v{r.ps+1}")
    a(f"v_mul_f32 v{t0}, v{t0}, v{t0}")
    a(f"v_fmac_f32 v{t0}, v{t1}, v{t1}")
    a(f"v_fmac_f32 v{t0}, v{t2}, v{t2}")
    a(f"v_cvt_pk_bf16_f32 v{t0}, v{t0}, v{t0}")
    a(f"ds_write_b32 v{r.x}, v{t0} offset:{L_T0+O_D2}")

def issue_q(a):
    if "noq" in DBG:
        a(f"v_and_b32 v{vSN}, 0x3f00, v{vSN}")
        a(f"v_and_b32 v{vSN+1}, 0x3f00, v{vSN+1}")
    a(f"v_add_u32 v{vSN}, v{vSN}, v{vCQ}")
    a(f"v_add_u32 v{vSN+1}, v{vSN+1}, v{vCQ}")
    a(f"s_mov_b32 m0, s{sQB}")
    a(f"v_lshrrev_b32 v{vSE}, 3, v{vSE}")
    a(f"buffer_load_dwordx4 v{vSN}, {B(S_WS)}, s{sWSQ} offen lds")
    a(f"s_mov_b32 m0, s{sQB1}")
    a(f"v_add_u32 v{vSE}, v{vSE}, v{vEO}")
    a(f"buffer_load_dwordx4 v{vSN+1}, {B(S_WS)}, s{sWSQ} offen lds")

def issue_ea(a, m0reg):
    a(f"s_mov_b32 m0, s{m0reg}")
    a(f"s_nop 0")
    a(f"buffer_load_dwordx4 v{vSE}, {B(S_EA)}, 0 offen lds")

def issue_dma(a):
    issue_q(a)
    issue_ea(a, sQB2)

def lane_consts_run(a):
    e, hh, f, t, u = 92, 93, 94, 95, 96
    a(f"v_and_b32 v{e}, 31, v{vL}")
    a(f"v_lshrrev_b32 v{hh}, 5, v{vL}")
    a(f"v_lshlrev_b32 v{t}, 6, v{e}")
    a(f"v_lshlrev_b32 v{u}, 4, v{e}")
    a(f"v_add_u32 v{u}, {O_D2}, v{u}")
    a(f"v_cmp_eq_u32 vcc, 0, v{hh}")
    a(f"v_cndmask_b32 v{t}, v{u}, v{t}, vcc")
    a(f"v_add_u32 v{vSEL}, {L_T0}, v{t}")
    a(f"v_bfe_u32 v{t}, v{vL}, 2, 2")
    a(f"v_lshlrev_b32 v{t}, 6, v{t}")
    a(f"v_lshl_add_u32 v{t}, v{hh}, 8, v{t}")
    a(f"v_and_b32 v{u}, 16, v{vL}")
    a(f"v_lshl_add_u32 v{t}, v{u}, 1, v{t}")
    a(f"v_and_b32 v{u}, 3, v{vL}")
    a(f"v_lshl_add_u32 v{t}, v{u}, 3, v{t}")
    a(f"v_add_u32 v{vST}, {L_T0}, v{t}")
    a(f"v_lshrrev_b32 v{t}, 2, v{vL}")
    a(f"v_lshlrev_b32 v{t}, 4, v{t}")
    a(f"v_add_u32 v{vLS}, {L_T0+O_D2+4}, v{t}")
    a(f"v_lshrrev_b32 v{t}, 1, v{vL}")
    a(f"v_lshlrev_b32 v{t}, 4, v{t}")
    a(f"v_add_u32 v{vLE}, {L_T0+O_D2+8}, v{t}")

def table_job(a, WT):
    L = 2
    e, hh, f, t, u = 16, 17, 18, 19, 20
    a("s_sub_u32 s33, s33, 101")
    a(f"v_and_b32 v{e}, 31, v{L}")
    a(f"v_lshrrev_b32 v{hh}, 5, v{L}")
    a(f"v_lshrrev_b32 v{t}, 4, v{L}")
    a(f"v_xor_b32 v{t}, v{t}, v{L}")
    a(f"v_and_b32 v{t}, 3, v{t}")
    a(f"v_lshlrev_b32 v{t}, 4, v{t}")
    a("s_lshl_b32 s34, s33, 6")
    a(f"v_add_u32 v24, s34, v{t}")
    a(f"v_lshlrev_b32 v{t}, 4, v{e}")
    a("s_lshl_b32 s34, s33, 9")
    a(f"s_add_u32 s34, s34, {L_PST}")
    a(f"v_add_u32 v{t}, s34, v{t}")
    a(f"v_add_u32 v{u}, {O_WD}, v{t}")
    a(f"v_cmp_eq_u32 vcc, 0, v{hh}")
    a(f"v_cndmask_b32 v25, v{u}, v{t}, vcc")
    a(f"v_and_b32 v{t}, 7, v{e}")
    a(f"v_mul_u32_u24 v{t}, {MBROW}, v{t}")
    a(f"v_lshl_add_u32 v{t}, v{hh}, 3, v{t}")
    a("s_lshl_b32 s34, s33, 6")
    a(f"s_add_u32 s34, s34, {L_MB}")
    a(f"v_add_u32 v26, s34, v{t}")
    a(f"v_lshlrev_b32 v{t}, 5, v{e}")
    a(f"v_lshl_add_u32 v{t}, v{hh}, 4, v{t}")
    a("s_lshl_b32 s34, s33, 2")
    a(f"s_add_u32 s34, s34, {L_POSP}")
    a(f"v_add_u32 v27, s34, v{t}")
    a("s_lshl_b32 s35, s33, 10")
    a(f"s_add_u32 s35, s35, {IMG_TAB + 4096}")
    a("buffer_store_dwordx4 v[24:27], v3, s[28:31], s35 offen" + WT)
    a("s_cmp_lg_u32 s33, 0")
    a("s_cbranch_scc1 K1_tabd")
    a(f"v_bfe_u32 v{f}, v{e}, 2, 2")
    a(f"v_xor_b32 v{t}, v{hh}, v{f}")
    a(f"v_lshlrev_b32 v{t}, 4, v{t}")
    a(f"v_lshl_add_u32 v28, v{e}, 6, v{t}")
    a(f"v_lshlrev_b32 v{t}, 4, v{hh}")
    a(f"v_lshl_add_u32 v29, v{e}, 5, v{t}")
    a(f"v_and_b32 v{u}, 1, v{L}")
    a(f"v_lshlrev_b32 v30, 4, v{u}")
    a(f"v_lshlrev_b32 v{t}, 6, v{e}")
    a(f"v_lshlrev_b32 v{u}, 4, v{e}")
    a(f"v_add_u32 v{u}, {O_D2}, v{u}")
    a(f"v_cndmask_b32 v{t}, v{u}, v{t}, vcc")
    a(f"v_add_u32 v31, {L_T0}, v{t}")
    a(f"v_bfe_u32 v{t}, v{L}, 2, 2")
    a(f"v_lshlrev_b32 v{t}, 6, v{t}")
    a(f"v_lshl_add_u32 v{t}, v{hh}, 8, v{t}")
    a(f"v_and_b32 v{u}, 16, v{L}")
    a(f"v_lshl_add_u32 v{t}, v{u}, 1, v{t}")
    a(f"v_and_b32 v{u}, 3, v{L}")
    a(f"v_lshl_add_u32 v{t}, v{u}, 3, v{t}")
    a(f"v_add_u32 v32, {L_T0}, v{t}")
    a(f"v_lshrrev_b32 v{t}, 2, v{L}")
    a(f"v_lshlrev_b32 v{t}, 4, v{t}")
    a(f"v_add_u32 v33, {L_T0+O_D2+4}, v{t}")
    a(f"v_lshrrev_b32 v{t}, 1, v{L}")
    a(f"v_lshlrev_b32 v{t}, 4, v{t}")
    a(f"v_add_u32 v34, {L_T0+O_D2+8}, v{t}")
    a(f"v_mov_b32 v{u}, 2048")
    a(f"v_cndmask_b32 v35, 0, v{u}, vcc")
    a(f"v_and_b32 v{t}, 15, v{e}")
    a(f"v_lshlrev_b32 v{u}, 3, v{hh}")
    a(f"v_sub_u32 v{t}, v{t}, v{u}")
    a(f"v_and_b32 v{u}, 1, v{t}")
    a(f"v_lshlrev_b32 v{u}, 4, v{u}")
    a(f"v_mov_b32 v{f}, 0x3f80")
    a(f"v_lshlrev_b32 v{u}, v{u}, v{f}")
    a(f"v_cmp_gt_u32 vcc, 8, v{t}")
    a(f"v_cndmask_b32 v{u}, 0, v{u}, vcc")
    a(f"v_bfe_u32 v{t}, v{t}, 1, 2")
    a(f"v_lshrrev_b32 v{f}, 4, v{e}")
    a(f"v_lshl_add_u32 v{t}, v{f}, 2, v{t}")
    for d in range(8):
        a(f"v_cmp_eq_u32 vcc, {d}, v{t}")
        a(f"v_cndmask_b32 v{36+d}, 0, v{u}, vcc")
    a(f"s_mov_b32 s35, {IMG_TAB}")
    a("buffer_store_dwordx4 v[36:39], v3, s[28:31], s35 offen" + WT)
    a("buffer_store_dwordx4 v[40:43], v3, s[28:31], s35 offen offset:1024" + WT)
    a("buffer_store_dwordx4 v[28:31], v3, s[28:31], s35 offen offset:2048" + WT)
    a("buffer_store_dwordx4 v[32:35], v3, s[28:31], s35 offen offset:3072" + WT)
    a.label("K1_tabd")
    a.clear_hist()

def gen_k2(a):
    a(f"s_cmp_ge_u32 s2, {T}")
    a("s_cbranch_scc1 K2_end")
    stamp(a, 0)
    if "pad" in DBG:
        for i in range(1024): a.raw("    s_mov_b32 s95, 0x12345678")
    if "rt" in DBG: rt_begin(a, 86)
    if "clk2" in DBG:
        a("s_memtime s[96:97]")
        a("s_memrealtime s[98:99]")
    a("s_load_dwordx2 s[4:5], s[0:1], 80")
    a("s_load_dwordx4 s[64:67], s[0:1], 0")
    a("s_load_dwordx2 s[68:69], s[0:1], 16")
    a("s_load_dwordx2 s[70:71], s[0:1], 64")
    a(f"s_mov_b32 s{sT}, s2")
    a(f"v_lshrrev_b32 v{vX}, 4, v0")
    a(f"v_lshlrev_b32 v{vY}, 6, v{vX}")
    a(f"v_lshl_add_u32 v{vY}, v0, 2, v{vY}")
    a(f"v_mul_u32_u24 v{vCB}, {CH}, v{vX}")
    a(f"v_lshrrev_b32 v{vX}, 6, v0")
    a(f"v_readfirstlane_b32 s{sW}, v{vX}")
    a(f"v_and_b32 v{vL}, 63, v0")
    a(f"s_lshl_b32 s3, s{sT}, 13")
    a(f"v_lshlrev_b32 v{vX}, 4, v{vL}")
    a(f"s_and_b32 s{sS}, s{sW}, 3")
    a(f"s_lshr_b32 s{sQ}, s{sW}, 2")
    a(f"s_mul_i32 s{sQB}, s{sW}, {QSW}")
    a(f"s_add_u32 s{sQB}, s{sQB}, {L_QS}")
    a(f"s_add_u32 s{sQB1}, s{sQB}, 1024")
    a(f"s_add_u32 s{sQB2}, s{sQB}, 2048")
    a(f"s_mul_i32 s63, s{sT}, 10240")
    a(f"s_add_u32 s63, s63, {WS_P}")
    a(f"s_cmp_ge_u32 s{sW}, 10")
    a(f"s_cselect_b32 s63, {WS_IMG + IMG_WD16 - 10240}, s63")
    a(f"s_lshl_b32 s72, s{sW}, 10")
    a(f"s_add_u32 s63, s63, s72")
    a(f"s_add_u32 s72, s72, {L_PST}")
    a(f"s_mul_i32 s{sT10K}, s{sT}, {40*256}")
    a("s_waitcnt lgkmcnt(0)")
    stamp(a, 1)
    srd(a, S_WS, 4, 5, WS_END)
    a(f"buffer_load_dword v{RS0.rec}, v{vY}, {B(S_WS)}, s3 offen")
    a(f"buffer_load_dword v{RS1.rec}, v{vY}, {B(S_WS)}, s3 offen offset:64")
    a(f"s_mov_b32 s{sWSP4}, {WS_POS4}")
    a(f"s_mov_b32 s{sSTS}, s63")
    a(f"s_mov_b32 s{sSTD}, s72")
    a(f"s_cmp_ge_u32 s{sW}, 10")
    a("s_cbranch_scc1 K2_nx")
    a(f"s_cmp_ge_u32 s{sW}, 8")
    a("s_cbranch_scc1 K2_x8")
    a(f"s_lshl_b32 s3, s{sW}, 10")
    a(f"s_add_u32 m0, s3, {L_QS}")
    a(f"s_add_u32 s3, s3, {WS_IMG + IMG_TAB}")
    a(f"buffer_load_dwordx4 v{vX}, {B(S_WS)}, s3 offen lds")
    a("s_branch K2_xh")
    a.label("K2_x8")
    a(f"s_cmp_eq_u32 s{sW}, 9")
    a("s_cbranch_scc1 K2_x9")
    a(f"s_mul_i32 s3, s{sT}, 320")
    a(f"s_add_u32 s3, s3, {WS_POS4}")
    a(f"s_mov_b32 m0, {L_PD}")
    a("s_mov_b64 exec, 0xfffff")
    a(f"buffer_load_dwordx4 v{vX}, {B(S_WS)}, s3 offen lds")
    a("s_mov_b64 exec, -1")
    a("s_branch K2_xh")
    a.label("K2_x9")
    a(f"s_mov_b32 s3, {WS_IMG + IMG_WXF}")
    a(f"s_mov_b32 m0, {L_WX}")
    a("s_mov_b32 exec_hi, 0")
    a(f"buffer_load_dwordx4 v{vX}, {B(S_WS)}, s3 offen lds")
    a("s_mov_b64 exec, -1")
    a.label("K2_xh")
    a.label("K2_nx")
    a.clear_hist()
    srd(a, S_EA, 68, 69, E * 32)
    srd(a, S_OUT, 70, 71, N * 262)
    srd(a, S_H, 64, 65, N * 256)
    srd(a, S_POS, 66, 67, N * 6)
    a(f"s_mov_b32 s{sONE}, 1.0")
    a(f"s_mov_b32 s{sONE+1}, 1.0")
    a(f"s_mov_b32 s{sSLOW}, 0")
    a(f"s_mov_b32 s{sCD}, 0")
    a(f"s_mov_b32 s{sWHT}, {WS_IMG}")
    a(f"s_mov_b32 s{sWSQ}, {WS_Q}")
    a(f"s_mul_i32 s{sT240}, s{sT}, 240")
    a(f"s_mov_b32 s{sLN2}, {f2u(LN2):#x}")
    a(f"s_mov_b32 s{sLOG2E}, {f2u(LOG2E):#x}")
    a.label("K2_batch")
    a.clear_hist()
    a(f"v_lshlrev_b32 v{vZ}, 4, v0")
    for r in range(4): a(f"v_mov_b32 v{vZR+r}, 0")
    ZR = f"v[{vZR}:{vZR+3}]"
    a(f"s_cmp_ge_u32 s{sW}, 8")
    a("s_cbranch_scc1 K2_zfd")
    nfull = (MAXT * TS) // 8192
    for i in range(nfull):
        if i == 7: a(f"v_add_u32 v{vY}, 57344, v{vZ}")
        a(f"ds_write_b128 v{vZ if i < 7 else vY}, {ZR} offset:{L_T0 + i*8192 - (57344 if i >= 7 else 0)}")
    rem = MAXT * TS - nfull * 8192
    if nfull <= 7: a(f"v_add_u32 v{vY}, 57344, v{vZ}")
    masked(a, f"v_cmp_gt_u32 vcc, {rem//16}, v0", "K2_zf", lambda: a(f"ds_write_b128 v{vY}, {ZR} offset:{L_T0+nfull*8192-57344}"))
    masked(a, "v_cmp_gt_u32 vcc, 6, v0", "K2_cz", lambda: a(f"ds_write_b128 v{vZ}, {ZR}"))
    a.label("K2_zfd")
    a.clear_hist()
    a(f"v_mov_b32 v{vONE1}, 1")
    a(f"v_mov_b32 v{vK1}, 0x3f80")
    a(f"s_cmp_lg_u32 s{sSLOW}, 0")
    a("s_cbranch_scc1 K2_slowload")
    a("s_waitcnt vmcnt(0) lgkmcnt(0)")
    a.label("K2_z")
    a.clear_hist()
    a("s_barrier")
    a(f"v_lshlrev_b32 v{vX}, 4, v{vL}")
    a(f"v_add_u32 v{vX}, {L_QS}, v{vX}")
    a(f"s_lshl_b32 s3, s{sS}, 10")
    a(f"v_add_u32 v{vY}, s3, v{vX}")
    a(f"ds_read_b128 v[{vQ0}:{vQ0+3}], v{vX} offset:2048")
    a(f"ds_read_b128 v[{vST}:{vST+3}], v{vX} offset:3072")
    a(f"ds_read_b128 v[{vCQ}:{vCQ+3}], v{vY} offset:4096")
    a(f"ds_read_b128 v[{vID}:{vID+3}], v{vX}")
    a(f"ds_read_b128 v[{vID+4}:{vID+7}], v{vX} offset:1024")
    stamp(a, 2)
    stamp(a, 3)
    for r in (RS0, RS1):
        a(f"v_lshrrev_b32 v{r.eid}, 20, v{r.rec}")
        a(f"v_add_u32 v{r.eid}, v{r.eid}, v{vCB}")
    a.label("K2_sort")
    a.clear_hist()
    a(f"v_cmp_gt_u32 s[{sV0}:{sV0+1}], -2, v{RS0.rec}")
    a(f"v_cmp_gt_u32 s[{sV1}:{sV1+1}], -2, v{RS1.rec}")
    a(f"v_cmp_eq_u32 vcc, -2, v{RS1.rec}")
    a("s_cbranch_vccz K2_nomark")
    a(f"v_mov_b32 v{vX}, 0")
    a(f"v_mov_b32 v{vY}, 0x10000")
    a("s_mov_b64 exec, vcc")
    a(f"ds_add_u32 v{vX}, v{vY} offset:{L_CNT}")
    a("s_mov_b64 exec, -1")
    a.label("K2_nomark")
    a(f"s_mov_b64 exec, s[{sV0}:{sV0+1}]")
    a("s_cbranch_execz K2_p1a")
    phase1(a, RS0)
    a.label("K2_p1a")
    a(f"s_mov_b64 exec, s[{sV1}:{sV1+1}]")
    a("s_cbranch_execz K2_p1b")
    phase1(a, RS1)
    a.label("K2_p1b")
    a("s_mov_b64 exec, -1")
    a(f"s_cmp_lg_u32 s{sSLOW}, 0")
    a("s_cbranch_scc1 K2_nstg")
    a(f"v_lshlrev_b32 v{vX}, 4, v{vL}")
    a(f"s_mov_b32 m0, s{sSTD}")
    a("s_nop 0")
    a(f"buffer_load_dwordx4 v{vX}, {B(S_WS)}, s{sSTS} offen lds")
    a.label("K2_nstg")
    stamp(a, 12)
    a("s_waitcnt lgkmcnt(0)")
    a("s_barrier")
    stamp(a, 4)
    a(f"v_and_b32 v{vX}, 7, v0")
    a(f"v_lshlrev_b32 v{vX}, 2, v{vX}")
    a(f"ds_read_b32 v{vY}, v{vX} offset:{L_CNT}")
    a("s_waitcnt lgkmcnt(0)")
    a(f"v_add_u32 v{vT32}, 31, v{vY}")
    a(f"v_lshrrev_b32 v{vZ}, 5, v{vT32}")
    a(f"v_mov_b32 v{vT32}, v{vZ}")
    for sh in (1, 2, 4):
        a(f"v_add_u32_dpp v{vT32}, v{vT32}, v{vT32} row_shr:{sh} row_mask:0xf bank_mask:0xf bound_ctrl:0")
    a(f"v_readlane_b32 s{sNT}, v{vT32}, 4")
    a(f"v_sub_u32 v{vZ}, v{vT32}, v{vZ}")
    a(f"v_lshlrev_b32 v{vZ}, 5, v{vZ}")
    a(f"s_cmp_lg_u32 s{sSLOW}, 0")
    a("s_cbranch_scc1 K2_go")
    a(f"s_cmp_gt_u32 s{sNT}, {MAXT}")
    a("s_cbranch_scc1 K2_toslow")
    a.label("K2_go")
    a(f"ds_bpermute_b32 v{RS0.x}, v{RS0.g}, v{vZ}")
    a(f"ds_bpermute_b32 v{RS1.x}, v{RS1.g}, v{vZ}")
    a("s_waitcnt lgkmcnt(0)")
    a(f"s_mov_b64 exec, s[{sV0}:{sV0+1}]")
    a("s_cbranch_execz K2_p1c")
    phase1b(a, RS0)
    a.label("K2_p1c")
    a(f"s_mov_b64 exec, s[{sV1}:{sV1+1}]")
    a("s_cbranch_execz K2_p1d")
    phase1b(a, RS1)
    a.label("K2_p1d")
    a("s_mov_b64 exec, -1")
    a(f"s_mul_i32 s{sA}, s{sQ}, s{sNT}")
    a(f"s_add_u32 s{sB}, s{sA}, s{sNT}")
    a(f"s_lshr_b32 s{sA}, s{sA}, 2")
    a(f"s_lshr_b32 s{sB}, s{sB}, 2")
    a(f"s_cmp_lg_u32 s{sSLOW}, 0")
    a("s_cbranch_scc1 K2_slowaddr")
    a.label("K2_addr")
    a(f"s_mul_i32 s3, s{sA}, {TS}")
    a(f"v_add_u32 v{vLS}, s3, v{vLS}")
    a(f"v_add_u32 v{vLE}, s3, v{vLE}")
    a("s_waitcnt lgkmcnt(0)")
    a("s_barrier")
    stamp(a, 5)
    a(f"s_cmp_lg_u32 s{sCD}, 0")
    a("s_cbranch_scc1 K2_cdone")
    a(f"s_mov_b32 s{sCD}, 1")
    a(f"v_add_u32 v{vQ0}, s{sQB}, v{vQ0}")
    a(f"v_xor_b32 v{vQ1}, 32, v{vQ0}")
    a(f"v_add_u32 v{vEA}, s{sQB2}, v{vEA}")
    a(f"s_mul_i32 s72, s{sQ}, {8*MBROW}")
    a(f"v_add_u32 v{vFM}, s72, v{vFM}")
    a(f"s_lshl_b32 s72, s{sQ}, 10")
    a(f"v_add_u32 v{vFP}, s72, v{vFP}")
    a(f"s_bfe_u32 s72, s{sT}, 0x50003")
    a(f"s_lshl_b32 s72, s72, 3")
    a(f"s_and_b32 s73, s{sW}, 7")
    a(f"s_add_u32 s72, s72, s73")
    a(f"s_lshl_b32 s72, s72, 7")
    a(f"s_add_u32 s{sWHT}, s72, {WS_IMG + IMG_WH + 32768}")
    a.label("K2_cdone")
    a.clear_hist()
    def first_dma(lbl):
        a(f"s_cmp_ge_u32 s{sA}, s{sB}")
        a(f"s_cbranch_scc1 {lbl}")
        a(f"ds_read2_b32 v[{vSN}:{vSN+1}], v{vLS} offset0:0 offset1:64")
        a(f"ds_read_b32 v{vSE}, v{vLE}")
        a("s_waitcnt lgkmcnt(0)")
        issue_dma(a)
    a(f"s_cmp_ge_u32 s{sQ}, 2")
    a("s_cbranch_scc1 K2_noq0")
    first_dma("K2_noq0")
    a("s_waitcnt vmcnt(3)")
    a("s_branch K2_q0done")
    a.label("K2_noq0")
    a.clear_hist()
    a("s_waitcnt vmcnt(0)")
    a.label("K2_q0done")
    a.clear_hist()
    stamp(a, 6)
    a(f"s_mov_b64 exec, s[{sV0}:{sV0+1}]")
    a("s_cbranch_execz K2_p2a")
    phase2(a, RS0)
    a.label("K2_p2a")
    a(f"s_mov_b64 exec, s[{sV1}:{sV1+1}]")
    a("s_cbranch_execz K2_p2b")
    phase2(a, RS1)
    a.label("K2_p2b")
    a("s_mov_b64 exec, -1")
    for g in range(4):
        a(f"v_readlane_b32 s{sTG+g+1}, v{vT32}, {g}")
    a(f"s_mov_b32 s{sTG}, 0")
    a(f"v_and_b32 v{vX}, 7, v0")
    a(f"v_lshlrev_b32 v{vX}, 2, v{vX}")
    a(f"ds_read_b32 v{vY}, v{vX} offset:{L_CNT}")
    a(f"s_mul_i32 s3, s{sA}, {TS}")
    a(f"v_add_u32 v{vSEL}, s3, v{vSEL}")
    a(f"v_add_u32 v{vST}, s3, v{vST}")
    a(f"s_mov_b32 s{sJ}, s{sA}")
    a("s_waitcnt lgkmcnt(0)")
    a(f"v_add_u32 v{vY}, -1, v{vY}")
    a(f"v_and_b32 v{vY}, 31, v{vY}")
    a(f"v_cmp_gt_u32 s[{sHM}:{sHM+1}], 16, v{vY}")
    a("s_waitcnt lgkmcnt(0)")
    stamp(a, 13)
    a("s_barrier")
    a(f"s_cmp_eq_u32 s{sSLOW}, 1")
    a("s_cbranch_scc1 K2_slowzero")
    a.label("K2_zdone")
    a.clear_hist()
    a(f"s_cmp_lt_u32 s{sQ}, 2")
    a("s_cbranch_scc1 K2_nolate")
    first_dma("K2_nolate")
    a.label("K2_nolate")
    a.clear_hist()
    a(f"v_add_u32 v{vLS}, {TS}, v{vLS}")
    a(f"v_add_u32 v{vLE}, {TS}, v{vLE}")
    a(f"v_and_b32 v{vX}, 63, v0")
    a(f"v_lshlrev_b32 v{vX}, 4, v{vX}")
    a(f"s_lshl_b32 s3, s{sS}, 10")
    a(f"s_add_u32 s3, s3, {L_PST + O_W4}")
    a(f"v_add_u32 v{vX}, s3, v{vX}")
    a(f"ds_read_b128 v[{vW4}:{vW4+3}], v{vX}")
    stamp(a, 7)
    if "tiles" in DBG:
        a("s_memtime s[74:75]")
        a("s_waitcnt lgkmcnt(0)")
        a(f"v_writelane_b32 v126, s74, 0")
    for g in range(5):
        main_group(a, g)
    a.label("K2_mainend")
    a.clear_hist()
    a("s_setprio 0")
    if "tiles" in DBG:
        a("s_memtime s[74:75]")
        a("s_waitcnt lgkmcnt(0)")
        a(f"v_writelane_b32 v126, s74, 15")
        a(f"s_cmp_ge_u32 s{sT}, 4")
        a("s_cbranch_scc1 K2_tdone")
        a("s_load_dwordx2 s[64:65], s[0:1], 80")
        a("s_waitcnt lgkmcnt(0)")
        a(f"s_add_u32 s64, s64, {0xB08000}")
        a("s_addc_u32 s65, s65, 0")
        a("s_mov_b32 s66, 8192")
        a("s_mov_b32 s67, 0x20000")
        a(f"v_and_b32 v{vX}, 63, v0")
        a(f"v_lshlrev_b32 v{vX}, 2, v{vX}")
        a(f"v_mov_b32 v{vY}, {OOB:#x}")
        a(f"v_cmp_gt_u32 vcc, 64, v{vX}")
        a(f"v_cndmask_b32 v{vX}, v{vY}, v{vX}, vcc")
        a(f"s_lshl_b32 s3, s{sT}, 10")
        a(f"s_lshl_b32 s72, s{sW}, 6")
        a(f"s_add_u32 s3, s3, s72")
        a(f"buffer_store_dword v126, v{vX}, s[64:67], s3 offen")
        a("s_waitcnt vmcnt(0)")
        a.label("K2_tdone")
    stamp(a, 8)
    a(f"s_cmp_eq_u32 s{sSLOW}, 0")
    a("s_cbranch_scc1 K2_epi")
    a(f"s_add_u32 s{sSLOW}, s{sSLOW}, 1")
    a(f"s_cmp_gt_u32 s{sSLOW}, {SLOW_NBLK}")
    a("s_cbranch_scc1 K2_slowend")
    a("s_waitcnt vmcnt(0) lgkmcnt(0)")
    a("s_barrier")
    a("s_branch K2_batch")
    a.label("K2_epi")
    a.clear_hist()
    epilogue(a)
    a.label("K2_end")
    a("s_endpgm")
    for g in range(5):
        L = f"K2_g{g}"
        a.label(f"{L}_last")
        a.clear_hist()
        if "nowht" not in DBG:
            a(f"v_mov_b32 v{vX}, 0")
            a("s_mov_b64 exec, 1")
            a(f"buffer_load_dword v3, v{vX}, {B(S_WS)}, s{sWHT} offen")
            a("s_mov_b64 exec, -1")
        a("s_nop 3")
        a(f"s_branch {L}_nodma")
    slow_code(a)

def silu_part(a, r0, n):
    if "nosilu" in DBG: return
    for i in range(r0, r0 + n): a(f"v_exp_f32 v{vT+i}, -v{vD1+i}")
    for i in range(r0, r0 + n, 2): a(f"v_pk_add_f32 v[{vT+i}:{vT+i+1}], v[{vT+i}:{vT+i+1}], s[{sONE}:{sONE+1}]")
    for i in range(r0, r0 + n): a(f"v_rcp_f32 v{vT+i}, v{vT+i}")
    for i in range(r0, r0 + n, 2): a(f"v_pk_mul_f32 v[{vT+i}:{vT+i+1}], v[{vT+i}:{vT+i+1}], v[{vD1+i}:{vD1+i+1}]")
    for i in range(r0, r0 + n, 2): a(f"v_cvt_pk_bf16_f32 v{vM+i//2}, v{vT+i}, v{vT+i+1}")

def main_group(a, g):
    L = f"K2_g{g}"
    D1 = f"v[{vD1}:{vD1+15}]"; ACC = f"v[{vACC}:{vACC+15}]"
    a.label(L)
    a.clear_hist()
    a(f"s_min_u32 s{sEND}, s{sB}, s{sTG+g+1}")
    a(f"s_cmp_ge_u32 s{sJ}, s{sEND}")
    a(f"s_cbranch_scc1 {L}_done")
    if g: a(f"v_mad_u32_u24 v{vX}, v{vPBs}, {g}, v{vPBb}")
    a(f"ds_read_b128 v[{vPB}:{vPB+3}], v{vX if g else vPBb}")
    a(f"s_sub_u32 s{sHALF}, s{sTG+g+1}, 1")
    a(f"s_bitcmp1_b32 s{sHM}, {g}")
    a(f"s_cselect_b32 s{sHALF}, s{sHALF}, -1")
    a(f"s_mov_b32 s{sFIRST}, 1")
    a.label(f"{L}_loop")
    a.clear_hist()
    a(f"ds_read_b128 v[{vA+12}:{vA+15}], v{vSEL}")
    a("s_waitcnt vmcnt(0)")
    a(f"ds_read_b128 v[{vA+8}:{vA+11}], v{vEA}")
    a(f"ds_read_b128 v[{vA}:{vA+3}], v{vQ0}")
    a(f"ds_read_b128 v[{vA+4}:{vA+7}], v{vQ1}")
    for i in range(4):
        a(f"ds_read_b64_tr_b16 v[{vSB+2*i}:{vSB+2*i+1}], v{vST} offset:{512*i}")
    a(f"ds_read2_b32 v[{vSN}:{vSN+1}], v{vLS} offset0:0 offset1:64")
    a(f"ds_read_b32 v{vSE}, v{vLE}")
    if "nofair" not in DBG:
        a(f"s_sub_u32 s72, s{sB}, s{sJ}")
        a(f"s_cmp_ge_u32 s72, 4")
        a(f"s_cbranch_scc1 {L}_p3")
        a(f"s_cmp_ge_u32 s72, 3")
        a(f"s_cbranch_scc1 {L}_p2")
        a(f"s_cmp_ge_u32 s72, 2")
        a(f"s_cbranch_scc1 {L}_p1")
        a("s_setprio 0")
        a(f"s_branch {L}_pd")
        a.label(f"{L}_p1"); a("s_setprio 1"); a(f"s_branch {L}_pd")
        a.label(f"{L}_p2"); a("s_setprio 2"); a(f"s_branch {L}_pd")
        a.label(f"{L}_p3"); a("s_setprio 3")
        a.label(f"{L}_pd")
        a.clear_hist()
    a("s_waitcnt lgkmcnt(9)")
    a(f"v_mfma_f32_32x32x16_bf16 {D1}, v[{vA+12}:{vA+15}], v[{vPB}:{vPB+3}], 0")
    a("s_waitcnt lgkmcnt(8)")
    a(f"v_mfma_f32_32x32x16_bf16 {D1}, v[{vA+8}:{vA+11}], v[{vW4}:{vW4+3}], {D1}")
    a("s_waitcnt lgkmcnt(6)")
    a(f"v_mfma_f32_32x32x16_bf16 {D1}, v[{vA}:{vA+3}], v[{vID}:{vID+3}], {D1}")
    a(f"v_mfma_f32_32x32x16_bf16 {D1}, v[{vA+4}:{vA+7}], v[{vID+4}:{vID+7}], {D1}")
    a(f"s_add_u32 s72, s{sJ}, 1")
    for r in (vLS, vLE, vSEL, vST):
        a(f"v_add_u32 v{r}, {TS}, v{r}")
    if "dmalate" not in DBG:
        a("s_waitcnt lgkmcnt(0)")
        a(f"s_cmp_ge_u32 s72, s{sB}")
        if "nodma" in DBG: a(f"s_branch {L}_nodma")
        a(f"s_cbranch_scc1 {L}_last")
        issue_dma(a)
        a.label(f"{L}_nodma")
        a("s_nop 3")
    silu_part(a, 0, 8)
    a("s_waitcnt lgkmcnt(0)")
    a(f"s_cmp_eq_u32 s{sFIRST}, 0")
    a(f"s_cbranch_scc1 {L}_acc")
    a(f"v_mfma_f32_32x32x16_bf16 {ACC}, v[{vM}:{vM+3}], v[{vSB}:{vSB+3}], 0")
    a(f"s_mov_b32 s{sFIRST}, 0")
    a(f"s_branch {L}_acc2")
    a.label(f"{L}_acc")
    a(f"v_mfma_f32_32x32x16_bf16 {ACC}, v[{vM}:{vM+3}], v[{vSB}:{vSB+3}], {ACC}")
    a.label(f"{L}_acc2")
    if "dmalate" in DBG:
        a(f"s_cmp_ge_u32 s72, s{sB}")
        if "nodma" in DBG: a(f"s_branch {L}_nodma")
        a(f"s_cbranch_scc1 {L}_last")
        issue_dma(a)
        a.label(f"{L}_nodma")
    a.clear_hist()
    a(f"s_cmp_eq_u32 s{sJ}, s{sHALF}")
    a(f"s_cbranch_scc1 {L}_skip2")
    silu_part(a, 8, 8)
    a(f"v_mfma_f32_32x32x16_bf16 {ACC}, v[{vM+4}:{vM+7}], v[{vSB+4}:{vSB+7}], {ACC}")
    a.label(f"{L}_skip2")
    a(f"s_add_u32 s{sJ}, s{sJ}, 1")
    if "tiles" in DBG:
        a("s_memtime s[74:75]")
        a(f"s_sub_u32 s95, s{sJ}, s{sA}")
        a("s_waitcnt lgkmcnt(0)")
        a("s_mov_b32 m0, s95")
        a("s_nop 0")
        a(f"v_writelane_b32 v126, s74, m0")
    a(f"s_cmp_lt_u32 s{sJ}, s{sEND}")
    a(f"s_cbranch_scc1 {L}_loop")
    a.clear_hist()
    if "noflush" in DBG: a(f"s_branch {L}_done")
    a(f"v_and_b32 v{vX}, 16, v{vFP}")
    a(f"s_lshl_b32 s72, s{sS}, 7")
    a(f"s_add_u32 s72, s72, {L_WX}")
    a(f"v_add_u32 v{vX}, s72, v{vX}")
    for q4 in range(4):
        a(f"ds_read_b128 v[{vT+4*q4}:{vT+4*q4+3}], v{vX} offset:{q4*32}")
    a(f"s_cmp_lg_u32 s{sSLOW}, 0")
    a(f"s_cbranch_scc1 {L}_sflush")
    a("s_nop 7")
    for p in range(8):
        a(f"v_cvt_pk_bf16_f32 v{vM+p}, v{vACC+2*p}, v{vACC+2*p+1}")
    a("s_mov_b32 exec_lo, 0xff")
    a("s_mov_b32 exec_hi, 0xff")
    for gm in range(4):
        a(f"ds_write_b64 v{vFM}, v[{vM+2*gm}:{vM+2*gm+1}] offset:{g*8*MBROW + gm*16}")
    a("s_mov_b64 exec, -1")
    a("s_waitcnt lgkmcnt(4)")
    a(f"v_pk_mul_f32 v[{vSB}:{vSB+1}], v[{vACC}:{vACC+1}], v[{vT}:{vT+1}]")
    for i in range(2, 16, 2):
        a(f"v_pk_fma_f32 v[{vSB}:{vSB+1}], v[{vACC+i}:{vACC+i+1}], v[{vT+i}:{vT+i+1}], v[{vSB}:{vSB+1}]")
    a(f"v_add_f32 v{vSB}, v{vSB}, v{vSB+1}")
    a(f"ds_write_b32 v{vFP}, v{vSB} offset:{g*1024}")
    a(f"s_cmp_lg_u32 s{sS}, 0")
    a(f"s_cbranch_scc1 {L}_done")
    a(f"s_lshl_b32 s72, s{sQ}, 2")
    a(f"v_mov_b32 v{vX}, s72")
    a(f"v_mov_b32 v{vY}, {g+1}")
    a("s_mov_b64 exec, 1")
    a(f"ds_write_b32 v{vX}, v{vY} offset:{L_OWN + 4*g}")
    a("s_mov_b64 exec, -1")
    a.label(f"{L}_done")

def epilogue(a):
    D0 = f"v[{vACC}:{vACC+15}]"
    vB = 56
    vAf = 88
    a(f"v_and_b32 v4, 63, v0")
    a(f"s_mov_b32 s73, s{sT10K}")
    a("s_waitcnt vmcnt(0)")
    a(f"s_bitcmp1_b32 s{sQ}, 0")
    a("s_cbranch_scc1 K2_e0")
    a(f"v_lshlrev_b32 v5, 4, v4")
    a(f"s_lshl_b32 s3, s{sS}, 13")
    a(f"s_add_u32 s3, s3, {WS_IMG + IMG_WH + 32768}")
    a(f"s_add_u32 s72, s3, 4096")
    for ks in range(8):
        so = "s3" if ks < 4 else "s72"
        a(f"buffer_load_dwordx4 v[{vB+4*ks}:{vB+4*ks+3}], v5, {B(S_WS)}, {so} offen offset:{(ks%4)*1024}")
    a.label("K2_e0")
    a.clear_hist()
    a(f"v_lshlrev_b32 v2, 4, v0")
    a(f"v_mov_b32 v3, {OOB:#x}")
    a("v_cmp_gt_u32 vcc, 640, v0")
    a("v_cndmask_b32 v2, v3, v2, vcc")
    a("v_subrev_u32 v7, 640, v0")
    a("v_lshlrev_b32 v6, 1, v7")
    a("v_cmp_gt_u32 vcc, 120, v7")
    a("v_cndmask_b32 v6, v3, v6, vcc")
    a(f"s_cmp_ge_u32 s{sW}, 12")
    a("s_cbranch_scc1 K2_e00")
    a(f"s_cmp_ge_u32 s{sW}, 10")
    a("s_cbranch_scc1 K2_e0p")
    a(f"buffer_load_dwordx4 v[120:123], v2, {B(S_H)}, s73 offen")
    a(f"s_add_u32 s72, s73, {WS_R}")
    a(f"buffer_load_dwordx4 v[16:19], v2, {B(S_WS)}, s72 offen")
    a("s_branch K2_e00")
    a.label("K2_e0p")
    a(f"buffer_load_ushort v124, v6, {B(S_POS)}, s{sT240} offen")
    a.label("K2_e00")
    a.clear_hist()
    a("s_waitcnt lgkmcnt(0)")
    a("s_barrier")
    stamp(a, 9)
    a(f"s_bitcmp1_b32 s{sQ}, 0")
    a("s_cbranch_scc1 K2_e1")
    a("v_and_b32 v24, 31, v4")
    a("v_lshrrev_b32 v25, 5, v4")
    a(f"s_lshr_b32 s72, s{sQ}, 1")
    a(f"v_mul_u32_u24 v27, {MBROW}, v24")
    a("v_lshl_add_u32 v27, v25, 4, v27")
    a(f"s_mul_i32 s3, s72, {32*MBROW}")
    a(f"s_add_u32 s3, s3, {L_MB}")
    a("v_add_u32 v27, s3, v27")
    for ks in range(8):
        a(f"ds_read_b128 v[{vAf+4*ks}:{vAf+4*ks+3}], v27 offset:{ks*32}")
    a(f"v_mul_u32_u24 v26, {4*PROW}, v25")
    a("v_lshl_add_u32 v26, v24, 2, v26")
    a(f"s_mul_i32 s3, s72, {32*PROW}")
    a(f"s_lshl_b32 s72, s{sS}, 7")
    a(f"s_add_u32 s3, s3, s72")
    a(f"s_add_u32 s3, s3, {L_T0}")
    a("v_add_u32 v26, s3, v26")
    a("s_waitcnt vmcnt(1) lgkmcnt(0)")
    for ks in range(8):
        c = "0" if ks == 0 else D0
        a(f"v_mfma_f32_32x32x16_bf16 {D0}, v[{vAf+4*ks}:{vAf+4*ks+3}], v[{vB+4*ks}:{vB+4*ks+3}], {c}")
    for r in range(16):
        a(f"ds_write_b32 v26, v{vACC+r} offset:{(8*(r//4)+r%4)*PROW}")
    a.label("K2_e1")
    a.clear_hist()
    a("s_waitcnt lgkmcnt(0)")
    a("s_barrier")
    stamp(a, 10)
    a(f"s_cmp_ge_u32 s{sW}, 12")
    a("s_cbranch_scc1 K2_end")
    a(f"s_cmp_ge_u32 s{sW}, 10")
    a("s_cbranch_scc1 K2_e_pos")
    a(f"s_lshr_b32 s3, s{sW}, 1")
    a(f"s_lshl_b32 s72, s3, 2")
    a("v_mov_b32 v8, s72")
    a(f"ds_read2_b32 v[10:11], v8 offset0:{L_OWN//4} offset1:{L_OWN//4+1}")
    a(f"ds_read2_b32 v[12:13], v8 offset0:{L_OWN//4+2} offset1:{L_OWN//4+3}")
    a("v_lshrrev_b32 v5, 4, v0")
    a("v_and_b32 v5, 7, v5")
    a("v_and_b32 v6, 15, v0")
    a(f"v_mul_u32_u24 v5, {PROW}, v5")
    a("v_lshl_add_u32 v5, v6, 5, v5")
    a(f"s_mul_i32 s72, s3, {8*PROW}")
    a(f"s_add_u32 s72, s72, {L_T0}")
    a("v_add_u32 v5, s72, v5")
    for r in range(8): a(f"v_mov_b32 v{40+r}, 0")
    a("s_add_u32 s3, s3, 1")
    a("s_waitcnt lgkmcnt(0)")
    for q in range(4):
        a(f"v_readfirstlane_b32 s72, v{10+q}")
        a(f"s_cmp_lg_u32 s72, s3")
        a(f"s_cbranch_scc1 K2_f{q}")
        a(f"ds_read_b128 v[48:51], v5 offset:{q*8*PROW}")
        a(f"ds_read_b128 v[52:55], v5 offset:{q*8*PROW+16}")
        a("s_waitcnt lgkmcnt(0)")
        for r in range(8): a(f"v_add_f32 v{40+r}, v{40+r}, v{48+r}")
        a.label(f"K2_f{q}")
        a.clear_hist()
    a("s_waitcnt vmcnt(0)")
    for p in range(4):
        a(f"v_lshlrev_b32 v{56+2*p}, 16, v{16+p}")
        a(f"v_and_b32 v{57+2*p}, 0xffff0000, v{16+p}")
    a(f"v_mov_b32 v48, s{sLN2}")
    a(f"v_mov_b32 v49, s{sLOG2E}")
    for r in range(8): a(f"v_fmac_f32 v{56+r}, v48, v{40+r}")
    for r in range(8): a(f"v_mul_f32 v{40+r}, v49, v{56+r}")
    for r in range(8): a(f"v_exp_f32 v{40+r}, -v{40+r}")
    for r in range(8): a(f"v_add_f32 v{40+r}, 1.0, v{40+r}")
    for r in range(8): a(f"v_rcp_f32 v{40+r}, v{40+r}")
    for r in range(8): a(f"v_mul_f32 v{40+r}, v{56+r}, v{40+r}")
    for p in range(4):
        a(f"v_lshlrev_b32 v{56+2*p}, 16, v{120+p}")
        a(f"v_and_b32 v{57+2*p}, 0xffff0000, v{120+p}")
    for r in range(8): a(f"v_add_f32 v{40+r}, v{40+r}, v{56+r}")
    for p in range(4): a(f"v_cvt_pk_bf16_f32 v{48+p}, v{40+2*p}, v{41+2*p}")
    a(f"buffer_store_dwordx4 v[48:51], v2, {B(S_OUT)}, s73 offen" + ("" if "nowtout" in DBG else " sc0 sc1"))
    if PROF:
        a("s_waitcnt vmcnt(0)")
        stamp(a, 11)
        prof_out(a)
    if "clk2" in DBG:
        a("s_waitcnt vmcnt(0) lgkmcnt(0)")
        a("s_memtime s[92:93]")
        a("s_memrealtime s[94:95]")
        a("s_load_dwordx2 s[64:65], s[0:1], 72")
        a("s_waitcnt lgkmcnt(0)")
        a("s_sub_u32 s92, s92, s96")
        a("s_sub_u32 s94, s94, s98")
        a("s_mov_b32 s66, 256")
        a("s_mov_b32 s67, 0x20000")
        a("v_mov_b32 v100, s92")
        a("v_mov_b32 v101, s94")
        a(f"s_lshl_b32 s62, s{sT}, 3")
        a("v_mov_b32 v102, 0x7fffff00")
        a("v_cmp_eq_u32 vcc, 0, v0")
        a("v_cndmask_b32 v103, v102, v0, vcc")
        a("buffer_store_dwordx2 v[100:101], v103, s[64:67], s62 offen")
        a("s_waitcnt vmcnt(0)")
    if "rt" in DBG: rt_end(a, 86, 64, 1, sT, 100, "")
    a("s_endpgm")
    a.label("K2_e_pos")
    a.clear_hist()
    a("v_cmp_gt_u32 vcc, 120, v7")
    a("s_and_saveexec_b64 s[76:77], vcc")
    a("s_cbranch_execz K2_end")
    a("v_mul_u32_u24 v8, 43691, v7")
    a("v_lshrrev_b32 v8, 17, v8")
    a("v_mul_u32_u24 v9, 3, v8")
    a("v_sub_u32 v9, v7, v9")
    a("v_lshrrev_b32 v10, 3, v8")
    a("v_and_b32 v11, 7, v8")
    a("v_add_u32 v9, 1, v9")
    a("v_lshl_add_u32 v9, v9, 3, v11")
    a("v_lshlrev_b32 v9, 5, v9")
    a("v_lshl_add_u32 v9, v10, 10, v9")
    a(f"v_add_u32 v9, {L_POSP}, v9")
    a("v_lshlrev_b32 v12, 2, v10")
    a("v_add_u32 v10, 1, v10")
    a("v_mov_b32 v13, 0")
    for q in range(4):
        a(f"ds_read_b32 v14, v12 offset:{L_OWN + 4*q}")
        a(f"ds_read_b128 v[16:19], v9 offset:{q*1024}")
        a(f"ds_read_b128 v[20:23], v9 offset:{q*1024+16}")
        a("s_waitcnt lgkmcnt(0)")
        a("v_add_f32 v16, v16, v17"); a("v_add_f32 v18, v18, v19")
        a("v_add_f32 v20, v20, v21"); a("v_add_f32 v22, v22, v23")
        a("v_add_f32 v16, v16, v18"); a("v_add_f32 v20, v20, v22")
        a("v_add_f32 v16, v16, v20")
        a("v_cmp_eq_u32 vcc, v14, v10")
        a("v_cndmask_b32 v16, 0, v16, vcc")
        a("v_add_f32 v13, v13, v16")
    a("s_waitcnt vmcnt(0)")
    a("v_lshlrev_b32 v124, 16, v124")
    a("v_add_f32 v13, v13, v124")
    a("v_cvt_pk_bf16_f32 v13, v13, v13")
    a(f"s_add_u32 s3, s{sT240}, {N*256}")
    a(f"buffer_store_short v13, v6, {B(S_OUT)}, s3 offen" + ("" if "nowtout" in DBG else " sc0 sc1"))
    a("s_endpgm")

def prof_out(a):
    a(f"s_cmp_ge_u32 s{sT}, 2")
    a("s_cbranch_scc1 K2_sto")
    a(f"s_mov_b32 s72, 0")
    a(f"s_cmp_eq_u32 s{sW}, 0")
    a("s_cbranch_scc1 K2_stog")
    a(f"s_mov_b32 s72, 64")
    a(f"s_cmp_lg_u32 s{sW}, 9")
    a("s_cbranch_scc1 K2_sto")
    a.label("K2_stog")
    a(f"v_writelane_b32 v{vPR}, s{sNT}, 14")
    a("s_load_dwordx2 s[64:65], s[0:1], 72")
    a("s_waitcnt lgkmcnt(0)")
    a("s_mov_b32 s66, 256")
    a("s_mov_b32 s67, 0x20000")
    a(f"v_and_b32 v{vX}, 63, v0")
    a(f"v_lshlrev_b32 v{vX}, 2, v{vX}")
    a(f"v_mov_b32 v3, {OOB:#x}")
    a(f"v_cmp_gt_u32 vcc, 64, v{vX}")
    a(f"v_cndmask_b32 v{vX}, v3, v{vX}, vcc")
    a(f"s_lshl_b32 s3, s{sT}, 7")
    a(f"s_add_u32 s3, s3, s72")
    a(f"buffer_store_dword v{vPR}, v{vX}, s[64:67], s3 offen")
    a("s_waitcnt vmcnt(0)")
    a.label("K2_sto")

def slow_code(a):
    a.label("K2_toslow")
    a.clear_hist()
    a(f"s_mov_b32 s{sSLOW}, 1")
    a("s_load_dwordx4 s[64:67], s[0:1], 24")
    a("s_waitcnt vmcnt(0) lgkmcnt(0)")
    srd(a, S_SRC, 64, 65, E * 4)
    srd(a, S_DST, 66, 67, E * 4)
    a("s_barrier")
    a("s_branch K2_batch")
    a.label("K2_slowzero")
    a.clear_hist()
    a(f"v_lshlrev_b32 v{vX}, 4, v0")
    a(f"v_add_u32 v{vX}, {L_MACC}, v{vX}")
    for r in range(4): a(f"v_mov_b32 v{vZR+r}, 0")
    a(f"ds_write_b128 v{vX}, v[{vZR}:{vZR+3}]")
    masked(a, f"v_cmp_gt_u32 vcc, {(40*MROW+640-16384)//16}, v0", "K2_sz", lambda: a(f"ds_write_b128 v{vX}, v[{vZR}:{vZR+3}] offset:16384"))
    a("s_waitcnt lgkmcnt(0)")
    a("s_barrier")
    a("s_branch K2_zdone")
    a.label("K2_slowload")
    a.clear_hist()
    a(f"s_sub_u32 s3, s{sSLOW}, 1")
    a(f"s_mul_i32 s3, s3, {SLOW_BLK}")
    a(f"v_add_u32 v{RS0.eid}, s3, v0")
    a(f"v_lshlrev_b32 v{vX}, 2, v{RS0.eid}")
    a(f"v_mov_b32 v{vY}, {OOB:#x}")
    a(f"v_cmp_gt_u32 vcc, {SLOW_BLK}, v0")
    a(f"v_cndmask_b32 v{vX}, v{vY}, v{vX}, vcc")
    a(f"buffer_load_dword v{RS0.dl}, v{vX}, {B(S_DST)}, 0 offen")
    a(f"buffer_load_dword v{RS0.so}, v{vX}, {B(S_SRC)}, 0 offen")
    a(f"s_mul_i32 s3, s{sT}, 40")
    a(f"v_mov_b32 v{RS1.rec}, -1")
    a("s_waitcnt vmcnt(0) lgkmcnt(0)")
    a("s_barrier")
    a(f"v_subrev_u32 v{RS0.dl}, s3, v{RS0.dl}")
    a(f"v_lshl_or_b32 v{RS0.rec}, v{RS0.dl}, 14, v{RS0.so}")
    a(f"v_cmp_gt_u32 s[78:79], 40, v{RS0.dl}")
    a(f"s_and_b64 s[78:79], s[78:79], vcc")
    a(f"v_cndmask_b32 v{RS0.rec}, -1, v{RS0.rec}, s[78:79]")
    a("s_branch K2_sort")
    a.label("K2_slowaddr")
    a.clear_hist()
    a(f"v_and_b32 v{vL}, 63, v0")
    lane_consts_run(a)
    a("s_branch K2_addr")
    for g in range(5):
        L = f"K2_g{g}"
        a.label(f"{L}_sflush")
        a.clear_hist()
        a("s_waitcnt lgkmcnt(0)")
        a("s_nop 7")
        a(f"v_pk_mul_f32 v[{vSB}:{vSB+1}], v[{vACC}:{vACC+1}], v[{vT}:{vT+1}]")
        for i in range(2, 16, 2):
            a(f"v_pk_fma_f32 v[{vSB}:{vSB+1}], v[{vACC+i}:{vACC+i+1}], v[{vT+i}:{vT+i+1}], v[{vSB}:{vSB+1}]")
        a(f"v_add_f32 v{vSB}, v{vSB}, v{vSB+1}")
        a(f"v_and_b32 v{vX}, 63, v0")
        a(f"v_and_b32 v{vY}, 7, v{vX}")
        a(f"v_bfe_u32 v{vZ}, v{vX}, 3, 2")
        a(f"v_lshlrev_b32 v{vZ}, 2, v{vZ}")
        a(f"v_lshl_add_u32 v{vZ}, v{vY}, 4, v{vZ}")
        a(f"v_add_u32 v{vZ}, {L_POSACC + g*128}, v{vZ}")
        a(f"ds_add_f32 v{vZ}, v{vSB}")
        a(f"v_mul_u32_u24 v{vY}, {MROW}, v{vY}")
        a(f"v_lshrrev_b32 v{vX}, 5, v{vX}")
        a(f"v_lshl_add_u32 v{vY}, v{vX}, 4, v{vY}")
        a(f"s_lshl_b32 s72, s{sS}, 7")
        a(f"s_add_u32 s72, s72, {L_MACC}")
        a(f"v_add_u32 v{vY}, s72, v{vY}")
        a("s_mov_b32 exec_lo, 0xff")
        a("s_mov_b32 exec_hi, 0xff")
        for r in range(16):
            a(f"ds_add_f32 v{vY}, v{vACC+r} offset:{g*8*MROW + (8*(r//4)+r%4)*4}")
        a("s_mov_b64 exec, -1")
        a(f"s_branch {L}_done")
    a.label("K2_slowend")
    a.clear_hist()
    a("s_waitcnt vmcnt(0) lgkmcnt(0)")
    a("s_barrier")
    a("v_lshrrev_b32 v8, 4, v0")
    a("v_min_u32 v8, 39, v8")
    a("v_and_b32 v9, 15, v0")
    a(f"v_mul_u32_u24 v10, {MROW}, v8")
    a("v_lshl_add_u32 v10, v9, 5, v10")
    a(f"v_add_u32 v10, {L_MACC}, v10")
    a("ds_read_b128 v[24:27], v10")
    a("ds_read_b128 v[28:31], v10 offset:16")
    a("v_subrev_u32 v7, 640, v0")
    a("v_mul_u32_u24 v11, 43691, v7")
    a("v_lshrrev_b32 v11, 17, v11")
    a("v_min_u32 v11, 39, v11")
    a("v_add_u32 v12, v11, v7")
    a("v_and_b32 v12, 0xff, v12")
    a("v_lshlrev_b32 v12, 2, v12")
    a(f"v_add_u32 v12, {L_POSACC+4}, v12")
    a("ds_read_b32 v32, v12")
    a("s_waitcnt lgkmcnt(0)")
    a("s_barrier")
    def wm():
        for p in range(4): a(f"v_cvt_pk_bf16_f32 v{24+p}, v{24+2*p}, v{25+2*p}")
        a(f"v_mul_u32_u24 v10, {MBROW}, v8")
        a("v_lshl_add_u32 v10, v9, 4, v10")
        a(f"v_add_u32 v10, {L_MB}, v10")
        a("ds_write_b128 v10, v[24:27]")
    masked(a, "v_cmp_gt_u32 vcc, 640, v0", "K2_se1", wm)
    def wp():
        a("v_mul_u32_u24 v13, 3, v11")
        a("v_sub_u32 v13, v7, v13")
        a("v_add_u32 v13, 1, v13")
        a("v_and_b32 v14, 7, v11")
        a("v_lshl_add_u32 v13, v13, 3, v14")
        a("v_lshlrev_b32 v13, 5, v13")
        a("v_lshrrev_b32 v14, 3, v11")
        a("v_lshl_add_u32 v13, v14, 10, v13")
        a(f"v_add_u32 v13, {L_POSP}, v13")
        for r in range(33, 40): a(f"v_mov_b32 v{r}, 0")
        a("ds_write_b128 v13, v[32:35]")
        a("ds_write_b128 v13, v[36:39] offset:16")
    masked(a, "v_cmp_gt_u32 vcc, 120, v7", "K2_se2", wp)
    def wo():
        a("v_add_u32 v13, 1, v0")
        a("v_cmp_gt_u32 vcc, 5, v0")
        a("v_cndmask_b32 v13, 0, v13, vcc")
        a("v_lshlrev_b32 v14, 2, v0")
        a(f"ds_write_b32 v14, v13 offset:{L_OWN}")
    masked(a, "v_cmp_gt_u32 vcc, 12, v0", "K2_se3", wo)
    a("s_branch K2_epi")

K2_KD = f"""
.amdhsa_kernel {KNAME}_kernel
  .amdhsa_next_free_vgpr 128
  .amdhsa_next_free_sgpr 102
  .amdhsa_accum_offset 128
  .amdhsa_group_segment_fixed_size 0
  .amdhsa_kernarg_size 88
  .amdhsa_user_sgpr_count 2
  .amdhsa_user_sgpr_kernarg_segment_ptr 1
  .amdhsa_system_sgpr_workgroup_id_x 1
.end_amdhsa_kernel
"""
```

```python
from asmlib import *
from consts import *

K1_GWG = 157
K1_IWG = 7
K1_PWG = 15
K1_GRID = 64 + K1_GWG + K1_IWG + K1_PWG
L_W = 0; L_H = 65536; L_O = L_H + 64 * 256
LP_W = 34816; LP_H = LP_W + 32768
K1_LDS = max(L_O + 2 * 64 * 272, LP_H + 128 * 256)
DBG1 = set()
WT = " sc0 sc1"

def srd(a, base, lo, hi, size, add=0):
    if add:
        a(f"s_add_u32 s{base}, s{lo}, {add}")
        a(f"s_addc_u32 s{base+1}, s{hi}, 0")
    else:
        a(f"s_mov_b32 s{base}, s{lo}")
        a(f"s_mov_b32 s{base+1}, s{hi}")
    a(f"s_mov_b32 s{base+2}, {size}")
    a(f"s_mov_b32 s{base+3}, 0x20000")

def g1(a, k):
    if "g1" not in DBG1: return
    a("s_memtime s[68:69]")
    a("s_waitcnt lgkmcnt(0)")
    a(f"s_mov_b32 s{70+k}, s68")
def g1out(a):
    if "g1" not in DBG1: return
    a("s_waitcnt vmcnt(0) lgkmcnt(0)")
    g1(a, 7)
    a("s_and_b32 s50, s3, 7")
    a("s_cmp_lg_u32 s50, 0")
    a("s_cbranch_scc1 K1_g1done")
    a("s_cmp_lg_u32 s2, 10")
    a("s_cbranch_scc1 K1_g1done")
    a("s_mov_b32 s51, 0")
    a("s_lshl_b32 s50, s3, 3")
    a("s_add_u32 s51, s51, s50")
    a("s_load_dwordx2 s[64:65], s[0:1], 72")
    a("s_waitcnt lgkmcnt(0)")
    a("s_mov_b32 s66, 256")
    a("s_mov_b32 s67, 0x20000")
    for k in range(8): a(f"v_writelane_b32 v104, s{70+k}, {k}")
    a("v_and_b32 v105, 63, v0")
    a("v_lshlrev_b32 v105, 2, v105")
    a("v_mov_b32 v106, 0x7fffff00")
    a("v_cmp_gt_u32 vcc, 32, v105")
    a("v_cndmask_b32 v105, v106, v105, vcc")
    a("buffer_store_dword v104, v105, s[64:67], s51 offen")
    a("s_waitcnt vmcnt(0)")
    a.label("K1_g1done")

def p_stage(a, pre):
    a("v_lshrrev_b32 v60, 6, v0")
    a("v_and_b32 v61, 63, v0")
    a("v_readfirstlane_b32 s52, v60")
    a("v_lshrrev_b32 v62, 4, v61")
    a("s_lshl_b32 s53, s52, 2")
    a("v_add_u32 v63, s53, v62")
    a("v_xor_b32 v64, v63, v61")
    a("v_and_b32 v64, 15, v64")
    a("v_lshlrev_b32 v63, 8, v63")
    a("v_lshl_add_u32 v63, v64, 4, v63")
    a("v_lshlrev_b32 v64, 2, v62")
    a("v_xor_b32 v64, v64, v61")
    a("v_and_b32 v64, 15, v64")
    a("v_lshlrev_b32 v65, 8, v62")
    a("v_lshl_add_u32 v65, v64, 4, v65")
    srd(a, 56, 48, 49, N * 256)
    srd(a, 44, 50, 51, 273 * 256)
    a("s_lshl_b32 s54, s2, 15")
    a("s_lshl_b32 s55, s52, 10")
    for i in range(2):
        a(f"s_add_u32 m0, s55, {LP_H + i*16384}")
        a(f"s_add_u32 s53, s54, {i*16384}")
        a("buffer_load_dwordx4 v63, s[56:59], s53 offen lds")
    a("s_lshl_b32 s55, s52, 11")
    for i in range(2):
        a(f"s_add_u32 s53, s55, {i*1024}")
        a(f"s_add_u32 m0, s53, {LP_W}")
        a("s_nop 0")
        a("buffer_load_dwordx4 v65, s[44:47], s53 offen lds")

def p_compute(a, younger):
    a("s_and_b32 s35, s52, 3")
    a("s_lshr_b32 s36, s52, 2")
    a("v_and_b32 v4, 31, v61")
    a("v_lshrrev_b32 v5, 5, v61")
    a("v_and_b32 v6, 15, v4")
    a("v_xor_b32 v6, v6, v5")
    a("v_lshlrev_b32 v6, 4, v6")
    a("v_lshl_add_u32 v6, v4, 8, v6")
    a("s_lshl_b32 s37, s36, 13")
    a(f"s_add_u32 s37, s37, {LP_H}")
    a("v_add_u32 v6, s37, v6")
    a("v_bfe_u32 v9, v61, 2, 2")
    a("v_bfe_u32 v10, v61, 4, 1")
    a("v_bfe_u32 v11, v61, 1, 1")
    a("v_lshl_add_u32 v10, v10, 1, v11")
    a("s_lshl_b32 s39, s35, 2")
    a("v_add_u32 v10, s39, v10")
    a("v_lshlrev_b32 v11, 2, v9")
    a("v_xor_b32 v10, v10, v11")
    a("v_lshl_add_u32 v9, v5, 3, v9")
    a("v_lshlrev_b32 v9, 8, v9")
    a("v_lshl_add_u32 v9, v10, 4, v9")
    a("v_and_b32 v10, 1, v61")
    a("v_lshl_add_u32 v9, v10, 3, v9")
    a(f"v_add_u32 v9, {LP_W}, v9")
    a("v_lshlrev_b32 v2, 4, v4")
    a("v_lshl_add_u32 v2, v5, 3, v2")
    a("s_lshl_b32 s38, s35, 9")
    a("v_add_u32 v2, s38, v2")
    srd(a, 44, 18, 19, P_BYTES, add=WS_P)
    a("s_lshl_b32 s42, s2, 4")
    a("s_lshl_b32 s43, s36, 2")
    a("s_add_u32 s42, s42, s43")
    a("s_lshl_b32 s42, s42, 11")
    a(f"s_mov_b32 s40, {f2u(LOG2E):#x}")
    a(f"s_waitcnt vmcnt({younger})")
    a("s_barrier")
    for ks in range(8):
        a(f"ds_read_b64_tr_b16 v[{48+4*ks}:{49+4*ks}], v9 offset:{ks*4096}")
        a(f"ds_read_b64_tr_b16 v[{50+4*ks}:{51+4*ks}], v9 offset:{ks*4096+1024}")
    for ks in range(8):
        a(f"v_xor_b32 v7, {ks*32}, v6" if ks else "v_mov_b32 v7, v6")
        a(f"ds_read_b128 v[{16+4*ks}:{19+4*ks}], v7")
    a("s_waitcnt lgkmcnt(0)")
    for ks in range(8):
        c = "0" if ks == 0 else "v[80:95]"
        a(f"v_mfma_f32_32x32x16_bf16 v[80:95], v[{16+4*ks}:{19+4*ks}], v[{48+4*ks}:{51+4*ks}], {c}")
    for r in range(16):
        a(f"v_mul_f32 v{80+r}, s40, v{80+r}")
    for p in range(8):
        a(f"v_cvt_pk_bf16_f32 v{96+p}, v{80+2*p}, v{81+2*p}")
    for g in range(4):
        a(f"s_add_u32 s43, s42, {g*2048}")
        a(f"buffer_store_dwordx2 v[{96+2*g}:{97+2*g}], v2, s[44:47], s43 offen" + WT)

def gen_k1(a):
    a.raw(".p2align 8")
    a.raw(".type egnn_prep_kernel,@function")
    a.label("egnn_prep_kernel")
    a(f"s_cmp_ge_u32 s2, {K1_GRID}")
    a("s_cbranch_scc1 K1_end")
    RT = "rt" in DBG1
    if RT:
        rt_begin(a, 60)
        a("s_mov_b32 s62, s2")
    def fin():
        if RT: rt_end(a, 60, 64, 0, 62, 104, "")
        a("s_endpgm")
    a("s_cmp_ge_u32 s2, 64")
    a("s_cbranch_scc1 K1_q")
    a("s_load_dwordx4 s[8:11], s[0:1], 24")
    a("s_load_dwordx2 s[18:19], s[0:1], 80")
    a("s_load_dwordx2 s[4:5], s[0:1], 8")
    a("s_load_dwordx2 s[48:49], s[0:1], 0")
    a("s_load_dwordx2 s[50:51], s[0:1], 40")
    a("v_lshlrev_b32 v1, 4, v0")
    a(f"s_mul_i32 s3, s2, {CH*4}")
    a("v_cmp_gt_u32 vcc, 625, v0")
    a("v_mov_b32 v12, -1"); a("v_mov_b32 v13, -1"); a("v_mov_b32 v14, -1"); a("v_mov_b32 v15, -1")
    a("v_lshlrev_b32 v2, 2, v0")
    a("v_mov_b32 v3, 0")
    a("s_waitcnt lgkmcnt(0)")
    srd(a, 24, 10, 11, E * 4)
    srd(a, 20, 8, 9, E * 4)
    a("s_and_saveexec_b64 s[32:33], vcc")
    a("s_cbranch_execz K1_b1")
    a("buffer_load_dwordx4 v[4:7], v1, s[24:27], s3 offen")
    a("buffer_load_dwordx4 v[8:11], v1, s[20:23], s3 offen")
    a.label("K1_b1")
    a("s_mov_b64 exec, s[32:33]")
    a("v_lshrrev_b32 v40, 6, v0")
    a("v_readfirstlane_b32 s38, v40")
    a("s_sub_u32 s39, s38, 10")
    a("s_cmp_ge_u32 s39, 2")
    a("s_cbranch_scc1 K1_np4")
    srd(a, 40, 4, 5, N * 6)
    a("s_lshl_b32 s44, s2, 1")
    a("s_add_u32 s44, s44, s39")
    a("s_lshl_b32 s44, s44, 6")
    a("v_and_b32 v40, 63, v0")
    a("v_add_u32 v40, s44, v40")
    a("v_mul_u32_u24 v41, 12, v40")
    a("buffer_load_dwordx3 v[44:46], v41, s[40:43], 0 offen")
    a.label("K1_np4")
    p_stage(a, "K1_")
    a("ds_write_b128 v1, v[12:15]")
    a("ds_write_b128 v1, v[12:15] offset:16384")
    a("v_cmp_gt_u32 vcc, 256, v0")
    a("s_and_saveexec_b64 s[34:35], vcc")
    a("s_cbranch_execz K1_b2")
    a("ds_write_b32 v2, v3 offset:32768")
    a.label("K1_b2")
    a("s_mov_b64 exec, s[34:35]")
    srd(a, 28, 18, 19, CELLS_BYTES)
    a("v_lshlrev_b32 v16, 22, v0")
    a("v_mov_b32 v17, 1")
    a("v_mov_b32 v36, 33788")
    a("s_waitcnt lgkmcnt(0)")
    a("s_barrier")
    a("s_cmp_ge_u32 s39, 2")
    a("s_cbranch_scc1 K1_np4b")
    srd(a, 40, 18, 19, POS4_BYTES, add=WS_POS4)
    a("s_waitcnt vmcnt(4)")
    a("v_mov_b32 v48, v44")
    a("v_and_b32 v49, 0xffff, v45")
    a("v_alignbit_b32 v50, v46, v45, 16")
    a("v_lshrrev_b32 v51, 16, v46")
    a("v_lshlrev_b32 v41, 4, v40")
    a("buffer_store_dwordx4 v[48:51], v41, s[40:43], 0 offen" + WT)
    a.label("K1_np4b")
    a("v_cmp_gt_u32 vcc, 625, v0")
    a("s_and_saveexec_b64 s[32:33], vcc")
    a("s_cbranch_execz K1_b3")
    a("s_waitcnt vmcnt(4)")
    for k in range(4):
        a(f"v_mul_u32_u24 v{20+k}, 52429, v{4+k}")
        a(f"v_lshrrev_b32 v{20+k}, 21, v{20+k}")
        a(f"v_lshlrev_b32 v{28+k}, 2, v{20+k}")
        a(f"ds_add_rtn_u32 v{24+k}, v{28+k}, v17 offset:32768")
    for k in range(4):
        a(f"v_mul_u32_u24 v{32+k}, 40, v{20+k}")
        a(f"v_sub_u32 v{32+k}, v{4+k}, v{32+k}")
        a(f"v_lshl_or_b32 v{8+k}, v{32+k}, 14, v{8+k}")
        if k: a(f"v_add_u32 v{32+k}, {k<<20}, v16")
        a(f"v_or_b32 v{8+k}, v{8+k}, v{32+k if k else 16}")
        a(f"v_lshlrev_b32 v{20+k}, 7, v{20+k}")
    a("s_waitcnt lgkmcnt(0)")
    for k in range(4):
        a(f"v_lshl_add_u32 v{20+k}, v{24+k}, 2, v{20+k}")
        a(f"v_cmp_gt_u32 vcc, 32, v{24+k}")
        a(f"v_cndmask_b32 v{20+k}, v36, v{20+k}, vcc")
        a(f"ds_write_b32 v{20+k}, v{8+k}")
    a.label("K1_b3")
    a("s_mov_b64 exec, s[32:33]")
    a("s_lshl_b32 s3, s2, 7")
    a("v_lshrrev_b32 v2, 3, v0")
    a("v_and_b32 v3, 7, v0")
    a("v_lshlrev_b32 v4, 2, v2")
    a("v_lshlrev_b32 v7, 13, v2")
    a("v_lshl_add_u32 v7, v3, 4, v7")
    a(f"v_add_u32 v16, {128*8192}, v7")
    a("v_cmp_eq_u32 s[36:37], 7, v3")
    a("v_mov_b32 v17, -2")
    a("s_waitcnt lgkmcnt(0)")
    a("s_barrier")
    a("ds_read_b128 v[8:11], v1")
    a("ds_read_b128 v[12:15], v1 offset:16384")
    a("ds_read_b32 v5, v4 offset:32768")
    a(f"ds_read_b32 v6, v4 offset:{32768+512}")
    a("s_waitcnt lgkmcnt(0)")
    a("v_cmp_lt_u32 vcc, 32, v5")
    a("s_and_b64 vcc, vcc, s[36:37]")
    a("v_cndmask_b32 v11, v11, v17, vcc")
    a("v_cmp_lt_u32 vcc, 32, v6")
    a("s_and_b64 vcc, vcc, s[36:37]")
    a("v_cndmask_b32 v15, v15, v17, vcc")
    a("buffer_store_dwordx4 v[8:11], v7, s[28:31], s3 offen" + WT)
    a("buffer_store_dwordx4 v[12:15], v16, s[28:31], s3 offen" + WT)
    p_compute(a, 2)
    fin()
    a.label("K1_q")
    a.clear_hist()
    a(f"s_cmp_ge_u32 s2, {64 + K1_GWG + K1_IWG}")
    a("s_cbranch_scc1 K1_ponly")
    a(f"s_cmp_ge_u32 s2, {64 + K1_GWG}")
    a("s_cbranch_scc1 K1_img")
    g1(a, 0)
    a("s_load_dwordx2 s[4:5], s[0:1], 0")
    a("s_load_dwordx2 s[12:13], s[0:1], 40")
    a("s_load_dwordx2 s[16:17], s[0:1], 56")
    a("s_load_dwordx2 s[18:19], s[0:1], 80")
    a("s_load_dwordx2 s[44:45], s[0:1], 16")
    a("v_lshrrev_b32 v1, 6, v0")
    a("v_and_b32 v2, 63, v0")
    a("v_readfirstlane_b32 s3, v1")
    a("s_sub_u32 s2, s2, 64")
    a("v_lshrrev_b32 v4, 4, v2")
    a("s_lshl_b32 s33, s3, 2")
    a("v_add_u32 v5, s33, v4")
    a("v_xor_b32 v6, v5, v2")
    a("v_and_b32 v6, 15, v6")
    a("v_lshlrev_b32 v5, 8, v5")
    a("v_lshl_add_u32 v5, v6, 4, v5")
    a("v_lshlrev_b32 v6, 2, v4")
    a("v_xor_b32 v6, v6, v2")
    a("v_and_b32 v6, 15, v6")
    a("v_lshlrev_b32 v3, 8, v4")
    a("v_lshl_add_u32 v3, v6, 4, v3")
    a(f"s_lshl_b32 s34, s2, 14")
    a("s_lshl_b32 s35, s3, 10")
    a("s_lshl_b32 s36, s3, 11")
    a("s_waitcnt lgkmcnt(0)")
    g1(a, 1)
    srd(a, 24, 4, 5, N * 256)
    srd(a, 20, 12, 13, 273 * 256)
    a("s_mov_b32 s38, 32768")
    a(f"s_add_u32 m0, s35, {L_H}")
    a("s_nop 0")
    a("buffer_load_dwordx4 v5, s[24:27], s34 offen lds")
    srd(a, 28, 16, 17, 256 * 256)
    for i in range(2):
        a(f"s_add_u32 s37, s36, {i*1024}")
        a(f"s_add_u32 m0, s37, {L_W}")
        a("s_add_u32 s37, s37, s38")
        a("buffer_load_dwordx4 v3, s[20:23], s37 offen lds")
    for i in range(2):
        a(f"s_add_u32 s37, s36, {i*1024}")
        a(f"s_add_u32 m0, s37, {L_W + 32768}")
        a("s_nop 0")
        a("buffer_load_dwordx4 v3, s[28:31], s37 offen lds")
    if "eapf" in DBG1:
        a(f"s_mov_b32 s46, {E*32}")
        a("s_mov_b32 s47, 0x20000")
        a("v_lshlrev_b32 v109, 6, v2")
        a("s_lshl_b32 s36, s2, 4")
        a("s_add_u32 s36, s36, s3")
        a("s_lshl_b32 s36, s36, 11")
        a("s_mov_b32 exec_hi, 0")
        a("buffer_load_dword v110, v109, s[44:47], s36 offen")
        a("s_mov_b64 exec, -1")
    a("s_and_b32 s35, s3, 3")
    a("s_bfe_u32 s36, s3, 0x10002")
    a("v_and_b32 v4, 31, v2")
    a("v_lshrrev_b32 v5, 5, v2")
    a("v_and_b32 v6, 15, v4")
    a("v_xor_b32 v6, v6, v5")
    a("v_lshlrev_b32 v6, 4, v6")
    a("v_lshl_add_u32 v6, v4, 8, v6")
    a("s_lshl_b32 s37, s36, 13")
    a(f"s_add_u32 s37, s37, {L_H}")
    a("v_add_u32 v6, s37, v6")
    a("v_bfe_u32 v9, v2, 2, 2")
    a("v_bfe_u32 v10, v2, 4, 1")
    a("v_bfe_u32 v11, v2, 1, 1")
    a("v_lshl_add_u32 v10, v10, 1, v11")
    a("s_lshl_b32 s39, s35, 2")
    a("v_add_u32 v10, s39, v10")
    a("v_lshlrev_b32 v11, 2, v9")
    a("v_xor_b32 v10, v10, v11")
    a("v_lshl_add_u32 v9, v5, 3, v9")
    a("v_lshlrev_b32 v9, 8, v9")
    a("v_lshl_add_u32 v9, v10, 4, v9")
    a("v_and_b32 v10, 1, v2")
    a("v_lshl_add_u32 v9, v10, 3, v9")
    a("s_lshl_b32 s39, s35, 6")
    a(f"s_mov_b32 s40, {f2u(LOG2E):#x}")
    g1(a, 2)
    a("s_waitcnt vmcnt(%d)" % (1 if "eapf" in DBG1 else 0))
    g1(a, 3)
    a("s_barrier")
    g1(a, 4)
    a("s_lshr_b32 s41, s3, 3")
    a("s_lshl_b32 s37, s41, 15")
    a("v_add_u32 v9, s37, v9")
    a("s_cmp_eq_u32 s41, 1")
    a("s_cselect_b32 s40, 1.0, s40")
    for ks in range(8):
        a(f"ds_read_b64_tr_b16 v[{48+4*ks}:{49+4*ks}], v9 offset:{ks*4096}")
        a(f"ds_read_b64_tr_b16 v[{50+4*ks}:{51+4*ks}], v9 offset:{ks*4096+1024}")
    a("v_mul_u32_u24 v12, 272, v4")
    a("v_lshl_add_u32 v12, v5, 3, v12")
    a("s_mul_i32 s37, s36, %d" % (32 * 272))
    a("s_add_u32 s37, s37, s39")
    a(f"s_add_u32 s37, s37, {L_O}")
    a(f"s_mul_i32 s38, s41, {64*272}")
    a("s_add_u32 s37, s37, s38")
    a("v_add_u32 v12, s37, v12")
    for ks in range(8):
        a(f"v_xor_b32 v7, {ks*32}, v6" if ks else "v_mov_b32 v7, v6")
        a(f"ds_read_b128 v[{16+4*ks}:{19+4*ks}], v7")
    a("s_waitcnt lgkmcnt(0)")
    for ks in range(8):
        c = "0" if ks == 0 else "v[80:95]"
        a(f"v_mfma_f32_32x32x16_bf16 v[80:95], v[{48+4*ks}:{51+4*ks}], v[{16+4*ks}:{19+4*ks}], {c}")
    for r in range(16):
        a(f"v_mul_f32 v{80+r}, s40, v{80+r}")
    for p in range(8):
        a(f"v_cvt_pk_bf16_f32 v{96+p}, v{80+2*p}, v{81+2*p}")
    for g in range(4):
        a(f"ds_write_b64 v12, v[{96+2*g}:{97+2*g}] offset:{g*16}")
    a.label("K1_jd")
    a.clear_hist()
    g1(a, 5)
    a("v_lshrrev_b32 v4, 4, v0")
    a("v_and_b32 v5, 15, v0")
    a("v_mul_u32_u24 v6, 272, v4")
    a("v_lshl_add_u32 v6, v5, 4, v6")
    a(f"v_add_u32 v6, {L_O}, v6")
    a("v_lshlrev_b32 v7, 4, v0")
    srd(a, 20, 18, 19, Q_BYTES, add=WS_Q)
    srd(a, 28, 18, 19, R_BYTES, add=WS_R)
    a("s_add_u32 s35, s34, 256")
    a("s_waitcnt lgkmcnt(0)")
    a("s_barrier")
    g1(a, 6)
    a("ds_read_b128 v[16:19], v6")
    a(f"ds_read_b128 v[20:23], v6 offset:{64*272}")
    a("s_waitcnt lgkmcnt(1)")
    a("buffer_store_dwordx4 v[16:19], v7, s[20:23], s35 offen" + WT)
    a("s_waitcnt lgkmcnt(0)")
    a("buffer_store_dwordx4 v[20:23], v7, s[28:31], s34 offen" + WT)
    a("s_cmp_lg_u32 s2, 0")
    a("s_cbranch_scc1 K1_gend")
    a("v_cmp_gt_u32 vcc, 16, v0")
    a("s_and_saveexec_b64 s[32:33], vcc")
    a("s_cbranch_execz K1_gend")
    for r in range(4): a(f"v_mov_b32 v{28+r}, 0")
    a("buffer_store_dwordx4 v[28:31], v7, s[20:23], 0 offen" + WT)
    a.label("K1_gend")
    a.clear_hist()
    a("s_mov_b64 exec, -1")
    g1out(a)
    fin()
    a.label("K1_ponly")
    a.clear_hist()
    a("s_load_dwordx2 s[18:19], s[0:1], 80")
    a("s_load_dwordx2 s[48:49], s[0:1], 0")
    a("s_load_dwordx2 s[50:51], s[0:1], 40")
    a(f"s_sub_u32 s2, s2, {K1_GWG + K1_IWG}")
    a("s_waitcnt lgkmcnt(0)")
    p_stage(a, "K1o_")
    p_compute(a, 0)
    fin()
    a.label("K1_img")
    a.clear_hist()
    a("s_load_dwordx4 s[12:15], s[0:1], 40")
    a("s_load_dwordx2 s[16:17], s[0:1], 56")
    a("s_load_dwordx2 s[18:19], s[0:1], 80")
    a("v_lshrrev_b32 v1, 6, v0")
    a("v_and_b32 v2, 63, v0")
    a("v_readfirstlane_b32 s3, v1")
    a(f"s_sub_u32 s2, s2, {64 + K1_GWG}")
    a("s_lshl_b32 s33, s2, 4")
    a("s_add_u32 s33, s33, s3")
    a("s_add_u32 s62, s33, 300")
    def fin_img():
        if RT: rt_end(a, 60, 64, 0, 62, 104, "", anywave=True)
        a("s_endpgm")
    a("v_and_b32 v4, 31, v2")
    a("v_lshrrev_b32 v5, 5, v2")
    a("v_lshlrev_b32 v6, 11, v5")
    a("v_lshl_add_u32 v6, v4, 1, v6")
    a("v_lshlrev_b32 v3, 4, v2")
    a("s_waitcnt lgkmcnt(0)")
    srd(a, 28, 18, 19, IMG_BYTES, add=WS_IMG)
    srd(a, 20, 12, 13, 273 * 256)
    a("s_cmp_ge_u32 s33, 105")
    a("s_cbranch_scc1 K1_end")
    a("s_cmp_ge_u32 s33, 101")
    a("s_cbranch_scc1 K1_tab")
    a("s_cmp_ge_u32 s33, 100")
    a("s_cbranch_scc1 K1_wd")
    a("s_cmp_ge_u32 s33, 96")
    a("s_cbranch_scc1 K1_w4")
    a("s_cmp_ge_u32 s33, 64")
    a("s_cbranch_scc1 K1_end")
    a("s_cmp_lt_u32 s33, 32")
    a("s_cbranch_scc1 K1_end")
    srd(a, 24, 16, 17, 256 * 256)
    a("s_lshr_b32 s35, s33, 5")
    a("s_lshl_b32 s37, s35, 15")
    a.label("K1_wf")
    a.clear_hist()
    a("s_bfe_u32 s34, s33, 0x20003")
    a("s_and_b32 s35, s33, 7")
    a("s_lshl_b32 s35, s35, 12")
    a("s_lshl_b32 s34, s34, 6")
    a("s_add_u32 s34, s34, s35")
    a("s_add_u32 s34, s34, s37")
    a("s_lshl_b32 s36, s33, 10")
    for j in range(8):
        a(f"buffer_load_ushort v{16+j}, v6, s[24:27], s34 offen offset:{j*256}")
    a("s_waitcnt vmcnt(0)")
    for p in range(4):
        a(f"v_lshl_or_b32 v{24+p}, v{17+2*p}, 16, v{16+2*p}")
    a("buffer_store_dwordx4 v[24:27], v3, s[28:31], s36 offen" + WT)
    fin_img()
    a.label("K1_w4")
    a.clear_hist()
    a("s_sub_u32 s33, s33, 96")
    a("s_lshl_b32 s34, s33, 6")
    a(f"s_add_u32 s34, s34, {257*256}")
    a("s_lshl_b32 s36, s33, 10")
    a(f"s_add_u32 s36, s36, {IMG_W4}")
    for j in range(8):
        a(f"buffer_load_ushort v{16+j}, v6, s[20:23], s34 offen offset:{j*256}")
    a(f"s_mov_b32 s40, {f2u(LOG2E):#x}")
    a("s_waitcnt vmcnt(0)")
    for j in range(8):
        a(f"v_lshlrev_b32 v{16+j}, 16, v{16+j}")
        a(f"v_mul_f32 v{16+j}, s40, v{16+j}")
    for p in range(4):
        a(f"v_cvt_pk_bf16_f32 v{24+p}, v{16+2*p}, v{17+2*p}")
    a("buffer_store_dwordx4 v[24:27], v3, s[28:31], s36 offen" + WT)
    fin_img()
    a.label("K1_wd")
    a.clear_hist()
    srd(a, 24, 14, 15, 256)
    a("v_lshlrev_b32 v7, 1, v2")
    a(f"s_mov_b32 s34, {256*256}")
    a("buffer_load_ushort v16, v7, s[20:23], s34 offen")
    a("buffer_load_ushort v17, v7, s[20:23], s34 offen offset:128")
    a("buffer_load_ushort v18, v7, s[24:27], 0 offen")
    a("buffer_load_ushort v19, v7, s[24:27], 0 offen offset:128")
    a(f"s_mov_b32 s40, {f2u(LOG2E):#x}")
    a(f"s_mov_b32 s41, {f2u(LN2):#x}")
    a("v_lshlrev_b32 v8, 2, v2")
    for r in (25, 26, 27, 29, 30, 31): a(f"v_mov_b32 v{r}, 0")
    a("s_waitcnt vmcnt(0)")
    for k in range(2):
        d = 24 + 4 * k
        a(f"v_lshlrev_b32 v{16+k}, 16, v{16+k}")
        a(f"v_mul_f32 v{16+k}, s40, v{16+k}")
        a(f"v_cvt_pk_bf16_f32 v{20+k}, v{16+k}, v{16+k}")
        a(f"v_and_b32 v{22+k}, 0xffff0000, v{20+k}")
        a(f"v_sub_f32 v{22+k}, v{16+k}, v{22+k}")
        a(f"v_cvt_pk_bf16_f32 v{d}, v{16+k}, v{22+k}")
        a(f"v_lshlrev_b32 v{18+k}, 16, v{18+k}")
        a(f"v_mul_f32 v{18+k}, s41, v{18+k}")
    a(f"s_mov_b32 s34, {IMG_WD16}")
    a(f"s_mov_b32 s35, {IMG_WXF}")
    a("buffer_store_dwordx4 v[24:27], v3, s[28:31], s34 offen" + WT)
    a("buffer_store_dwordx4 v[28:31], v3, s[28:31], s34 offen offset:1024" + WT)
    a("buffer_store_dword v18, v8, s[28:31], s35 offen" + WT)
    a("buffer_store_dword v19, v8, s[28:31], s35 offen offset:256" + WT)
    fin_img()
    a.label("K1_tab")
    a.clear_hist()
    import gen_k2
    gen_k2.table_job(a, WT)
    fin_img()
    a.label("K1_end")
    a("s_endpgm")

K1_KD = f"""
.amdhsa_kernel egnn_prep_kernel
  .amdhsa_next_free_vgpr 112
  .amdhsa_next_free_sgpr 80
  .amdhsa_accum_offset 112
  .amdhsa_group_segment_fixed_size 0
  .amdhsa_kernarg_size 88
  .amdhsa_user_sgpr_count 2
  .amdhsa_user_sgpr_kernarg_segment_ptr 1
  .amdhsa_system_sgpr_workgroup_id_x 1
.end_amdhsa_kernel
"""
```

```python
from asmlib import *
from consts import *

PB_NODES = 96
K1_Q0 = 64; K1_R0 = K1_Q0 + 79; K1_P0 = K1_R0 + 79; K1_I0 = K1_P0 + 31; K1_GRID = K1_I0 + 3
L_W = 0; L_H = 32768; L_O = L_H + 128 * 256
LP_W = 34816; LP_H = LP_W + 32768
K1_LDS = max(L_O + 16 * 2560, LP_H + 128 * 256)
DBG1 = set()
WT = " sc0 sc1"

def srd(a, base, lo, hi, size, add=0):
    if add:
        a(f"s_add_u32 s{base}, s{lo}, {add}")
        a(f"s_addc_u32 s{base+1}, s{hi}, 0")
    else:
        a(f"s_mov_b32 s{base}, s{lo}")
        a(f"s_mov_b32 s{base+1}, s{hi}")
    a(f"s_mov_b32 s{base+2}, {size}")
    a(f"s_mov_b32 s{base+3}, 0x20000")

def g1(a, k):
    if "g1" not in DBG1: return
    a("s_memtime s[68:69]")
    a("s_waitcnt lgkmcnt(0)")
    a(f"s_mov_b32 s{70+k}, s68")
def g1out(a):
    if "g1" not in DBG1: return
    a("s_waitcnt vmcnt(0) lgkmcnt(0)")
    g1(a, 7)
    a("s_and_b32 s50, s3, 7")
    a("s_cmp_lg_u32 s50, 0")
    a("s_cbranch_scc1 K1_g1done")
    a("s_cmp_lg_u32 s2, 10")
    a("s_cbranch_scc1 K1_g1done")
    a("s_mov_b32 s51, 0")
    a("s_lshl_b32 s50, s3, 3")
    a("s_add_u32 s51, s51, s50")
    a("s_load_dwordx2 s[64:65], s[0:1], 72")
    a("s_waitcnt lgkmcnt(0)")
    a("s_mov_b32 s66, 256")
    a("s_mov_b32 s67, 0x20000")
    for k in range(8): a(f"v_writelane_b32 v104, s{70+k}, {k}")
    a("v_and_b32 v105, 63, v0")
    a("v_lshlrev_b32 v105, 2, v105")
    a("v_mov_b32 v106, 0x7fffff00")
    a("v_cmp_gt_u32 vcc, 32, v105")
    a("v_cndmask_b32 v105, v106, v105, vcc")
    a("buffer_store_dword v104, v105, s[64:67], s51 offen")
    a("s_waitcnt vmcnt(0)")
    a.label("K1_g1done")

def p_stage(a, pre, nrows):
    a("v_lshrrev_b32 v60, 6, v0")
    a("v_and_b32 v61, 63, v0")
    a("v_readfirstlane_b32 s52, v60")
    a("v_lshrrev_b32 v62, 4, v61")
    a("s_lshl_b32 s53, s52, 2")
    a("v_add_u32 v63, s53, v62")
    a("v_xor_b32 v64, v63, v61")
    a("v_and_b32 v64, 15, v64")
    a("v_lshlrev_b32 v63, 8, v63")
    a("v_lshl_add_u32 v63, v64, 4, v63")
    a("v_lshlrev_b32 v64, 2, v62")
    a("v_xor_b32 v64, v64, v61")
    a("v_and_b32 v64, 15, v64")
    a("v_lshlrev_b32 v65, 8, v62")
    a("v_lshl_add_u32 v65, v64, 4, v65")
    srd(a, 72, 48, 49, N * 256)
    srd(a, 44, 50, 51, 273 * 256)
    a("s_lshl_b32 s55, s52, 10")
    for i in range(2):
        if i == 1 and nrows == 96:
            a("s_cmp_ge_u32 s52, 8")
            a(f"s_cbranch_scc1 {pre}phd")
        a(f"s_add_u32 m0, s55, {LP_H + i*16384}")
        a(f"s_add_u32 s53, s54, {i*16384}")
        a("buffer_load_dwordx4 v63, s[72:75], s53 offen lds")
    if nrows == 96:
        a.label(f"{pre}phd")
        a.clear_hist()
    a("s_lshl_b32 s55, s52, 11")
    for i in range(2):
        a(f"s_add_u32 s53, s55, {i*1024}")
        a(f"s_add_u32 m0, s53, {LP_W}")
        a("s_nop 0")
        a("buffer_load_dwordx4 v65, s[44:47], s53 offen lds")

def p_addr(a):
    a("s_and_b32 s76, s52, 3")
    a("s_lshr_b32 s77, s52, 2")
    a("v_and_b32 v70, 31, v61")
    a("v_lshrrev_b32 v71, 5, v61")
    a("v_and_b32 v66, 15, v70")
    a("v_xor_b32 v66, v66, v71")
    a("v_lshlrev_b32 v66, 4, v66")
    a("v_lshl_add_u32 v66, v70, 8, v66")
    a("s_lshl_b32 s78, s77, 13")
    a(f"s_add_u32 s78, s78, {LP_H}")
    a("v_add_u32 v66, s78, v66")
    a("v_bfe_u32 v67, v61, 2, 2")
    a("v_bfe_u32 v72, v61, 4, 1")
    a("v_bfe_u32 v73, v61, 1, 1")
    a("v_lshl_add_u32 v72, v72, 1, v73")
    a("s_lshl_b32 s79, s76, 2")
    a("v_add_u32 v72, s79, v72")
    a("v_lshlrev_b32 v73, 2, v67")
    a("v_xor_b32 v72, v72, v73")
    a("v_lshl_add_u32 v67, v71, 3, v67")
    a("v_lshlrev_b32 v67, 8, v67")
    a("v_lshl_add_u32 v67, v72, 4, v67")
    a("v_and_b32 v72, 1, v61")
    a("v_lshl_add_u32 v67, v72, 3, v67")
    a(f"v_add_u32 v67, {LP_W}, v67")
    a("v_lshlrev_b32 v68, 4, v70")
    a("v_lshl_add_u32 v68, v71, 3, v68")
    a("s_lshl_b32 s78, s76, 9")
    a("v_add_u32 v68, s78, v68")
    a("s_lshr_b32 s58, s54, 11")
    a("s_lshl_b32 s59, s77, 2")
    a("s_add_u32 s58, s58, s59")
    a("s_lshl_b32 s58, s58, 11")
    a("s_mov_b32 s59, s77")

def p_compute(a, younger, ntiles, pre):
    srd(a, 44, 18, 19, P_BYTES, add=WS_P)
    a("v_mov_b32 v2, v68")
    a("v_mov_b32 v6, v66")
    a("v_mov_b32 v9, v67")
    a(f"s_mov_b32 s40, {f2u(LOG2E):#x}")
    a(f"s_waitcnt vmcnt({younger})")
    a("s_barrier")
    if ntiles < 4:
        a(f"s_cmp_ge_u32 s59, {ntiles}")
        a(f"s_cbranch_scc1 {pre}pend")
    for ks in range(8):
        a(f"ds_read_b64_tr_b16 v[{48+4*ks}:{49+4*ks}], v9 offset:{ks*4096}")
        a(f"ds_read_b64_tr_b16 v[{50+4*ks}:{51+4*ks}], v9 offset:{ks*4096+1024}")
    for ks in range(8):
        a(f"v_xor_b32 v7, {ks*32}, v6" if ks else "v_mov_b32 v7, v6")
        a(f"ds_read_b128 v[{16+4*ks}:{19+4*ks}], v7")
    a("s_waitcnt lgkmcnt(0)")
    for ks in range(8):
        c = "0" if ks == 0 else "v[80:95]"
        a(f"v_mfma_f32_32x32x16_bf16 v[80:95], v[{16+4*ks}:{19+4*ks}], v[{48+4*ks}:{51+4*ks}], {c}")
    a("v_mov_b32 v15, s40")
    for r in range(16):
        a(f"v_mul_f32 v{80+r}, v15, v{80+r}")
    for p in range(8):
        a(f"v_cvt_pk_bf16_f32 v{96+p}, v{80+2*p}, v{81+2*p}")
    for g in range(4):
        a(f"s_add_u32 s43, s58, {g*2048}")
        a(f"buffer_store_dwordx2 v[{96+2*g}:{97+2*g}], v2, s[44:47], s43 offen" + WT)
    if ntiles < 4:
        a.label(f"{pre}pend")
        a.clear_hist()

def gen_k1(a):
    a.raw(".p2align 8")
    a.raw(".type egnn_prep_kernel,@function")
    a.label("egnn_prep_kernel")
    a(f"s_cmp_ge_u32 s2, {K1_GRID}")
    a("s_cbranch_scc1 K1_end")
    RT = "rt" in DBG1
    if RT:
        rt_begin(a, 60)
        a("s_mov_b32 s62, s2")
    def fin():
        if RT: rt_end(a, 60, 64, 0, 62, 104, "")
        a("s_endpgm")
    a("s_cmp_ge_u32 s2, 64")
    a("s_cbranch_scc1 K1_q")
    a("s_load_dwordx4 s[8:11], s[0:1], 24")
    a("s_load_dwordx2 s[18:19], s[0:1], 80")
    a("s_load_dwordx2 s[4:5], s[0:1], 8")
    a("s_load_dwordx2 s[48:49], s[0:1], 0")
    a("s_load_dwordx2 s[50:51], s[0:1], 40")
    a("v_lshlrev_b32 v1, 4, v0")
    a(f"s_mul_i32 s3, s2, {CH*4}")
    a("v_cmp_gt_u32 vcc, 625, v0")
    a("v_mov_b32 v12, -1"); a("v_mov_b32 v13, -1"); a("v_mov_b32 v14, -1"); a("v_mov_b32 v15, -1")
    a("v_lshlrev_b32 v2, 2, v0")
    a("v_mov_b32 v3, 0")
    a("s_waitcnt lgkmcnt(0)")
    srd(a, 24, 10, 11, E * 4)
    srd(a, 20, 8, 9, E * 4)
    a("s_and_saveexec_b64 s[32:33], vcc")
    a("s_cbranch_execz K1_b1")
    a("buffer_load_dwordx4 v[4:7], v1, s[24:27], s3 offen")
    a("buffer_load_dwordx4 v[8:11], v1, s[20:23], s3 offen")
    a.label("K1_b1")
    a("s_mov_b64 exec, s[32:33]")
    a("v_lshrrev_b32 v40, 6, v0")
    a("v_readfirstlane_b32 s38, v40")
    a("s_sub_u32 s39, s38, 10")
    a("s_cmp_ge_u32 s39, 2")
    a("s_cbranch_scc1 K1_np4")
    srd(a, 40, 4, 5, N * 6)
    a("s_lshl_b32 s44, s2, 1")
    a("s_add_u32 s44, s44, s39")
    a("s_lshl_b32 s44, s44, 6")
    a("v_and_b32 v40, 63, v0")
    a("v_add_u32 v40, s44, v40")
    a("v_mul_u32_u24 v41, 12, v40")
    a("buffer_load_dwordx3 v[44:46], v41, s[40:43], 0 offen")
    a.label("K1_np4")
    a(f"s_mul_i32 s54, s2, {PB_NODES*256}")
    p_stage(a, "K1_", PB_NODES)
    p_addr(a)
    a("ds_write_b128 v1, v[12:15]")
    a("ds_write_b128 v1, v[12:15] offset:16384")
    a("v_cmp_gt_u32 vcc, 256, v0")
    a("s_and_saveexec_b64 s[34:35], vcc")
    a("s_cbranch_execz K1_b2")
    a("ds_write_b32 v2, v3 offset:32768")
    a.label("K1_b2")
    a("s_mov_b64 exec, s[34:35]")
    srd(a, 28, 18, 19, CELLS_BYTES)
    a("v_lshlrev_b32 v16, 22, v0")
    a("v_mov_b32 v17, 1")
    a("v_mov_b32 v36, 33788")
    a("s_waitcnt lgkmcnt(0)")
    a("s_barrier")
    a("s_cmp_ge_u32 s39, 2")
    a("s_cbranch_scc1 K1_np4b")
    srd(a, 40, 18, 19, POS4_BYTES, add=WS_POS4)
    a("s_waitcnt vmcnt(3)")
    a("v_mov_b32 v48, v44")
    a("v_and_b32 v49, 0xffff, v45")
    a("v_alignbit_b32 v50, v46, v45, 16")
    a("v_lshrrev_b32 v51, 16, v46")
    a("v_lshlrev_b32 v41, 4, v40")
    a("buffer_store_dwordx4 v[48:51], v41, s[40:43], 0 offen" + WT)
    a.label("K1_np4b")
    a("v_cmp_gt_u32 vcc, 625, v0")
    a("s_and_saveexec_b64 s[32:33], vcc")
    a("s_cbranch_execz K1_b3")
    a("s_cmp_ge_u32 s52, 8")
    a("s_cbranch_scc1 K1_bw3")
    a("s_waitcnt vmcnt(4)")
    a("s_branch K1_bw4")
    a.label("K1_bw3")
    a("s_waitcnt vmcnt(3)")
    a.label("K1_bw4")
    a.clear_hist()
    for k in range(4):
        a(f"v_mul_u32_u24 v{20+k}, 52429, v{4+k}")
        a(f"v_lshrrev_b32 v{20+k}, 21, v{20+k}")
        a(f"v_lshlrev_b32 v{28+k}, 2, v{20+k}")
        a(f"ds_add_rtn_u32 v{24+k}, v{28+k}, v17 offset:32768")
    for k in range(4):
        a(f"v_mul_u32_u24 v{32+k}, 40, v{20+k}")
        a(f"v_sub_u32 v{32+k}, v{4+k}, v{32+k}")
        a(f"v_lshl_or_b32 v{8+k}, v{32+k}, 14, v{8+k}")
        if k: a(f"v_add_u32 v{32+k}, {k<<20}, v16")
        a(f"v_or_b32 v{8+k}, v{8+k}, v{32+k if k else 16}")
        a(f"v_lshlrev_b32 v{20+k}, 7, v{20+k}")
    a("s_waitcnt lgkmcnt(0)")
    for k in range(4):
        a(f"v_lshl_add_u32 v{20+k}, v{24+k}, 2, v{20+k}")
        a(f"v_cmp_gt_u32 vcc, 32, v{24+k}")
        a(f"v_cndmask_b32 v{20+k}, v36, v{20+k}, vcc")
        a(f"ds_write_b32 v{20+k}, v{8+k}")
    a.label("K1_b3")
    a("s_mov_b64 exec, s[32:33]")
    a("s_lshl_b32 s3, s2, 7")
    a("v_lshrrev_b32 v2, 3, v0")
    a("v_and_b32 v3, 7, v0")
    a("v_lshlrev_b32 v4, 2, v2")
    a("v_lshlrev_b32 v7, 13, v2")
    a("v_lshl_add_u32 v7, v3, 4, v7")
    a(f"v_add_u32 v16, {128*8192}, v7")
    a("v_cmp_eq_u32 s[36:37], 7, v3")
    a("v_mov_b32 v17, -2")
    a("s_waitcnt lgkmcnt(0)")
    a("s_barrier")
    a("ds_read_b128 v[8:11], v1")
    a("ds_read_b128 v[12:15], v1 offset:16384")
    a("ds_read_b32 v5, v4 offset:32768")
    a(f"ds_read_b32 v6, v4 offset:{32768+512}")
    a("s_waitcnt lgkmcnt(0)")
    a("v_cmp_lt_u32 vcc, 32, v5")
    a("s_and_b64 vcc, vcc, s[36:37]")
    a("v_cndmask_b32 v11, v11, v17, vcc")
    a("v_cmp_lt_u32 vcc, 32, v6")
    a("s_and_b64 vcc, vcc, s[36:37]")
    a("v_cndmask_b32 v15, v15, v17, vcc")
    a("buffer_store_dwordx4 v[8:11], v7, s[28:31], s3 offen" + WT)
    a("buffer_store_dwordx4 v[12:15], v16, s[28:31], s3 offen" + WT)
    p_compute(a, 2, PB_NODES // 32, "K1_")
    fin()
    a.label("K1_q")
    a.clear_hist()
    a(f"s_cmp_ge_u32 s2, {K1_I0}")
    a("s_cbranch_scc1 K1_img")
    a(f"s_cmp_ge_u32 s2, {K1_P0}")
    a("s_cbranch_scc1 K1_ponly")
    g1(a, 0)
    a("s_load_dwordx2 s[4:5], s[0:1], 0")
    a("s_load_dwordx2 s[12:13], s[0:1], 40")
    a("s_load_dwordx2 s[16:17], s[0:1], 56")
    a("s_load_dwordx2 s[18:19], s[0:1], 80")
    a("v_lshrrev_b32 v1, 6, v0")
    a("v_and_b32 v2, 63, v0")
    a("v_readfirstlane_b32 s3, v1")
    a(f"s_cmp_ge_u32 s2, {K1_R0}")
    a("s_cselect_b32 s41, 1, 0")
    a(f"s_cselect_b32 s33, {K1_R0}, {K1_Q0}")
    a("s_sub_u32 s2, s2, s33")
    a("v_lshrrev_b32 v4, 4, v2")
    a("s_lshl_b32 s33, s3, 2")
    a("v_add_u32 v5, s33, v4")
    a("v_xor_b32 v6, v5, v2")
    a("v_and_b32 v6, 15, v6")
    a("v_lshlrev_b32 v5, 8, v5")
    a("v_lshl_add_u32 v5, v6, 4, v5")
    a("v_lshlrev_b32 v6, 2, v4")
    a("v_xor_b32 v6, v6, v2")
    a("v_and_b32 v6, 15, v6")
    a("v_lshlrev_b32 v3, 8, v4")
    a("v_lshl_add_u32 v3, v6, 4, v3")
    a(f"s_lshl_b32 s34, s2, 15")
    a("s_lshl_b32 s35, s3, 10")
    a("s_lshl_b32 s36, s3, 11")
    a("s_waitcnt lgkmcnt(0)")
    g1(a, 1)
    srd(a, 24, 4, 5, N * 256)
    for i in range(2):
        a(f"s_add_u32 m0, s35, {L_H + i*16384}")
        a(f"s_add_u32 s37, s34, {i*16384}")
        a("buffer_load_dwordx4 v5, s[24:27], s37 offen lds")
    a("s_cmp_eq_u32 s41, 1")
    a("s_cbranch_scc1 K1_rw")
    srd(a, 20, 12, 13, 273 * 256, add=0)
    a("s_mov_b32 s38, 32768")
    a(f"s_mov_b32 s40, {f2u(LOG2E):#x}")
    srd(a, 28, 18, 19, Q_BYTES, add=WS_Q)
    a("s_add_u32 s45, s34, 256")
    a("s_branch K1_wgo")
    a.label("K1_rw")
    srd(a, 20, 16, 17, 256 * 256)
    a("s_mov_b32 s38, 0")
    a("s_mov_b32 s40, 1.0")
    srd(a, 28, 18, 19, R_BYTES, add=WS_R)
    a("s_mov_b32 s45, s34")
    a.label("K1_wgo")
    a.clear_hist()
    for i in range(2):
        a(f"s_add_u32 s37, s36, {i*1024}")
        a(f"s_add_u32 m0, s37, {L_W}")
        a("s_add_u32 s37, s37, s38")
        a("buffer_load_dwordx4 v3, s[20:23], s37 offen lds")
    a("s_and_b32 s35, s3, 3")
    a("s_lshr_b32 s36, s3, 2")
    a("v_and_b32 v4, 31, v2")
    a("v_lshrrev_b32 v5, 5, v2")
    a("v_and_b32 v6, 15, v4")
    a("v_xor_b32 v6, v6, v5")
    a("v_lshlrev_b32 v6, 4, v6")
    a("v_lshl_add_u32 v6, v4, 8, v6")
    a("s_lshl_b32 s37, s36, 13")
    a(f"s_add_u32 s37, s37, {L_H}")
    a("v_add_u32 v6, s37, v6")
    a("v_bfe_u32 v9, v2, 2, 2")
    a("v_bfe_u32 v10, v2, 4, 1")
    a("v_bfe_u32 v11, v2, 1, 1")
    a("v_lshl_add_u32 v10, v10, 1, v11")
    a("s_lshl_b32 s39, s35, 2")
    a("v_add_u32 v10, s39, v10")
    a("v_lshlrev_b32 v11, 2, v9")
    a("v_xor_b32 v10, v10, v11")
    a("v_lshl_add_u32 v9, v5, 3, v9")
    a("v_lshlrev_b32 v9, 8, v9")
    a("v_lshl_add_u32 v9, v10, 4, v9")
    a("v_and_b32 v10, 1, v2")
    a("v_lshl_add_u32 v9, v10, 3, v9")
    a("s_lshl_b32 s39, s35, 6")
    a("s_mul_i32 s37, s3, 2560")
    a(f"s_add_u32 s37, s37, {L_O}")
    a("v_mul_u32_u24 v12, 80, v4")
    a("v_lshl_add_u32 v12, v5, 3, v12")
    a("v_add_u32 v12, s37, v12")
    a("v_lshrrev_b32 v13, 2, v2")
    a("v_and_b32 v14, 3, v2")
    a("v_lshlrev_b32 v15, 8, v13")
    a("v_lshl_add_u32 v15, v14, 4, v15")
    a("v_mul_u32_u24 v13, 80, v13")
    a("v_lshl_add_u32 v13, v14, 4, v13")
    a("v_add_u32 v13, s37, v13")
    a("s_lshl_b32 s37, s36, 13")
    a("s_add_u32 s45, s45, s37")
    a("s_add_u32 s45, s45, s39")
    a("v_mov_b32 v14, v15")
    g1(a, 2)
    a("s_waitcnt vmcnt(0)")
    g1(a, 3)
    a("s_barrier")
    g1(a, 4)
    for ks in range(8):
        a(f"ds_read_b64_tr_b16 v[{48+4*ks}:{49+4*ks}], v9 offset:{ks*4096}")
        a(f"ds_read_b64_tr_b16 v[{50+4*ks}:{51+4*ks}], v9 offset:{ks*4096+1024}")
    for ks in range(8):
        a(f"v_xor_b32 v7, {ks*32}, v6" if ks else "v_mov_b32 v7, v6")
        a(f"ds_read_b128 v[{16+4*ks}:{19+4*ks}], v7")
    a("s_waitcnt lgkmcnt(0)")
    for ks in range(8):
        c = "0" if ks == 0 else "v[80:95]"
        a(f"v_mfma_f32_32x32x16_bf16 v[80:95], v[{48+4*ks}:{51+4*ks}], v[{16+4*ks}:{19+4*ks}], {c}")
    a("v_mov_b32 v15, s40")
    for r in range(16):
        a(f"v_mul_f32 v{80+r}, v15, v{80+r}")
    for p in range(8):
        a(f"v_cvt_pk_bf16_f32 v{96+p}, v{80+2*p}, v{81+2*p}")
    for g in range(4):
        a(f"ds_write_b64 v12, v[{96+2*g}:{97+2*g}] offset:{g*16}")
    g1(a, 5)
    a("s_add_u32 s36, s45, 4096")
    a("s_waitcnt lgkmcnt(0)")
    g1(a, 6)
    a("ds_read_b128 v[16:19], v13")
    a(f"ds_read_b128 v[20:23], v13 offset:{16*80}")
    a("s_waitcnt lgkmcnt(1)")
    a("buffer_store_dwordx4 v[16:19], v14, s[28:31], s45 offen" + WT)
    a("s_waitcnt lgkmcnt(0)")
    a("buffer_store_dwordx4 v[20:23], v14, s[28:31], s36 offen" + WT)
    a("s_or_b32 s36, s41, s2")
    a("s_cmp_lg_u32 s36, 0")
    a("s_cbranch_scc1 K1_gend")
    a("v_cmp_gt_u32 vcc, 16, v0")
    a("s_and_saveexec_b64 s[32:33], vcc")
    a("s_cbranch_execz K1_gend")
    for r in range(4): a(f"v_mov_b32 v{28+r}, 0")
    a("v_lshlrev_b32 v14, 4, v0")
    a("buffer_store_dwordx4 v[28:31], v14, s[28:31], 0 offen" + WT)
    a.label("K1_gend")
    a.clear_hist()
    a("s_mov_b64 exec, -1")
    g1out(a)
    fin()
    a.label("K1_ponly")
    a.clear_hist()
    a("s_load_dwordx2 s[18:19], s[0:1], 80")
    a("s_load_dwordx2 s[48:49], s[0:1], 0")
    a("s_load_dwordx2 s[50:51], s[0:1], 40")
    a(f"s_sub_u32 s2, s2, {K1_P0}")
    a("s_lshl_b32 s54, s2, 15")
    a(f"s_add_u32 s54, s54, {64 * PB_NODES * 256}")
    a("s_waitcnt lgkmcnt(0)")
    p_stage(a, "K1o_", 128)
    p_addr(a)
    p_compute(a, 0, 4, "K1o_")
    fin()
    a.label("K1_img")
    a.clear_hist()
    a("s_load_dwordx4 s[12:15], s[0:1], 40")
    a("s_load_dwordx2 s[16:17], s[0:1], 56")
    a("s_load_dwordx2 s[18:19], s[0:1], 80")
    a("v_lshrrev_b32 v1, 6, v0")
    a("v_and_b32 v2, 63, v0")
    a("v_readfirstlane_b32 s3, v1")
    a(f"s_sub_u32 s2, s2, {K1_I0}")
    a("s_lshl_b32 s33, s2, 4")
    a("s_add_u32 s33, s33, s3")
    a("s_add_u32 s62, s33, 300")
    a("s_cmp_ge_u32 s33, 32")
    a("s_cselect_b32 s34, 64, 32")
    a("s_add_u32 s33, s33, s34")
    def fin_img():
        if RT: rt_end(a, 60, 64, 0, 62, 104, "", anywave=True)
        a("s_endpgm")
    a("v_and_b32 v4, 31, v2")
    a("v_lshrrev_b32 v5, 5, v2")
    a("v_lshlrev_b32 v6, 11, v5")
    a("v_lshl_add_u32 v6, v4, 1, v6")
    a("v_lshlrev_b32 v3, 4, v2")
    a("s_waitcnt lgkmcnt(0)")
    srd(a, 28, 18, 19, IMG_BYTES, add=WS_IMG)
    srd(a, 20, 12, 13, 273 * 256)
    a("s_cmp_ge_u32 s33, 105")
    a("s_cbranch_scc1 K1_end")
    a("s_cmp_ge_u32 s33, 101")
    a("s_cbranch_scc1 K1_tab")
    a("s_cmp_ge_u32 s33, 100")
    a("s_cbranch_scc1 K1_wd")
    a("s_cmp_ge_u32 s33, 96")
    a("s_cbranch_scc1 K1_w4")
    a("s_cmp_ge_u32 s33, 64")
    a("s_cbranch_scc1 K1_end")
    a("s_cmp_lt_u32 s33, 32")
    a("s_cbranch_scc1 K1_end")
    srd(a, 24, 16, 17, 256 * 256)
    a("s_lshr_b32 s35, s33, 5")
    a("s_lshl_b32 s37, s35, 15")
    a.label("K1_wf")
    a.clear_hist()
    a("s_bfe_u32 s34, s33, 0x20003")
    a("s_and_b32 s35, s33, 7")
    a("s_lshl_b32 s35, s35, 12")
    a("s_lshl_b32 s34, s34, 6")
    a("s_add_u32 s34, s34, s35")
    a("s_add_u32 s34, s34, s37")
    a("s_lshl_b32 s36, s33, 10")
    for j in range(8):
        a(f"buffer_load_ushort v{16+j}, v6, s[24:27], s34 offen offset:{j*256}")
    a("s_waitcnt vmcnt(0)")
    for p in range(4):
        a(f"v_lshl_or_b32 v{24+p}, v{17+2*p}, 16, v{16+2*p}")
    a("buffer_store_dwordx4 v[24:27], v3, s[28:31], s36 offen" + WT)
    fin_img()
    a.label("K1_w4")
    a.clear_hist()
    a("s_sub_u32 s33, s33, 96")
    a("s_lshl_b32 s34, s33, 6")
    a(f"s_add_u32 s34, s34, {257*256}")
    a("s_lshl_b32 s36, s33, 10")
    a(f"s_add_u32 s36, s36, {IMG_W4}")
    for j in range(8):
        a(f"buffer_load_ushort v{16+j}, v6, s[20:23], s34 offen offset:{j*256}")
    a(f"s_mov_b32 s40, {f2u(LOG2E):#x}")
    a("s_waitcnt vmcnt(0)")
    for j in range(8):
        a(f"v_lshlrev_b32 v{16+j}, 16, v{16+j}")
        a(f"v_mul_f32 v{16+j}, s40, v{16+j}")
    for p in range(4):
        a(f"v_cvt_pk_bf16_f32 v{24+p}, v{16+2*p}, v{17+2*p}")
    a("buffer_store_dwordx4 v[24:27], v3, s[28:31], s36 offen" + WT)
    fin_img()
    a.label("K1_wd")
    a.clear_hist()
    srd(a, 24, 14, 15, 256)
    a("v_lshlrev_b32 v7, 1, v2")
    a(f"s_mov_b32 s34, {256*256}")
    a("buffer_load_ushort v16, v7, s[20:23], s34 offen")
    a("buffer_load_ushort v17, v7, s[20:23], s34 offen offset:128")
    a("buffer_load_ushort v18, v7, s[24:27], 0 offen")
    a("buffer_load_ushort v19, v7, s[24:27], 0 offen offset:128")
    a(f"s_mov_b32 s40, {f2u(LOG2E):#x}")
    a(f"s_mov_b32 s41, {f2u(LN2):#x}")
    a("v_lshlrev_b32 v8, 2, v2")
    for r in (25, 26, 27, 29, 30, 31): a(f"v_mov_b32 v{r}, 0")
    a("s_waitcnt vmcnt(0)")
    for k in range(2):
        d = 24 + 4 * k
        a(f"v_lshlrev_b32 v{16+k}, 16, v{16+k}")
        a(f"v_mul_f32 v{16+k}, s40, v{16+k}")
        a(f"v_cvt_pk_bf16_f32 v{20+k}, v{16+k}, v{16+k}")
        a(f"v_and_b32 v{22+k}, 0xffff0000, v{20+k}")
        a(f"v_sub_f32 v{22+k}, v{16+k}, v{22+k}")
        a(f"v_cvt_pk_bf16_f32 v{d}, v{16+k}, v{22+k}")
        a(f"v_lshlrev_b32 v{18+k}, 16, v{18+k}")
        a(f"v_mul_f32 v{18+k}, s41, v{18+k}")
    a(f"s_mov_b32 s34, {IMG_WD16}")
    a(f"s_mov_b32 s35, {IMG_WXF}")
    a("buffer_store_dwordx4 v[24:27], v3, s[28:31], s34 offen" + WT)
    a("buffer_store_dwordx4 v[28:31], v3, s[28:31], s34 offen offset:1024" + WT)
    a("buffer_store_dword v18, v8, s[28:31], s35 offen" + WT)
    a("buffer_store_dword v19, v8, s[28:31], s35 offen offset:256" + WT)
    fin_img()
    a.label("K1_tab")
    a.clear_hist()
    import gen_k2
    gen_k2.table_job(a, WT)
    fin_img()
    a.label("K1_end")
    a("s_endpgm")

K1_KD = f"""
.amdhsa_kernel egnn_prep_kernel
  .amdhsa_next_free_vgpr 112
  .amdhsa_next_free_sgpr 80
  .amdhsa_accum_offset 112
  .amdhsa_group_segment_fixed_size 0
  .amdhsa_kernarg_size 88
  .amdhsa_user_sgpr_count 2
  .amdhsa_user_sgpr_kernarg_segment_ptr 1
  .amdhsa_system_sgpr_workgroup_id_x 1
.end_amdhsa_kernel
"""
```

```python
from asmlib import *
from consts import *
from gen_k1 import srd

MAXT = 28
TS = 2560
O_D2 = 2048
L_CNT = 0
L_OWN = 32
L_WX = 128
L_PD = 640
L_T0 = 1024
L_QS = L_T0 + MAXT * TS
QSW = 3072
L_MB = L_QS + 16 * QSW
MBROW = 272
L_POSP = L_MB + 64 * MBROW
L_PST = L_POSP + 8192
O_WD = 10240; O_W4 = 12288
K2_LDS = L_PST + 16384
assert K2_LDS <= 163840, K2_LDS
assert L_POSP % 32 == 0 and L_QS % 256 == 0
L_MACC = L_MB; MROW = 528; L_POSACC = L_MACC + 40 * MROW
assert L_POSACC + 640 <= L_PST
PROW = 528
assert 104 * PROW <= MAXT * TS
OOB = 0x7FFFFF00
SLOW_BLK = 640
SLOW_NBLK = E // SLOW_BLK

S_WS, S_EA, S_OUT, S_H, S_SRC, S_DST = 8, 12, 16, 20, 24, 28
S_POS = 32
sW, sS, sQ, sT = 36, 37, 38, 39
sONE = 40
sSLOW, sQB, sWSQ, sT240 = 42, 43, 44, 45
sTG = 46
sNT = sTG + 5
sHM = 52
sA, sB, sJ, sEND, sFIRST, sHALF = 54, 55, 56, 57, 58, 59
sLN2, sLOG2E = 60, 61
sWSP4 = 62
sV0, sV1 = 80, 82
sQB1, sQB2 = 84, 85
sSTS, sSTD, sHD, sT10K, sCD, sWHT, sPD = 90, 91, 92, 93, 94, 89, 88
vEAO = 26
sSHA = 92
vQ1 = 1
vQ0, vEA, vEO, vSEL = 4, 5, 6, 7
vST, vLS, vLE, vPBs = 8, 9, 10, 11
vCQ, vPBb, vFM, vFP = 12, 13, 14, 15
vPB = 16
vSN, vSE = 20, 22
vX, vY, vZ = 23, 24, 25
vW4 = 28; vID = 32; vACC = 40; vD1 = 56
vA = 72; vT = 88; vM = 104; vSB = 112
vPR = 127

PROF = False
DBG = set()
def stamp(a, k):
    if not PROF: return
    a("s_memtime s[74:75]")
    a("s_waitcnt lgkmcnt(0)")
    a(f"v_writelane_b32 v{vPR}, s74, {k}")

def B(r): return f"s[{r}:{r+3}]"

def masked(a, cmp, label, body, sv=76):
    a(cmp)
    a(f"s_and_saveexec_b64 s[{sv}:{sv+1}], vcc")
    a(f"s_cbranch_execz {label}")
    body()
    a.label(label)
    a(f"s_mov_b64 exec, s[{sv}:{sv+1}]")

class RS:
    def __init__(self, base):
        self.rec = base; self.g = base + 1; self.dl = base + 2; self.so = base + 3
        self.rk = base + 4; self.tb = base + 5; self.e = base + 6; self.x = base + 7
        self.ps = base + 8; self.pd = base + 10; self.eid = base + 12
        self.c4 = base + 12
RS0, RS1 = RS(56), RS(72)
vCB, vONE1, vK1, vT32 = 100, 101, 3, 27
vZR = 88
vL = 124

def phase1(a, r):
    if "touch" in DBG:
        a(f"v_lshlrev_b32 v{r.tb}, 5, v{r.eid}")
        a(f"buffer_load_dword v126, v{r.tb}, {B(S_EA)}, 0 offen")
    a(f"v_and_b32 v{r.so}, 0x3fff, v{r.rec}")
    a(f"v_lshlrev_b32 v{r.x}, 3, v{r.so}")
    a(f"buffer_load_dwordx2 v[{r.ps}:{r.ps+1}], v{r.x}, {B(S_WS)}, s{sWSP4} offen")
    a(f"v_bfe_u32 v{r.dl}, v{r.rec}, 14, 6")
    a(f"v_lshrrev_b32 v{r.g}, 1, v{r.dl}")
    a(f"v_and_b32 v{r.g}, 28, v{r.g}")
    a(f"ds_add_rtn_u32 v{r.rk}, v{r.g}, v{vONE1} offset:{L_CNT}")
    a(f"v_lshlrev_b32 v{r.tb}, 3, v{r.dl}")
    a(f"ds_read_b64 v[{r.pd}:{r.pd+1}], v{r.tb} offset:{L_PD}")
    a(f"v_lshlrev_b32 v{r.so}, 8, v{r.so}")
    a(f"v_add_u32 v{r.so}, 256, v{r.so}")

def phase1b(a, r):
    a(f"v_add_u32 v{r.rk}, v{r.rk}, v{r.x}")
    a(f"v_lshrrev_b32 v{r.tb}, 5, v{r.rk}")
    a(f"v_mul_u32_u24 v{r.tb}, {TS}, v{r.tb}")
    a(f"v_and_b32 v{r.e}, 31, v{r.rk}")
    a(f"v_lshl_add_u32 v{r.x}, v{r.e}, 4, v{r.tb}")
    if "eacompact" in DBG:
        a(f"s_mul_i32 s72, s{sT}, 640")
        a(f"v_add_u32 v{r.eid}, s72, v{r.rk}")
    a(f"v_lshlrev_b32 v{r.eid}, 8, v{r.eid}")
    a(f"ds_write_b32 v{r.x}, v{r.so} offset:{L_T0+O_D2+4}")
    a(f"ds_write_b32 v{r.x}, v{r.eid} offset:{L_T0+O_D2+8}")

def phase2(a, r):
    t0, t1, t2 = vX, vY, vZ
    a(f"v_lshlrev_b32 v{t0}, 16, v{r.ps}")
    a(f"v_lshlrev_b32 v{t1}, 16, v{r.pd}")
    a(f"v_sub_f32 v{t0}, v{t1}, v{t0}")
    a(f"v_and_b32 v{r.ps}, 0xffff0000, v{r.ps}")
    a(f"v_and_b32 v{r.pd}, 0xffff0000, v{r.pd}")
    a(f"v_sub_f32 v{t1}, v{r.pd}, v{r.ps}")
    a(f"v_lshlrev_b32 v{r.ps+1}, 16, v{r.ps+1}")
    a(f"v_lshlrev_b32 v{r.pd+1}, 16, v{r.pd+1}")
    a(f"v_sub_f32 v{t2}, v{r.pd+1}, v{r.ps+1}")
    a(f"v_cvt_pk_bf16_f32 v{r.ps}, v{t0}, v{t1}")
    a(f"v_cvt_pk_bf16_f32 v{r.ps+1}, v{t2}, v{t2}")
    a(f"v_and_b32 v{t2}, 7, v{r.dl}")
    a(f"v_lshl_add_u32 v{r.rk}, v{r.e}, 6, v{r.tb}")
    a(f"v_lshl_add_u32 v{r.rk}, v{t2}, 1, v{r.rk}")
    a(f"ds_write_b16 v{r.rk}, v{vK1} offset:{L_T0}")
    a(f"ds_write_b16 v{r.rk}, v{r.ps} offset:{L_T0+16}")
    a(f"ds_write_b16_d16_hi v{r.rk}, v{r.ps} offset:{L_T0+32}")
    a(f"ds_write_b16 v{r.rk}, v{r.ps+1} offset:{L_T0+48}")
    a(f"v_lshlrev_b32 v{t0}, 16, v{r.ps}")
    a(f"v_and_b32 v{t1}, 0xffff0000, v{r.ps}")
    a(f"v_and_b32 v{t2}, 0xffff0000, v{r.ps+1}")
    a(f"v_mul_f32 v{t0}, v{t0}, v{t0}")
    a(f"v_fmac_f32 v{t0}, v{t1}, v{t1}")
    a(f"v_fmac_f32 v{t0}, v{t2}, v{t2}")
    a(f"v_cvt_pk_bf16_f32 v{t0}, v{t0}, v{t0}")
    a(f"ds_write_b32 v{r.x}, v{t0} offset:{L_T0+O_D2}")

def issue_q(a):
    if "noq" in DBG:
        a(f"v_and_b32 v{vSN}, 0x3f00, v{vSN}")
        a(f"v_and_b32 v{vSN+1}, 0x3f00, v{vSN+1}")
    a(f"v_add_u32 v{vSN}, v{vSN}, v{vCQ}")
    a(f"v_add_u32 v{vSN+1}, v{vSN+1}, v{vCQ}")
    a(f"s_mov_b32 m0, s{sQB}")
    a(f"v_lshrrev_b32 v{vSE}, 3, v{vSE}")
    fq = " nt" if "qnt" in DBG else ""
    a(f"buffer_load_dwordx4 v{vSN}, {B(S_WS)}, s{sWSQ} offen{fq} lds")
    a(f"s_mov_b32 m0, s{sQB1}")
    a(f"v_add_u32 v{vSE}, v{vSE}, v{vEO}")
    a(f"buffer_load_dwordx4 v{vSN+1}, {B(S_WS)}, s{sWSQ} offen{fq} lds")

def issue_ea(a, m0reg):
    a(f"s_mov_b32 m0, s{m0reg}")
    a(f"s_nop 0")
    fl = " nt" if "eant" in DBG else (" sc1" if "easc1" in DBG else (" sc0 sc1" if "easc01" in DBG else ""))
    a(f"buffer_load_dwordx4 v{vSE}, {B(S_EA)}, 0 offen{fl} lds")

def issue_dma(a):
    issue_q(a)
    issue_ea(a, sQB2)

def lane_consts_run(a):
    e, hh, f, t, u = 92, 93, 94, 95, 96
    a(f"v_and_b32 v{e}, 31, v{vL}")
    a(f"v_lshrrev_b32 v{hh}, 5, v{vL}")
    a(f"v_lshlrev_b32 v{t}, 6, v{e}")
    a(f"v_lshlrev_b32 v{u}, 4, v{e}")
    a(f"v_add_u32 v{u}, {O_D2}, v{u}")
    a(f"v_cmp_eq_u32 vcc, 0, v{hh}")
    a(f"v_cndmask_b32 v{t}, v{u}, v{t}, vcc")
    a(f"v_add_u32 v{vSEL}, {L_T0}, v{t}")
    a(f"v_bfe_u32 v{t}, v{vL}, 2, 2")
    a(f"v_lshlrev_b32 v{t}, 6, v{t}")
    a(f"v_lshl_add_u32 v{t}, v{hh}, 8, v{t}")
    a(f"v_and_b32 v{u}, 16, v{vL}")
    a(f"v_lshl_add_u32 v{t}, v{u}, 1, v{t}")
    a(f"v_and_b32 v{u}, 3, v{vL}")
    a(f"v_lshl_add_u32 v{t}, v{u}, 3, v{t}")
    a(f"v_add_u32 v{vST}, {L_T0}, v{t}")
    a(f"v_lshrrev_b32 v{t}, 2, v{vL}")
    a(f"v_lshlrev_b32 v{t}, 4, v{t}")
    a(f"v_add_u32 v{vLS}, {L_T0+O_D2+4}, v{t}")
    a(f"v_lshrrev_b32 v{t}, 1, v{vL}")
    a(f"v_lshlrev_b32 v{t}, 4, v{t}")
    a(f"v_add_u32 v{vLE}, {L_T0+O_D2+8}, v{t}")

def table_job(a, WT):
    L = 2
    e, hh, f, t, u = 16, 17, 18, 19, 20
    a("s_sub_u32 s33, s33, 101")
    a(f"v_and_b32 v{e}, 31, v{L}")
    a(f"v_lshrrev_b32 v{hh}, 5, v{L}")
    a(f"v_lshrrev_b32 v{t}, 4, v{L}")
    a(f"v_xor_b32 v{t}, v{t}, v{L}")
    a(f"v_and_b32 v{t}, 3, v{t}")
    a(f"v_lshlrev_b32 v{t}, 4, v{t}")
    a("s_lshl_b32 s34, s33, 6")
    a(f"v_add_u32 v24, s34, v{t}")
    a(f"v_lshlrev_b32 v{t}, 4, v{e}")
    a("s_lshl_b32 s34, s33, 9")
    a(f"s_add_u32 s34, s34, {L_PST}")
    a(f"v_add_u32 v{t}, s34, v{t}")
    a(f"v_add_u32 v{u}, {O_WD}, v{t}")
    a(f"v_cmp_eq_u32 vcc, 0, v{hh}")
    a(f"v_cndmask_b32 v25, v{u}, v{t}, vcc")
    a(f"v_and_b32 v{t}, 7, v{e}")
    a(f"v_mul_u32_u24 v{t}, {MBROW}, v{t}")
    a(f"v_lshl_add_u32 v{t}, v{hh}, 3, v{t}")
    a("s_lshl_b32 s34, s33, 6")
    a(f"s_add_u32 s34, s34, {L_MB}")
    a(f"v_add_u32 v26, s34, v{t}")
    a(f"v_lshlrev_b32 v{t}, 5, v{e}")
    a(f"v_lshl_add_u32 v{t}, v{hh}, 4, v{t}")
    a("s_lshl_b32 s34, s33, 2")
    a(f"s_add_u32 s34, s34, {L_POSP}")
    a(f"v_add_u32 v27, s34, v{t}")
    a("s_lshl_b32 s35, s33, 10")
    a(f"s_add_u32 s35, s35, {IMG_TAB + 4096}")
    a("buffer_store_dwordx4 v[24:27], v3, s[28:31], s35 offen" + WT)
    a("s_cmp_lg_u32 s33, 0")
    a("s_cbranch_scc1 K1_tabd")
    a(f"v_bfe_u32 v{f}, v{e}, 2, 2")
    a(f"v_xor_b32 v{t}, v{hh}, v{f}")
    a(f"v_lshlrev_b32 v{t}, 4, v{t}")
    a(f"v_lshl_add_u32 v28, v{e}, 6, v{t}")
    a(f"v_lshlrev_b32 v{t}, 4, v{hh}")
    a(f"v_lshl_add_u32 v29, v{e}, 5, v{t}")
    a(f"v_and_b32 v{u}, 1, v{L}")
    a(f"v_lshlrev_b32 v30, 4, v{u}")
    a(f"v_lshlrev_b32 v{t}, 6, v{e}")
    a(f"v_lshlrev_b32 v{u}, 4, v{e}")
    a(f"v_add_u32 v{u}, {O_D2}, v{u}")
    a(f"v_cndmask_b32 v{t}, v{u}, v{t}, vcc")
    a(f"v_add_u32 v31, {L_T0}, v{t}")
    a(f"v_bfe_u32 v{t}, v{L}, 2, 2")
    a(f"v_lshlrev_b32 v{t}, 6, v{t}")
    a(f"v_lshl_add_u32 v{t}, v{hh}, 8, v{t}")
    a(f"v_and_b32 v{u}, 16, v{L}")
    a(f"v_lshl_add_u32 v{t}, v{u}, 1, v{t}")
    a(f"v_and_b32 v{u}, 3, v{L}")
    a(f"v_lshl_add_u32 v{t}, v{u}, 3, v{t}")
    a(f"v_add_u32 v32, {L_T0}, v{t}")
    a(f"v_lshrrev_b32 v{t}, 2, v{L}")
    a(f"v_lshlrev_b32 v{t}, 4, v{t}")
    a(f"v_add_u32 v33, {L_T0+O_D2+4}, v{t}")
    a(f"v_lshrrev_b32 v{t}, 1, v{L}")
    a(f"v_lshlrev_b32 v{t}, 4, v{t}")
    a(f"v_add_u32 v34, {L_T0+O_D2+8}, v{t}")
    a(f"v_mov_b32 v{u}, 2048")
    a(f"v_cndmask_b32 v35, 0, v{u}, vcc")
    a(f"v_and_b32 v{t}, 15, v{e}")
    a(f"v_lshlrev_b32 v{u}, 3, v{hh}")
    a(f"v_sub_u32 v{t}, v{t}, v{u}")
    a(f"v_and_b32 v{u}, 1, v{t}")
    a(f"v_lshlrev_b32 v{u}, 4, v{u}")
    a(f"v_mov_b32 v{f}, 0x3f80")
    a(f"v_lshlrev_b32 v{u}, v{u}, v{f}")
    a(f"v_cmp_gt_u32 vcc, 8, v{t}")
    a(f"v_cndmask_b32 v{u}, 0, v{u}, vcc")
    a(f"v_bfe_u32 v{t}, v{t}, 1, 2")
    a(f"v_lshrrev_b32 v{f}, 4, v{e}")
    a(f"v_lshl_add_u32 v{t}, v{f}, 2, v{t}")
    for d in range(8):
        a(f"v_cmp_eq_u32 vcc, {d}, v{t}")
        a(f"v_cndmask_b32 v{36+d}, 0, v{u}, vcc")
    a(f"s_mov_b32 s35, {IMG_TAB}")
    a("buffer_store_dwordx4 v[36:39], v3, s[28:31], s35 offen" + WT)
    a("buffer_store_dwordx4 v[40:43], v3, s[28:31], s35 offen offset:1024" + WT)
    a("buffer_store_dwordx4 v[28:31], v3, s[28:31], s35 offen offset:2048" + WT)
    a("buffer_store_dwordx4 v[32:35], v3, s[28:31], s35 offen offset:3072" + WT)
    a.label("K1_tabd")
    a.clear_hist()

def gen_k2(a):
    a(f"s_cmp_ge_u32 s2, {T}")
    a("s_cbranch_scc1 K2_end")
    stamp(a, 0)
    if "pad" in DBG:
        for i in range(1024): a.raw("    s_mov_b32 s95, 0x12345678")
    if "rt" in DBG: rt_begin(a, 86)
    if "clk2" in DBG:
        a("s_memtime s[96:97]")
        a("s_memrealtime s[98:99]")
    a("s_load_dwordx2 s[4:5], s[0:1], 80")
    a("s_load_dwordx4 s[64:67], s[0:1], 0")
    a("s_load_dwordx2 s[68:69], s[0:1], 16")
    a("s_load_dwordx2 s[70:71], s[0:1], 64")
    a(f"s_mov_b32 s{sT}, s2")
    a(f"v_lshrrev_b32 v{vX}, 4, v0")
    a(f"v_lshlrev_b32 v{vY}, 6, v{vX}")
    a(f"v_lshl_add_u32 v{vY}, v0, 2, v{vY}")
    a(f"v_mul_u32_u24 v{vCB}, {CH}, v{vX}")
    a(f"v_lshrrev_b32 v{vX}, 6, v0")
    a(f"v_readfirstlane_b32 s{sW}, v{vX}")
    a(f"v_and_b32 v{vL}, 63, v0")
    a(f"s_lshl_b32 s3, s{sT}, 13")
    a(f"v_lshlrev_b32 v{vX}, 4, v{vL}")
    a(f"s_and_b32 s{sS}, s{sW}, 3")
    a(f"s_lshr_b32 s{sQ}, s{sW}, 2")
    a(f"s_mul_i32 s{sQB}, s{sW}, {QSW}")
    a(f"s_add_u32 s{sQB}, s{sQB}, {L_QS}")
    a(f"s_add_u32 s{sQB1}, s{sQB}, 1024")
    a(f"s_add_u32 s{sQB2}, s{sQB}, 2048")
    a(f"s_mul_i32 s63, s{sT}, 10240")
    a(f"s_add_u32 s63, s63, {WS_P}")
    a(f"s_cmp_ge_u32 s{sW}, 10")
    a(f"s_cselect_b32 s63, {WS_IMG + IMG_WD16 - 10240}, s63")
    a(f"s_lshl_b32 s72, s{sW}, 10")
    a(f"s_add_u32 s63, s63, s72")
    a(f"s_add_u32 s72, s72, {L_PST}")
    a(f"s_mul_i32 s{sT10K}, s{sT}, {40*256}")
    a("s_waitcnt lgkmcnt(0)")
    stamp(a, 1)
    srd(a, S_WS, 4, 5, WS_END)
    a(f"buffer_load_dword v{RS0.rec}, v{vY}, {B(S_WS)}, s3 offen")
    a(f"buffer_load_dword v{RS1.rec}, v{vY}, {B(S_WS)}, s3 offen offset:64")
    a(f"s_mov_b32 s{sWSP4}, {WS_POS4}")
    a(f"s_mov_b32 s{sSTS}, s63")
    a(f"s_mov_b32 s{sSTD}, s72")
    a(f"s_cmp_ge_u32 s{sW}, 10")
    a("s_cbranch_scc1 K2_nx")
    a(f"s_cmp_ge_u32 s{sW}, 8")
    a("s_cbranch_scc1 K2_x8")
    a(f"s_lshl_b32 s3, s{sW}, 10")
    a(f"s_add_u32 m0, s3, {L_QS}")
    a(f"s_add_u32 s3, s3, {WS_IMG + IMG_TAB}")
    a(f"buffer_load_dwordx4 v{vX}, {B(S_WS)}, s3 offen lds")
    a("s_branch K2_xh")
    a.label("K2_x8")
    a(f"s_cmp_eq_u32 s{sW}, 9")
    a("s_cbranch_scc1 K2_x9")
    a(f"s_mul_i32 s3, s{sT}, 320")
    a(f"s_add_u32 s3, s3, {WS_POS4}")
    a(f"s_mov_b32 m0, {L_PD}")
    a("s_mov_b64 exec, 0xfffff")
    a(f"buffer_load_dwordx4 v{vX}, {B(S_WS)}, s3 offen lds")
    a("s_mov_b64 exec, -1")
    a("s_branch K2_xh")
    a.label("K2_x9")
    a(f"s_mov_b32 s3, {WS_IMG + IMG_WXF}")
    a(f"s_mov_b32 m0, {L_WX}")
    a("s_mov_b32 exec_hi, 0")
    a(f"buffer_load_dwordx4 v{vX}, {B(S_WS)}, s3 offen lds")
    a("s_mov_b64 exec, -1")
    a.label("K2_xh")
    a.label("K2_nx")
    a.clear_hist()
    srd(a, S_EA, 68, 69, E * 32)
    srd(a, S_OUT, 70, 71, N * 262)
    srd(a, S_H, 64, 65, N * 256)
    srd(a, S_POS, 66, 67, N * 6)
    a(f"s_mov_b32 s{sONE}, 1.0")
    a(f"s_mov_b32 s{sONE+1}, 1.0")
    a(f"s_mov_b32 s{sSLOW}, 0")
    a(f"s_mov_b32 s{sCD}, 0")
    a(f"s_mov_b32 s{sWHT}, {WS_IMG}")
    a(f"s_mov_b32 s{sWSQ}, {WS_Q}")
    a(f"s_mul_i32 s{sT240}, s{sT}, 240")
    a(f"s_mov_b32 s{sLN2}, {f2u(LN2):#x}")
    a(f"s_mov_b32 s{sLOG2E}, {f2u(LOG2E):#x}")
    a.label("K2_batch")
    a.clear_hist()
    a(f"v_lshlrev_b32 v{vZ}, 4, v0")
    for r in range(4): a(f"v_mov_b32 v{vZR+r}, 0")
    ZR = f"v[{vZR}:{vZR+3}]"
    a(f"s_cmp_ge_u32 s{sW}, 8")
    a("s_cbranch_scc1 K2_zfd")
    nfull = (MAXT * TS) // 8192
    for i in range(nfull):
        if i == 7: a(f"v_add_u32 v{vY}, 57344, v{vZ}")
        a(f"ds_write_b128 v{vZ if i < 7 else vY}, {ZR} offset:{L_T0 + i*8192 - (57344 if i >= 7 else 0)}")
    rem = MAXT * TS - nfull * 8192
    if nfull <= 7: a(f"v_add_u32 v{vY}, 57344, v{vZ}")
    masked(a, f"v_cmp_gt_u32 vcc, {rem//16}, v0", "K2_zf", lambda: a(f"ds_write_b128 v{vY}, {ZR} offset:{L_T0+nfull*8192-57344}"))
    masked(a, "v_cmp_gt_u32 vcc, 6, v0", "K2_cz", lambda: a(f"ds_write_b128 v{vZ}, {ZR}"))
    a.label("K2_zfd")
    a.clear_hist()
    a(f"v_mov_b32 v{vONE1}, 1")
    a(f"v_mov_b32 v{vK1}, 0x3f80")
    a(f"s_cmp_lg_u32 s{sSLOW}, 0")
    a("s_cbranch_scc1 K2_slowload")
    a("s_waitcnt vmcnt(0) lgkmcnt(0)")
    a.label("K2_z")
    a.clear_hist()
    a("s_barrier")
    a(f"v_lshlrev_b32 v{vX}, 4, v{vL}")
    a(f"v_add_u32 v{vX}, {L_QS}, v{vX}")
    a(f"s_lshl_b32 s3, s{sS}, 10")
    a(f"v_add_u32 v{vY}, s3, v{vX}")
    a(f"ds_read_b128 v[{vQ0}:{vQ0+3}], v{vX} offset:2048")
    a(f"ds_read_b128 v[{vST}:{vST+3}], v{vX} offset:3072")
    a(f"ds_read_b128 v[{vCQ}:{vCQ+3}], v{vY} offset:4096")
    a(f"ds_read_b128 v[{vID}:{vID+3}], v{vX}")
    a(f"ds_read_b128 v[{vID+4}:{vID+7}], v{vX} offset:1024")
    stamp(a, 2)
    stamp(a, 3)
    for r in (RS0, RS1):
        a(f"v_lshrrev_b32 v{r.eid}, 20, v{r.rec}")
        a(f"v_add_u32 v{r.eid}, v{r.eid}, v{vCB}")
    a.label("K2_sort")
    a.clear_hist()
    a(f"v_cmp_gt_u32 s[{sV0}:{sV0+1}], -2, v{RS0.rec}")
    a(f"v_cmp_gt_u32 s[{sV1}:{sV1+1}], -2, v{RS1.rec}")
    a(f"v_cmp_eq_u32 vcc, -2, v{RS1.rec}")
    a("s_cbranch_vccz K2_nomark")
    a(f"v_mov_b32 v{vX}, 0")
    a(f"v_mov_b32 v{vY}, 0x10000")
    a("s_mov_b64 exec, vcc")
    a(f"ds_add_u32 v{vX}, v{vY} offset:{L_CNT}")
    a("s_mov_b64 exec, -1")
    a.label("K2_nomark")
    a(f"s_mov_b64 exec, s[{sV0}:{sV0+1}]")
    a("s_cbranch_execz K2_p1a")
    phase1(a, RS0)
    a.label("K2_p1a")
    a(f"s_mov_b64 exec, s[{sV1}:{sV1+1}]")
    a("s_cbranch_execz K2_p1b")
    phase1(a, RS1)
    a.label("K2_p1b")
    a("s_mov_b64 exec, -1")
    a(f"s_cmp_lg_u32 s{sSLOW}, 0")
    a("s_cbranch_scc1 K2_nstg")
    a(f"v_lshlrev_b32 v{vX}, 4, v{vL}")
    a(f"s_mov_b32 m0, s{sSTD}")
    a("s_nop 0")
    a(f"buffer_load_dwordx4 v{vX}, {B(S_WS)}, s{sSTS} offen lds")
    a.label("K2_nstg")
    stamp(a, 12)
    a("s_waitcnt lgkmcnt(0)")
    a("s_barrier")
    stamp(a, 4)
    a(f"v_and_b32 v{vX}, 7, v0")
    a(f"v_lshlrev_b32 v{vX}, 2, v{vX}")
    a(f"ds_read_b32 v{vY}, v{vX} offset:{L_CNT}")
    a("s_waitcnt lgkmcnt(0)")
    a(f"v_add_u32 v{vT32}, 31, v{vY}")
    a(f"v_lshrrev_b32 v{vZ}, 5, v{vT32}")
    a(f"v_mov_b32 v{vT32}, v{vZ}")
    for sh in (1, 2, 4):
        a(f"v_add_u32_dpp v{vT32}, v{vT32}, v{vT32} row_shr:{sh} row_mask:0xf bank_mask:0xf bound_ctrl:0")
    a(f"v_readlane_b32 s{sNT}, v{vT32}, 4")
    a(f"v_sub_u32 v{vZ}, v{vT32}, v{vZ}")
    a(f"v_lshlrev_b32 v{vZ}, 5, v{vZ}")
    a(f"s_cmp_lg_u32 s{sSLOW}, 0")
    a("s_cbranch_scc1 K2_go")
    a(f"s_cmp_gt_u32 s{sNT}, {MAXT}")
    a("s_cbranch_scc1 K2_toslow")
    a.label("K2_go")
    a(f"ds_bpermute_b32 v{RS0.x}, v{RS0.g}, v{vZ}")
    a(f"ds_bpermute_b32 v{RS1.x}, v{RS1.g}, v{vZ}")
    a("s_waitcnt lgkmcnt(0)")
    a(f"s_mov_b64 exec, s[{sV0}:{sV0+1}]")
    a("s_cbranch_execz K2_p1c")
    phase1b(a, RS0)
    a.label("K2_p1c")
    a(f"s_mov_b64 exec, s[{sV1}:{sV1+1}]")
    a("s_cbranch_execz K2_p1d")
    phase1b(a, RS1)
    a.label("K2_p1d")
    a("s_mov_b64 exec, -1")
    a(f"s_mul_i32 s{sA}, s{sQ}, s{sNT}")
    a(f"s_add_u32 s{sB}, s{sA}, s{sNT}")
    a(f"s_lshr_b32 s{sA}, s{sA}, 2")
    a(f"s_lshr_b32 s{sB}, s{sB}, 2")
    a(f"s_cmp_lg_u32 s{sSLOW}, 0")
    a("s_cbranch_scc1 K2_slowaddr")
    a.label("K2_addr")
    a(f"s_mul_i32 s3, s{sA}, {TS}")
    a(f"v_add_u32 v{vLS}, s3, v{vLS}")
    a(f"v_add_u32 v{vLE}, s3, v{vLE}")
    a("s_waitcnt lgkmcnt(0)")
    a("s_barrier")
    stamp(a, 5)
    a(f"s_cmp_lg_u32 s{sCD}, 0")
    a("s_cbranch_scc1 K2_cdone")
    a(f"s_mov_b32 s{sCD}, 1")
    a(f"v_add_u32 v{vQ0}, s{sQB}, v{vQ0}")
    a(f"v_xor_b32 v{vQ1}, 32, v{vQ0}")
    a(f"v_add_u32 v{vEA}, s{sQB2}, v{vEA}")
    a(f"s_mul_i32 s72, s{sQ}, {8*MBROW}")
    a(f"v_add_u32 v{vFM}, s72, v{vFM}")
    a(f"s_lshl_b32 s72, s{sQ}, 10")
    a(f"v_add_u32 v{vFP}, s72, v{vFP}")
    a(f"s_bfe_u32 s72, s{sT}, 0x50003")
    a(f"s_lshl_b32 s72, s72, 3")
    a(f"s_and_b32 s73, s{sW}, 7")
    a(f"s_add_u32 s72, s72, s73")
    a(f"s_lshl_b32 s72, s72, 7")
    a(f"s_add_u32 s{sWHT}, s72, {WS_IMG + IMG_WH + 32768}")
    a.label("K2_cdone")
    a.clear_hist()
    def first_dma(lbl):
        a(f"s_cmp_ge_u32 s{sA}, s{sB}")
        a(f"s_cbranch_scc1 {lbl}")
        a(f"ds_read2_b32 v[{vSN}:{vSN+1}], v{vLS} offset0:0 offset1:64")
        a(f"ds_read_b32 v{vSE}, v{vLE}")
        a("s_waitcnt lgkmcnt(0)")
        issue_dma(a)
    a(f"s_cmp_ge_u32 s{sQ}, 2")
    a("s_cbranch_scc1 K2_noq0")
    first_dma("K2_noq0")
    a("s_waitcnt vmcnt(3)")
    a("s_branch K2_q0done")
    a.label("K2_noq0")
    a.clear_hist()
    a("s_waitcnt vmcnt(0)")
    a.label("K2_q0done")
    a.clear_hist()
    stamp(a, 6)
    a(f"s_mov_b64 exec, s[{sV0}:{sV0+1}]")
    a("s_cbranch_execz K2_p2a")
    phase2(a, RS0)
    a.label("K2_p2a")
    a(f"s_mov_b64 exec, s[{sV1}:{sV1+1}]")
    a("s_cbranch_execz K2_p2b")
    phase2(a, RS1)
    a.label("K2_p2b")
    a("s_mov_b64 exec, -1")
    for g in range(4):
        a(f"v_readlane_b32 s{sTG+g+1}, v{vT32}, {g}")
    a(f"s_mov_b32 s{sTG}, 0")
    a(f"v_and_b32 v{vX}, 7, v0")
    a(f"v_lshlrev_b32 v{vX}, 2, v{vX}")
    a(f"ds_read_b32 v{vY}, v{vX} offset:{L_CNT}")
    a(f"s_mul_i32 s3, s{sA}, {TS}")
    a(f"v_add_u32 v{vSEL}, s3, v{vSEL}")
    a(f"v_add_u32 v{vST}, s3, v{vST}")
    a(f"s_mov_b32 s{sJ}, s{sA}")
    a("s_waitcnt lgkmcnt(0)")
    a(f"v_add_u32 v{vY}, -1, v{vY}")
    a(f"v_and_b32 v{vY}, 31, v{vY}")
    a(f"v_cmp_gt_u32 s[{sHM}:{sHM+1}], 16, v{vY}")
    a("s_waitcnt lgkmcnt(0)")
    stamp(a, 13)
    a("s_barrier")
    a(f"s_cmp_eq_u32 s{sSLOW}, 1")
    a("s_cbranch_scc1 K2_slowzero")
    a.label("K2_zdone")
    a.clear_hist()
    a(f"s_cmp_lt_u32 s{sQ}, 2")
    a("s_cbranch_scc1 K2_nolate")
    first_dma("K2_nolate")
    a.label("K2_nolate")
    a.clear_hist()
    a(f"v_add_u32 v{vLS}, {TS}, v{vLS}")
    a(f"v_add_u32 v{vLE}, {TS}, v{vLE}")
    a(f"v_and_b32 v{vX}, 63, v0")
    a(f"v_lshlrev_b32 v{vX}, 4, v{vX}")
    a(f"s_lshl_b32 s3, s{sS}, 10")
    a(f"s_add_u32 s3, s3, {L_PST + O_W4}")
    a(f"v_add_u32 v{vX}, s3, v{vX}")
    a(f"ds_read_b128 v[{vW4}:{vW4+3}], v{vX}")
    stamp(a, 7)
    if "tiles" in DBG:
        a("s_memtime s[74:75]")
        a("s_waitcnt lgkmcnt(0)")
        a(f"v_writelane_b32 v126, s74, 0")
    for g in range(5):
        main_group(a, g)
    a.label("K2_mainend")
    a.clear_hist()
    a("s_setprio 0")
    if "tiles" in DBG:
        a("s_memtime s[74:75]")
        a("s_waitcnt lgkmcnt(0)")
        a(f"v_writelane_b32 v126, s74, 15")
        a(f"s_cmp_ge_u32 s{sT}, 4")
        a("s_cbranch_scc1 K2_tdone")
        a("s_load_dwordx2 s[64:65], s[0:1], 80")
        a("s_waitcnt lgkmcnt(0)")
        a(f"s_add_u32 s64, s64, {0xB08000}")
        a("s_addc_u32 s65, s65, 0")
        a("s_mov_b32 s66, 8192")
        a("s_mov_b32 s67, 0x20000")
        a(f"v_and_b32 v{vX}, 63, v0")
        a(f"v_lshlrev_b32 v{vX}, 2, v{vX}")
        a(f"v_mov_b32 v{vY}, {OOB:#x}")
        a(f"v_cmp_gt_u32 vcc, 64, v{vX}")
        a(f"v_cndmask_b32 v{vX}, v{vY}, v{vX}, vcc")
        a(f"s_lshl_b32 s3, s{sT}, 10")
        a(f"s_lshl_b32 s72, s{sW}, 6")
        a(f"s_add_u32 s3, s3, s72")
        a(f"buffer_store_dword v126, v{vX}, s[64:67], s3 offen")
        a("s_waitcnt vmcnt(0)")
        a.label("K2_tdone")
    stamp(a, 8)
    a(f"s_cmp_eq_u32 s{sSLOW}, 0")
    a("s_cbranch_scc1 K2_epi")
    a(f"s_add_u32 s{sSLOW}, s{sSLOW}, 1")
    a(f"s_cmp_gt_u32 s{sSLOW}, {SLOW_NBLK}")
    a("s_cbranch_scc1 K2_slowend")
    a("s_waitcnt vmcnt(0) lgkmcnt(0)")
    a("s_barrier")
    a("s_branch K2_batch")
    a.label("K2_epi")
    a.clear_hist()
    epilogue(a)
    a.label("K2_end")
    a("s_endpgm")
    for g in range(5):
        L = f"K2_g{g}"
        a.label(f"{L}_last")
        a.clear_hist()
        if "nowht" not in DBG:
            a(f"v_mov_b32 v{vX}, 0")
            a("s_mov_b64 exec, 1")
            a(f"buffer_load_dword v3, v{vX}, {B(S_WS)}, s{sWHT} offen")
            a("s_mov_b64 exec, -1")
        a("s_nop 3")
        a(f"s_branch {L}_nodma")
    slow_code(a)

def silu_part(a, r0, n):
    if "nosilu" in DBG: return
    for i in range(r0, r0 + n): a(f"v_exp_f32 v{vT+i}, -v{vD1+i}")
    for i in range(r0, r0 + n, 2): a(f"v_pk_add_f32 v[{vT+i}:{vT+i+1}], v[{vT+i}:{vT+i+1}], s[{sONE}:{sONE+1}]")
    for i in range(r0, r0 + n): a(f"v_rcp_f32 v{vT+i}, v{vT+i}")
    for i in range(r0, r0 + n, 2): a(f"v_pk_mul_f32 v[{vT+i}:{vT+i+1}], v[{vT+i}:{vT+i+1}], v[{vD1+i}:{vD1+i+1}]")
    for i in range(r0, r0 + n, 2): a(f"v_cvt_pk_bf16_f32 v{vM+i//2}, v{vT+i}, v{vT+i+1}")

def main_group(a, g):
    L = f"K2_g{g}"
    D1 = f"v[{vD1}:{vD1+15}]"; ACC = f"v[{vACC}:{vACC+15}]"
    a.label(L)
    a.clear_hist()
    a(f"s_min_u32 s{sEND}, s{sB}, s{sTG+g+1}")
    a(f"s_cmp_ge_u32 s{sJ}, s{sEND}")
    a(f"s_cbranch_scc1 {L}_done")
    if g: a(f"v_mad_u32_u24 v{vX}, v{vPBs}, {g}, v{vPBb}")
    a(f"ds_read_b128 v[{vPB}:{vPB+3}], v{vX if g else vPBb}")
    a(f"s_sub_u32 s{sHALF}, s{sTG+g+1}, 1")
    a(f"s_bitcmp1_b32 s{sHM}, {g}")
    a(f"s_cselect_b32 s{sHALF}, s{sHALF}, -1")
    a(f"s_mov_b32 s{sFIRST}, 1")
    a.label(f"{L}_loop")
    a.clear_hist()
    a(f"ds_read_b128 v[{vA+12}:{vA+15}], v{vSEL}")
    a("s_waitcnt vmcnt(0)")
    a(f"ds_read_b128 v[{vA+8}:{vA+11}], v{vEA}")
    a(f"ds_read_b128 v[{vA}:{vA+3}], v{vQ0}")
    a(f"ds_read_b128 v[{vA+4}:{vA+7}], v{vQ1}")
    for i in range(4):
        a(f"ds_read_b64_tr_b16 v[{vSB+2*i}:{vSB+2*i+1}], v{vST} offset:{512*i}")
    a(f"ds_read2_b32 v[{vSN}:{vSN+1}], v{vLS} offset0:0 offset1:64")
    a(f"ds_read_b32 v{vSE}, v{vLE}")
    if "nofair" not in DBG:
        a(f"s_sub_u32 s72, s{sB}, s{sJ}")
        a(f"s_cmp_ge_u32 s72, 4")
        a(f"s_cbranch_scc1 {L}_p3")
        a(f"s_cmp_ge_u32 s72, 3")
        a(f"s_cbranch_scc1 {L}_p2")
        a(f"s_cmp_ge_u32 s72, 2")
        a(f"s_cbranch_scc1 {L}_p1")
        a("s_setprio 0")
        a(f"s_branch {L}_pd")
        a.label(f"{L}_p1"); a("s_setprio 1"); a(f"s_branch {L}_pd")
        a.label(f"{L}_p2"); a("s_setprio 2"); a(f"s_branch {L}_pd")
        a.label(f"{L}_p3"); a("s_setprio 3")
        a.label(f"{L}_pd")
        a.clear_hist()
    a("s_waitcnt lgkmcnt(9)")
    a(f"v_mfma_f32_32x32x16_bf16 {D1}, v[{vA+12}:{vA+15}], v[{vPB}:{vPB+3}], 0")
    a("s_waitcnt lgkmcnt(8)")
    a(f"v_mfma_f32_32x32x16_bf16 {D1}, v[{vA+8}:{vA+11}], v[{vW4}:{vW4+3}], {D1}")
    a("s_waitcnt lgkmcnt(6)")
    a(f"v_mfma_f32_32x32x16_bf16 {D1}, v[{vA}:{vA+3}], v[{vID}:{vID+3}], {D1}")
    a(f"v_mfma_f32_32x32x16_bf16 {D1}, v[{vA+4}:{vA+7}], v[{vID+4}:{vID+7}], {D1}")
    a(f"s_add_u32 s72, s{sJ}, 1")
    for r in (vLS, vLE, vSEL, vST):
        a(f"v_add_u32 v{r}, {TS}, v{r}")
    if "dmalate" not in DBG:
        a("s_waitcnt lgkmcnt(0)")
        a(f"s_cmp_ge_u32 s72, s{sB}")
        if "nodma" in DBG: a(f"s_branch {L}_nodma")
        a(f"s_cbranch_scc1 {L}_last")
        issue_dma(a)
        a.label(f"{L}_nodma")
        a("s_nop 3")
    silu_part(a, 0, 8)
    a("s_waitcnt lgkmcnt(0)")
    a(f"s_cmp_eq_u32 s{sFIRST}, 0")
    a(f"s_cbranch_scc1 {L}_acc")
    a(f"v_mfma_f32_32x32x16_bf16 {ACC}, v[{vM}:{vM+3}], v[{vSB}:{vSB+3}], 0")
    a(f"s_mov_b32 s{sFIRST}, 0")
    a(f"s_branch {L}_acc2")
    a.label(f"{L}_acc")
    a(f"v_mfma_f32_32x32x16_bf16 {ACC}, v[{vM}:{vM+3}], v[{vSB}:{vSB+3}], {ACC}")
    a.label(f"{L}_acc2")
    if "dmalate" in DBG:
        a(f"s_cmp_ge_u32 s72, s{sB}")
        if "nodma" in DBG: a(f"s_branch {L}_nodma")
        a(f"s_cbranch_scc1 {L}_last")
        issue_dma(a)
        a.label(f"{L}_nodma")
    a.clear_hist()
    a(f"s_cmp_eq_u32 s{sJ}, s{sHALF}")
    a(f"s_cbranch_scc1 {L}_skip2")
    silu_part(a, 8, 8)
    a(f"v_mfma_f32_32x32x16_bf16 {ACC}, v[{vM+4}:{vM+7}], v[{vSB+4}:{vSB+7}], {ACC}")
    a.label(f"{L}_skip2")
    a(f"s_add_u32 s{sJ}, s{sJ}, 1")
    if "tiles" in DBG:
        a("s_memtime s[74:75]")
        a(f"s_sub_u32 s95, s{sJ}, s{sA}")
        a("s_waitcnt lgkmcnt(0)")
        a("s_mov_b32 m0, s95")
        a("s_nop 0")
        a(f"v_writelane_b32 v126, s74, m0")
    a(f"s_cmp_lt_u32 s{sJ}, s{sEND}")
    a(f"s_cbranch_scc1 {L}_loop")
    a.clear_hist()
    if "noflush" in DBG: a(f"s_branch {L}_done")
    a(f"v_and_b32 v{vX}, 16, v{vFP}")
    a(f"s_lshl_b32 s72, s{sS}, 7")
    a(f"s_add_u32 s72, s72, {L_WX}")
    a(f"v_add_u32 v{vX}, s72, v{vX}")
    for q4 in range(4):
        a(f"ds_read_b128 v[{vT+4*q4}:{vT+4*q4+3}], v{vX} offset:{q4*32}")
    a(f"s_cmp_lg_u32 s{sSLOW}, 0")
    a(f"s_cbranch_scc1 {L}_sflush")
    a("s_nop 7")
    for p in range(8):
        a(f"v_cvt_pk_bf16_f32 v{vM+p}, v{vACC+2*p}, v{vACC+2*p+1}")
    a("s_mov_b32 exec_lo, 0xff")
    a("s_mov_b32 exec_hi, 0xff")
    for gm in range(4):
        a(f"ds_write_b64 v{vFM}, v[{vM+2*gm}:{vM+2*gm+1}] offset:{g*8*MBROW + gm*16}")
    a("s_mov_b64 exec, -1")
    a("s_waitcnt lgkmcnt(4)")
    a(f"v_pk_mul_f32 v[{vSB}:{vSB+1}], v[{vACC}:{vACC+1}], v[{vT}:{vT+1}]")
    for i in range(2, 16, 2):
        a(f"v_pk_fma_f32 v[{vSB}:{vSB+1}], v[{vACC+i}:{vACC+i+1}], v[{vT+i}:{vT+i+1}], v[{vSB}:{vSB+1}]")
    a(f"v_add_f32 v{vSB}, v{vSB}, v{vSB+1}")
    a(f"ds_write_b32 v{vFP}, v{vSB} offset:{g*1024}")
    a(f"s_cmp_lg_u32 s{sS}, 0")
    a(f"s_cbranch_scc1 {L}_done")
    a(f"s_lshl_b32 s72, s{sQ}, 2")
    a(f"v_mov_b32 v{vX}, s72")
    a(f"v_mov_b32 v{vY}, {g+1}")
    a("s_mov_b64 exec, 1")
    a(f"ds_write_b32 v{vX}, v{vY} offset:{L_OWN + 4*g}")
    a("s_mov_b64 exec, -1")
    a.label(f"{L}_done")

def epilogue(a):
    D0 = f"v[{vACC}:{vACC+15}]"
    vB = 56
    vAf = 88
    a(f"v_and_b32 v4, 63, v0")
    a(f"s_mov_b32 s73, s{sT10K}")
    a("s_waitcnt vmcnt(0)")
    a(f"s_bitcmp1_b32 s{sQ}, 0")
    a("s_cbranch_scc1 K2_e0")
    a(f"v_lshlrev_b32 v5, 4, v4")
    a(f"s_lshl_b32 s3, s{sS}, 13")
    a(f"s_add_u32 s3, s3, {WS_IMG + IMG_WH + 32768}")
    a(f"s_add_u32 s72, s3, 4096")
    for ks in range(8):
        so = "s3" if ks < 4 else "s72"
        a(f"buffer_load_dwordx4 v[{vB+4*ks}:{vB+4*ks+3}], v5, {B(S_WS)}, {so} offen offset:{(ks%4)*1024}")
    a.label("K2_e0")
    a.clear_hist()
    a(f"v_lshlrev_b32 v2, 4, v0")
    a(f"v_mov_b32 v3, {OOB:#x}")
    a("v_cmp_gt_u32 vcc, 640, v0")
    a("v_cndmask_b32 v2, v3, v2, vcc")
    a("v_subrev_u32 v7, 640, v0")
    a("v_lshlrev_b32 v6, 1, v7")
    a("v_cmp_gt_u32 vcc, 120, v7")
    a("v_cndmask_b32 v6, v3, v6, vcc")
    a(f"s_cmp_ge_u32 s{sW}, 12")
    a("s_cbranch_scc1 K2_e00")
    a(f"s_cmp_ge_u32 s{sW}, 10")
    a("s_cbranch_scc1 K2_e0p")
    a(f"buffer_load_dwordx4 v[120:123], v2, {B(S_H)}, s73 offen")
    a(f"s_add_u32 s72, s73, {WS_R}")
    a(f"buffer_load_dwordx4 v[16:19], v2, {B(S_WS)}, s72 offen")
    a("s_branch K2_e00")
    a.label("K2_e0p")
    a(f"buffer_load_ushort v124, v6, {B(S_POS)}, s{sT240} offen")
    a.label("K2_e00")
    a.clear_hist()
    a("s_waitcnt lgkmcnt(0)")
    a("s_barrier")
    stamp(a, 9)
    a(f"s_bitcmp1_b32 s{sQ}, 0")
    a("s_cbranch_scc1 K2_e1")
    a("v_and_b32 v24, 31, v4")
    a("v_lshrrev_b32 v25, 5, v4")
    a(f"s_lshr_b32 s72, s{sQ}, 1")
    a(f"v_mul_u32_u24 v27, {MBROW}, v24")
    a("v_lshl_add_u32 v27, v25, 4, v27")
    a(f"s_mul_i32 s3, s72, {32*MBROW}")
    a(f"s_add_u32 s3, s3, {L_MB}")
    a("v_add_u32 v27, s3, v27")
    for ks in range(8):
        a(f"ds_read_b128 v[{vAf+4*ks}:{vAf+4*ks+3}], v27 offset:{ks*32}")
    a(f"v_mul_u32_u24 v26, {4*PROW}, v25")
    a("v_lshl_add_u32 v26, v24, 2, v26")
    a(f"s_mul_i32 s3, s72, {32*PROW}")
    a(f"s_lshl_b32 s72, s{sS}, 7")
    a(f"s_add_u32 s3, s3, s72")
    a(f"s_add_u32 s3, s3, {L_T0}")
    a("v_add_u32 v26, s3, v26")
    a("s_waitcnt vmcnt(1) lgkmcnt(0)")
    for ks in range(8):
        c = "0" if ks == 0 else D0
        a(f"v_mfma_f32_32x32x16_bf16 {D0}, v[{vAf+4*ks}:{vAf+4*ks+3}], v[{vB+4*ks}:{vB+4*ks+3}], {c}")
    for r in range(16):
        a(f"ds_write_b32 v26, v{vACC+r} offset:{(8*(r//4)+r%4)*PROW}")
    a.label("K2_e1")
    a.clear_hist()
    a("s_waitcnt lgkmcnt(0)")
    a("s_barrier")
    stamp(a, 10)
    a(f"s_cmp_ge_u32 s{sW}, 12")
    a("s_cbranch_scc1 K2_end")
    a(f"s_cmp_ge_u32 s{sW}, 10")
    a("s_cbranch_scc1 K2_e_pos")
    a(f"s_lshr_b32 s3, s{sW}, 1")
    a(f"s_lshl_b32 s72, s3, 2")
    a("v_mov_b32 v8, s72")
    a(f"ds_read2_b32 v[10:11], v8 offset0:{L_OWN//4} offset1:{L_OWN//4+1}")
    a(f"ds_read2_b32 v[12:13], v8 offset0:{L_OWN//4+2} offset1:{L_OWN//4+3}")
    a("v_lshrrev_b32 v5, 4, v0")
    a("v_and_b32 v5, 7, v5")
    a("v_and_b32 v6, 15, v0")
    a(f"v_mul_u32_u24 v5, {PROW}, v5")
    a("v_lshl_add_u32 v5, v6, 5, v5")
    a(f"s_mul_i32 s72, s3, {8*PROW}")
    a(f"s_add_u32 s72, s72, {L_T0}")
    a("v_add_u32 v5, s72, v5")
    for r in range(8): a(f"v_mov_b32 v{40+r}, 0")
    a("s_add_u32 s3, s3, 1")
    a("s_waitcnt lgkmcnt(0)")
    for q in range(4):
        a(f"v_readfirstlane_b32 s72, v{10+q}")
        a(f"s_cmp_lg_u32 s72, s3")
        a(f"s_cbranch_scc1 K2_f{q}")
        a(f"ds_read_b128 v[48:51], v5 offset:{q*8*PROW}")
        a(f"ds_read_b128 v[52:55], v5 offset:{q*8*PROW+16}")
        a("s_waitcnt lgkmcnt(0)")
        for r in range(8): a(f"v_add_f32 v{40+r}, v{40+r}, v{48+r}")
        a.label(f"K2_f{q}")
        a.clear_hist()
    a("s_waitcnt vmcnt(0)")
    for p in range(4):
        a(f"v_lshlrev_b32 v{56+2*p}, 16, v{16+p}")
        a(f"v_and_b32 v{57+2*p}, 0xffff0000, v{16+p}")
    a(f"v_mov_b32 v48, s{sLN2}")
    a(f"v_mov_b32 v49, s{sLOG2E}")
    for r in range(8): a(f"v_fmac_f32 v{56+r}, v48, v{40+r}")
    for r in range(8): a(f"v_mul_f32 v{40+r}, v49, v{56+r}")
    for r in range(8): a(f"v_exp_f32 v{40+r}, -v{40+r}")
    for r in range(8): a(f"v_add_f32 v{40+r}, 1.0, v{40+r}")
    for r in range(8): a(f"v_rcp_f32 v{40+r}, v{40+r}")
    for r in range(8): a(f"v_mul_f32 v{40+r}, v{56+r}, v{40+r}")
    for p in range(4):
        a(f"v_lshlrev_b32 v{56+2*p}, 16, v{120+p}")
        a(f"v_and_b32 v{57+2*p}, 0xffff0000, v{120+p}")
    for r in range(8): a(f"v_add_f32 v{40+r}, v{40+r}, v{56+r}")
    for p in range(4): a(f"v_cvt_pk_bf16_f32 v{48+p}, v{40+2*p}, v{41+2*p}")
    a(f"buffer_store_dwordx4 v[48:51], v2, {B(S_OUT)}, s73 offen" + ("" if "nowtout" in DBG else " sc0 sc1"))
    if PROF:
        a("s_waitcnt vmcnt(0)")
        stamp(a, 11)
        prof_out(a)
    if "clk2" in DBG:
        a("s_waitcnt vmcnt(0) lgkmcnt(0)")
        a("s_memtime s[92:93]")
        a("s_memrealtime s[94:95]")
        a("s_load_dwordx2 s[64:65], s[0:1], 72")
        a("s_waitcnt lgkmcnt(0)")
        a("s_sub_u32 s92, s92, s96")
        a("s_sub_u32 s94, s94, s98")
        a("s_mov_b32 s66, 256")
        a("s_mov_b32 s67, 0x20000")
        a("v_mov_b32 v100, s92")
        a("v_mov_b32 v101, s94")
        a(f"s_lshl_b32 s62, s{sT}, 3")
        a("v_mov_b32 v102, 0x7fffff00")
        a("v_cmp_eq_u32 vcc, 0, v0")
        a("v_cndmask_b32 v103, v102, v0, vcc")
        a("buffer_store_dwordx2 v[100:101], v103, s[64:67], s62 offen")
        a("s_waitcnt vmcnt(0)")
    if "rt" in DBG: rt_end(a, 86, 64, 1, sT, 100, "")
    a("s_endpgm")
    a.label("K2_e_pos")
    a.clear_hist()
    a("v_cmp_gt_u32 vcc, 120, v7")
    a("s_and_saveexec_b64 s[76:77], vcc")
    a("s_cbranch_execz K2_end")
    a("v_mul_u32_u24 v8, 43691, v7")
    a("v_lshrrev_b32 v8, 17, v8")
    a("v_mul_u32_u24 v9, 3, v8")
    a("v_sub_u32 v9, v7, v9")
    a("v_lshrrev_b32 v10, 3, v8")
    a("v_and_b32 v11, 7, v8")
    a("v_add_u32 v9, 1, v9")
    a("v_lshl_add_u32 v9, v9, 3, v11")
    a("v_lshlrev_b32 v9, 5, v9")
    a("v_lshl_add_u32 v9, v10, 10, v9")
    a(f"v_add_u32 v9, {L_POSP}, v9")
    a("v_lshlrev_b32 v12, 2, v10")
    a("v_add_u32 v10, 1, v10")
    a("v_mov_b32 v13, 0")
    for q in range(4):
        a(f"ds_read_b32 v14, v12 offset:{L_OWN + 4*q}")
        a(f"ds_read_b128 v[16:19], v9 offset:{q*1024}")
        a(f"ds_read_b128 v[20:23], v9 offset:{q*1024+16}")
        a("s_waitcnt lgkmcnt(0)")
        a("v_add_f32 v16, v16, v17"); a("v_add_f32 v18, v18, v19")
        a("v_add_f32 v20, v20, v21"); a("v_add_f32 v22, v22, v23")
        a("v_add_f32 v16, v16, v18"); a("v_add_f32 v20, v20, v22")
        a("v_add_f32 v16, v16, v20")
        a("v_cmp_eq_u32 vcc, v14, v10")
        a("v_cndmask_b32 v16, 0, v16, vcc")
        a("v_add_f32 v13, v13, v16")
    a("s_waitcnt vmcnt(0)")
    a("v_lshlrev_b32 v124, 16, v124")
    a("v_add_f32 v13, v13, v124")
    a("v_cvt_pk_bf16_f32 v13, v13, v13")
    a(f"s_add_u32 s3, s{sT240}, {N*256}")
    a(f"buffer_store_short v13, v6, {B(S_OUT)}, s3 offen" + ("" if "nowtout" in DBG else " sc0 sc1"))
    a("s_endpgm")

def prof_out(a):
    a(f"s_cmp_ge_u32 s{sT}, 2")
    a("s_cbranch_scc1 K2_sto")
    a(f"s_mov_b32 s72, 0")
    a(f"s_cmp_eq_u32 s{sW}, 0")
    a("s_cbranch_scc1 K2_stog")
    a(f"s_mov_b32 s72, 64")
    a(f"s_cmp_lg_u32 s{sW}, 9")
    a("s_cbranch_scc1 K2_sto")
    a.label("K2_stog")
    a(f"v_writelane_b32 v{vPR}, s{sNT}, 14")
    a("s_load_dwordx2 s[64:65], s[0:1], 72")
    a("s_waitcnt lgkmcnt(0)")
    a("s_mov_b32 s66, 256")
    a("s_mov_b32 s67, 0x20000")
    a(f"v_and_b32 v{vX}, 63, v0")
    a(f"v_lshlrev_b32 v{vX}, 2, v{vX}")
    a(f"v_mov_b32 v3, {OOB:#x}")
    a(f"v_cmp_gt_u32 vcc, 64, v{vX}")
    a(f"v_cndmask_b32 v{vX}, v3, v{vX}, vcc")
    a(f"s_lshl_b32 s3, s{sT}, 7")
    a(f"s_add_u32 s3, s3, s72")
    a(f"buffer_store_dword v{vPR}, v{vX}, s[64:67], s3 offen")
    a("s_waitcnt vmcnt(0)")
    a.label("K2_sto")

def slow_code(a):
    a.label("K2_toslow")
    a.clear_hist()
    a(f"s_mov_b32 s{sSLOW}, 1")
    a("s_load_dwordx4 s[64:67], s[0:1], 24")
    a("s_waitcnt vmcnt(0) lgkmcnt(0)")
    srd(a, S_SRC, 64, 65, E * 4)
    srd(a, S_DST, 66, 67, E * 4)
    a("s_barrier")
    a("s_branch K2_batch")
    a.label("K2_slowzero")
    a.clear_hist()
    a(f"v_lshlrev_b32 v{vX}, 4, v0")
    a(f"v_add_u32 v{vX}, {L_MACC}, v{vX}")
    for r in range(4): a(f"v_mov_b32 v{vZR+r}, 0")
    a(f"ds_write_b128 v{vX}, v[{vZR}:{vZR+3}]")
    masked(a, f"v_cmp_gt_u32 vcc, {(40*MROW+640-16384)//16}, v0", "K2_sz", lambda: a(f"ds_write_b128 v{vX}, v[{vZR}:{vZR+3}] offset:16384"))
    a("s_waitcnt lgkmcnt(0)")
    a("s_barrier")
    a("s_branch K2_zdone")
    a.label("K2_slowload")
    a.clear_hist()
    a(f"s_sub_u32 s3, s{sSLOW}, 1")
    a(f"s_mul_i32 s3, s3, {SLOW_BLK}")
    a(f"v_add_u32 v{RS0.eid}, s3, v0")
    a(f"v_lshlrev_b32 v{vX}, 2, v{RS0.eid}")
    a(f"v_mov_b32 v{vY}, {OOB:#x}")
    a(f"v_cmp_gt_u32 vcc, {SLOW_BLK}, v0")
    a(f"v_cndmask_b32 v{vX}, v{vY}, v{vX}, vcc")
    a(f"buffer_load_dword v{RS0.dl}, v{vX}, {B(S_DST)}, 0 offen")
    a(f"buffer_load_dword v{RS0.so}, v{vX}, {B(S_SRC)}, 0 offen")
    a(f"s_mul_i32 s3, s{sT}, 40")
    a(f"v_mov_b32 v{RS1.rec}, -1")
    a("s_waitcnt vmcnt(0) lgkmcnt(0)")
    a("s_barrier")
    a(f"v_subrev_u32 v{RS0.dl}, s3, v{RS0.dl}")
    a(f"v_lshl_or_b32 v{RS0.rec}, v{RS0.dl}, 14, v{RS0.so}")
    a(f"v_cmp_gt_u32 s[78:79], 40, v{RS0.dl}")
    a(f"s_and_b64 s[78:79], s[78:79], vcc")
    a(f"v_cndmask_b32 v{RS0.rec}, -1, v{RS0.rec}, s[78:79]")
    a("s_branch K2_sort")
    a.label("K2_slowaddr")
    a.clear_hist()
    a(f"v_and_b32 v{vL}, 63, v0")
    lane_consts_run(a)
    a("s_branch K2_addr")
    for g in range(5):
        L = f"K2_g{g}"
        a.label(f"{L}_sflush")
        a.clear_hist()
        a("s_waitcnt lgkmcnt(0)")
        a("s_nop 7")
        a(f"v_pk_mul_f32 v[{vSB}:{vSB+1}], v[{vACC}:{vACC+1}], v[{vT}:{vT+1}]")
        for i in range(2, 16, 2):
            a(f"v_pk_fma_f32 v[{vSB}:{vSB+1}], v[{vACC+i}:{vACC+i+1}], v[{vT+i}:{vT+i+1}], v[{vSB}:{vSB+1}]")
        a(f"v_add_f32 v{vSB}, v{vSB}, v{vSB+1}")
        a(f"v_and_b32 v{vX}, 63, v0")
        a(f"v_and_b32 v{vY}, 7, v{vX}")
        a(f"v_bfe_u32 v{vZ}, v{vX}, 3, 2")
        a(f"v_lshlrev_b32 v{vZ}, 2, v{vZ}")
        a(f"v_lshl_add_u32 v{vZ}, v{vY}, 4, v{vZ}")
        a(f"v_add_u32 v{vZ}, {L_POSACC + g*128}, v{vZ}")
        a(f"ds_add_f32 v{vZ}, v{vSB}")
        a(f"v_mul_u32_u24 v{vY}, {MROW}, v{vY}")
        a(f"v_lshrrev_b32 v{vX}, 5, v{vX}")
        a(f"v_lshl_add_u32 v{vY}, v{vX}, 4, v{vY}")
        a(f"s_lshl_b32 s72, s{sS}, 7")
        a(f"s_add_u32 s72, s72, {L_MACC}")
        a(f"v_add_u32 v{vY}, s72, v{vY}")
        a("s_mov_b32 exec_lo, 0xff")
        a("s_mov_b32 exec_hi, 0xff")
        for r in range(16):
            a(f"ds_add_f32 v{vY}, v{vACC+r} offset:{g*8*MROW + (8*(r//4)+r%4)*4}")
        a("s_mov_b64 exec, -1")
        a(f"s_branch {L}_done")
    a.label("K2_slowend")
    a.clear_hist()
    a("s_waitcnt vmcnt(0) lgkmcnt(0)")
    a("s_barrier")
    a("v_lshrrev_b32 v8, 4, v0")
    a("v_min_u32 v8, 39, v8")
    a("v_and_b32 v9, 15, v0")
    a(f"v_mul_u32_u24 v10, {MROW}, v8")
    a("v_lshl_add_u32 v10, v9, 5, v10")
    a(f"v_add_u32 v10, {L_MACC}, v10")
    a("ds_read_b128 v[24:27], v10")
    a("ds_read_b128 v[28:31], v10 offset:16")
    a("v_subrev_u32 v7, 640, v0")
    a("v_mul_u32_u24 v11, 43691, v7")
    a("v_lshrrev_b32 v11, 17, v11")
    a("v_min_u32 v11, 39, v11")
    a("v_add_u32 v12, v11, v7")
    a("v_and_b32 v12, 0xff, v12")
    a("v_lshlrev_b32 v12, 2, v12")
    a(f"v_add_u32 v12, {L_POSACC+4}, v12")
    a("ds_read_b32 v32, v12")
    a("s_waitcnt lgkmcnt(0)")
    a("s_barrier")
    def wm():
        for p in range(4): a(f"v_cvt_pk_bf16_f32 v{24+p}, v{24+2*p}, v{25+2*p}")
        a(f"v_mul_u32_u24 v10, {MBROW}, v8")
        a("v_lshl_add_u32 v10, v9, 4, v10")
        a(f"v_add_u32 v10, {L_MB}, v10")
        a("ds_write_b128 v10, v[24:27]")
    masked(a, "v_cmp_gt_u32 vcc, 640, v0", "K2_se1", wm)
    def wp():
        a("v_mul_u32_u24 v13, 3, v11")
        a("v_sub_u32 v13, v7, v13")
        a("v_add_u32 v13, 1, v13")
        a("v_and_b32 v14, 7, v11")
        a("v_lshl_add_u32 v13, v13, 3, v14")
        a("v_lshlrev_b32 v13, 5, v13")
        a("v_lshrrev_b32 v14, 3, v11")
        a("v_lshl_add_u32 v13, v14, 10, v13")
        a(f"v_add_u32 v13, {L_POSP}, v13")
        for r in range(33, 40): a(f"v_mov_b32 v{r}, 0")
        a("ds_write_b128 v13, v[32:35]")
        a("ds_write_b128 v13, v[36:39] offset:16")
    masked(a, "v_cmp_gt_u32 vcc, 120, v7", "K2_se2", wp)
    def wo():
        a("v_add_u32 v13, 1, v0")
        a("v_cmp_gt_u32 vcc, 5, v0")
        a("v_cndmask_b32 v13, 0, v13, vcc")
        a("v_lshlrev_b32 v14, 2, v0")
        a(f"ds_write_b32 v14, v13 offset:{L_OWN}")
    masked(a, "v_cmp_gt_u32 vcc, 12, v0", "K2_se3", wo)
    a("s_branch K2_epi")

K2_KD = f"""
.amdhsa_kernel {KNAME}_kernel
  .amdhsa_next_free_vgpr 128
  .amdhsa_next_free_sgpr 102
  .amdhsa_accum_offset 128
  .amdhsa_group_segment_fixed_size 0
  .amdhsa_kernarg_size 88
  .amdhsa_user_sgpr_count 2
  .amdhsa_user_sgpr_kernarg_segment_ptr 1
  .amdhsa_system_sgpr_workgroup_id_x 1
.end_amdhsa_kernel
"""
```
